```python
import torch

def _softmax(x, axis=-1):
    return torch.softmax(x, dim=axis)

def _gelu(x):
    return torch.nn.functional.gelu(x, approximate='tanh')

def _silu(x):
    return torch.nn.functional.silu(x)

def _sigmoid(x):
    return torch.sigmoid(x)

def _layernorm(x, axis=-1, eps=1e-05):
    m = x.mean(dim=axis, keepdim=True)
    v = x.var(dim=axis, keepdim=True, unbiased=False)
    return (x - m) / torch.sqrt(v + eps)

def _scatter_add(tgt, idx, src, axis=0):
    return tgt.clone().index_add_(axis, idx, src)

def _segment_sum(src, seg, n):
    out = torch.zeros((n,) + src.shape[1:], dtype=src.dtype)
    return out.index_add_(0, seg, src)

def _pad(x, pw):
    flat = tuple((v for pair in reversed(pw) for v in pair))
    return torch.nn.functional.pad(x, flat)
kernel_name = 'parallel_sum__ssm_conv_h3__mixer_gmlp__prompt'

def setup_inputs():

    _w = lambda a: (lambda t: t.to(torch.bfloat16) if t.is_floating_point() else t)(torch.as_tensor(a))

    def _A_setup():
        B, S, D = (1, 2048, 576)
        ks = 4
        return {'q': _w((lambda *s: torch.randn(*s, dtype=torch.bfloat16) * 0.05)(B, S, D)), 'k': _w((lambda *s: torch.randn(*s, dtype=torch.bfloat16) * 1.6)(B, S, D)), 'v': _w((lambda *s: torch.randn(*s, dtype=torch.bfloat16) * 0.4)(B, S, D)), 'shift_k': _w((lambda *s: torch.randn(*s, dtype=torch.bfloat16) * 1.6)(D, ks) * 0.5), 'ssm_k': _w((lambda *s: torch.randn(*s, dtype=torch.bfloat16) * 3.2)(D, S) * (1.0 / S ** 0.5)), 'ssm_D': _w((lambda *s: torch.randn(*s, dtype=torch.bfloat16) * 0.8)(D))}
    _A_in = _A_setup()

    def _B_setup():
        B, S, D, F = (1, 2048, 576, 4608)
        Fh = F // 2
        return {'x': _w((lambda *s: torch.randn(*s, dtype=torch.bfloat16) * 0.05)(B, S, D)), 'w_in': _w((lambda *s: torch.randn(*s, dtype=torch.bfloat16) * 0.4)(D, 2 * Fh)), 'w_sp': _w(0.01 * (lambda *s: torch.randn(*s, dtype=torch.bfloat16) * 0.4)(S, S)), 'b_sp': _w(1.0 + 0.01 * (lambda *s: torch.randn(*s, dtype=torch.bfloat16) * 0.05)(S)), 'w_out': _w((lambda *s: torch.randn(*s, dtype=torch.bfloat16) * 0.05)(Fh, D))}
    _B_in = _B_setup()
    return {'A_q': _A_in['q'], 'A_k': _A_in['k'], 'A_v': _A_in['v'], 'A_shift_k': _A_in['shift_k'], 'A_ssm_k': _A_in['ssm_k'], 'A_ssm_D': _A_in['ssm_D'], 'B_x': _B_in['x'], 'B_w_in': _B_in['w_in'], 'B_w_sp': _B_in['w_sp'], 'B_b_sp': _B_in['b_sp'], 'B_w_out': _B_in['w_out']}

def reference(A_q, A_k, A_v, A_shift_k, A_ssm_k, A_ssm_D, B_x, B_w_in, B_w_sp, B_b_sp, B_w_out):

    def _A_ref(q, k, v, shift_k, ssm_k, ssm_D):
        B, S, D = q.shape
        ks = shift_k.shape[-1]
        k_pad = _pad(k, ((0, 0), (ks - 1, 0), (0, 0)))
        k_shift = torch.zeros_like(k)
        for t in range(ks):
            k_shift = k_shift + k_pad[:, t:t + S, :] * shift_k[:, ks - 1 - t][None, None, :]
        kv = k_shift * v
        L = 2 * S
        kv_pad = _pad(kv, ((0, 0), (0, S), (0, 0)))
        kf_pad = _pad(ssm_k, ((0, 0), (0, S)))
        kv_f = (lambda x, axes=(-2, -1): torch.fft.rfft2(x.float(), dim=axes))(kv_pad[:, None, :, :], axes=(1, 2))
        kf_f = (lambda x, axes=(-2, -1): torch.fft.rfft2(x.float(), dim=axes))(kf_pad[:, None, :], axes=(1, 2))
        kf_f = (lambda x, *d: x.permute(*d))(kf_f, 1, 2, 0)
        y_f = kv_f * kf_f[None, :, :, :]
        y = (lambda x, s, axes=(-2, -1): torch.fft.irfft2(x, s=s, dim=axes).to(torch.bfloat16))(y_f, (1, L), axes=(1, 2))[:, 0, :S, :]
        y = y + kv * ssm_D[None, None, :]
        return q * y

    def _B_ref(x, w_in, w_sp, b_sp, w_out):
        B, S, D = x.shape
        F = w_in.shape[-1]
        Fh = F // 2
        z = _gelu(torch.einsum('bsd,df->bsf', x, w_in))
        z1 = z[..., :Fh].clone()
        z2 = _layernorm(z[..., Fh:], axis=-1)
        g = torch.einsum('ts,bsf->btf', w_sp, z2) + b_sp[None, :, None]
        return torch.einsum('bsf,fd->bsd', z1 * g, w_out)
    x = A_q
    xn = _layernorm(x, axis=-1)
    return x + _A_ref(xn, A_k, A_v, A_shift_k, A_ssm_k, A_ssm_D) + _B_ref(xn, B_w_in, B_w_sp, B_b_sp, B_w_out)
```

```python
class Asm:
    def __init__(self):
        self.lines = []
        self._lab = 0
    def __call__(self, s, *a):
        if a:
            s = s % a
        for l in s.split('\n'):
            self.lines.append('    ' + l.strip() if not l.strip().endswith(':') else l.strip())
        return self
    def c(self, s):
        self.lines.append('    ; ' + s)
    def label(self, name):
        self.lines.append(name + ':')
    def newlabel(self, p='L'):
        self._lab += 1
        return '%s_%d' % (p, self._lab)
    def text(self):
        return '\n'.join(self.lines) + '\n'

def vr(b, n=1):
    return 'v%d' % b if n == 1 else 'v[%d:%d]' % (b, b + n - 1)
def ar(b, n=1):
    return 'a%d' % b if n == 1 else 'a[%d:%d]' % (b, b + n - 1)
def sr(b, n=1):
    return 's%d' % b if n == 1 else 's[%d:%d]' % (b, b + n - 1)

def kernel_begin(a, name):
    a.lines.append('.globl %s' % name)
    a.lines.append('.p2align 8')
    a.lines.append('.type %s,@function' % name)
    a.lines.append('%s:' % name)

def kernel_desc(name, nvgpr, accum_offset, nsgpr=102, wg_y=False):
    s = []
    s.append('.p2align 6')
    s.append('.amdhsa_kernel %s' % name)
    s.append('  .amdhsa_next_free_vgpr %d' % nvgpr)
    s.append('  .amdhsa_next_free_sgpr %d' % nsgpr)
    s.append('  .amdhsa_accum_offset %d' % accum_offset)
    s.append('  .amdhsa_group_segment_fixed_size 0')
    s.append('  .amdhsa_kernarg_size 112')
    s.append('  .amdhsa_user_sgpr_count 2')
    s.append('  .amdhsa_user_sgpr_kernarg_segment_ptr 1')
    s.append('  .amdhsa_system_sgpr_workgroup_id_x 1')
    if wg_y:
        s.append('  .amdhsa_system_sgpr_workgroup_id_y 1')
    s.append('  .amdhsa_float_denorm_mode_32 3')
    s.append('  .amdhsa_float_denorm_mode_16_64 3')
    s.append('.end_amdhsa_kernel')
    return '\n'.join(s) + '\n'

def srd(a, d, base, nbytes, off=0):
    if off:
        a('s_add_u32 s%d, s%d, 0x%x' % (d, base, off))
        a('s_addc_u32 s%d, s%d, 0' % (d + 1, base + 1))
    else:
        a('s_mov_b32 s%d, s%d' % (d, base))
        a('s_mov_b32 s%d, s%d' % (d + 1, base + 1))
    a('s_mov_b32 s%d, 0x%x' % (d + 2, nbytes))
    a('s_mov_b32 s%d, 0x00020000' % (d + 3))

def build_file(header_lines, body, descs):
    out = []
    out += header_lines
    out.append('.amdgcn_target "amdgcn-amd-amdhsa--gfx950"')
    out.append('.text')
    out.append(body)
    out.append('.section .rodata,"a"')
    out += descs
    return '\n'.join(out) + '\n'
```

```python
import re, sys

REG = re.compile(r'\b([vas])(\d+)\b|\b([vas])\[(\d+):(\d+)\]|\b(vcc|exec|m0|scc)\b')
def regs(op):
    out = []
    for m in REG.finditer(op):
        if m.group(1):
            out.append((m.group(1), int(m.group(2))))
        elif m.group(3):
            out += [(m.group(3), i) for i in range(int(m.group(4)), int(m.group(5)) + 1)]
        else:
            out.append((m.group(6), 0))
    return out

TRANS = ('v_exp_f32', 'v_log_f32', 'v_rcp_f32', 'v_rsq_f32', 'v_sqrt_f32', 'v_sin_f32', 'v_cos_f32', 'v_rcp_iflag_f32')

class I:
    pass

def parse(line):
    s = line.split(';')[0].strip()
    if not s or s.endswith(':') or s.startswith('.'):
        return None
    p = s.split(None, 1)
    op = p[0]
    rest = p[1] if len(p) > 1 else ''
    ops = [x.strip() for x in re.split(r',(?![^\[]*\])', rest)] if rest else []
    i = I(); i.op = op; i.text = s; i.ops = ops
    i.w = []; i.r = []; i.cls = 'other'; i.states = 1
    i.srcC = []; i.srcAB = []
    if op == 's_nop':
        i.states = int(ops[0], 0) + 1; i.cls = 'salu'; return i
    if op.startswith('v_mfma'):
        i.cls = 'mfma'; i.w = regs(ops[0]); i.srcAB = regs(ops[1]) + regs(ops[2]); i.srcC = regs(ops[3]); i.r = i.srcAB + i.srcC
        i.passes = 8 if '32x32' in op else 4
        return i
    if op.startswith('v_'):
        i.cls = 'valu'
        i.dpp = ('row_' in s or 'quad_perm' in s or 'wave_' in s)
        i.trans = op.replace('_e32', '').replace('_e64', '') in TRANS
        if op.startswith('v_cmp'):
            i.w = regs(ops[0]); i.r = sum((regs(o) for o in ops[1:]), [])
            if op.startswith('v_cmpx'): i.w.append(('exec', 0))
        elif op.startswith(('v_add_co', 'v_sub_co', 'v_addc_co', 'v_subb_co', 'v_div_scale', 'v_mad_u64')):
            i.w = regs(ops[0]) + regs(ops[1]); i.r = sum((regs(o) for o in ops[2:]), [])
        elif op.startswith(('v_swap', 'v_permlane16_swap', 'v_permlane32_swap')):
            i.w = regs(ops[0]) + regs(ops[1]); i.r = list(i.w)
        else:
            i.w = regs(ops[0]); i.r = sum((regs(o.split(' ')[0] if False else o) for o in ops[1:]), [])
            if op.startswith(('v_fmac', 'v_pk_fmac', 'v_dot2c', 'v_writelane')) or getattr(i, 'dpp', False):
                i.r += regs(ops[0])
            if op.startswith('v_cndmask') and len(ops) == 3: i.r.append(('vcc', 0))
        return i
    if op.startswith(('buffer_', 'global_')):
        i.cls = 'vmem'
        i.lds = bool(re.search(r'\blds\b', s)) or 'load_lds' in op
        if op.startswith(('buffer_inv', 'buffer_wbl2')):
            return i
        if 'load' in op and not i.lds:
            i.w = regs(ops[0]); i.r = sum((regs(o) for o in ops[1:]), [])
        else:
            i.r = sum((regs(o) for o in ops), [])
            if 'atomic' in op and re.search(r'\bsc0\b', s): i.w = regs(ops[0])
        i.widestore = ('store' in op and ('x3' in op or 'x4' in op))
        if i.widestore:
            i.data = regs(ops[0]) if op.startswith('buffer') else regs(ops[1])
        return i
    if op.startswith('ds_'):
        i.cls = 'ds'
        if 'read' in op or 'permute' in op or 'swizzle' in op:
            i.w = regs(ops[0]); i.r = sum((regs(o) for o in ops[1:]), [])
        else:
            i.r = sum((regs(o) for o in ops), [])
        return i
    if op.startswith('s_'):
        i.cls = 'salu'
        if op.startswith(('s_cmp', 's_cbranch', 's_branch', 's_waitcnt', 's_barrier', 's_endpgm', 's_setprio', 's_sleep')):
            i.r = sum((regs(o) for o in ops), [])
        else:
            i.w = regs(ops[0]) if ops else []; i.r = sum((regs(o) for o in ops[1:]), [])
            if 'saveexec' in op: i.w.append(('exec', 0))
        return i
    return i

def check_seq(seq, errs):
    n = len(seq)
    for k, c in enumerate(seq):
        dist = 0
        j = k - 1
        while j >= 0 and dist < 20:
            p = seq[j]
            need = 0; why = ''
            pw = set(p.w)
            if p.cls == 'valu':
                vw = {r for r in pw if r[0] in 'va'}
                sw = {r for r in pw if r[0] == 's' or r[0] == 'vcc'}
                if c.cls == 'mfma' and vw & set(c.r): need, why = 2, 'VALU->MFMA src'
                if c.cls == 'valu':
                    if p.trans and not c.trans and vw & set(c.r): need, why = max(need, 1), 'trans->VALU'
                    if c.dpp and vw & set(c.r): need, why = max(need, 2), 'VALU->DPP'
                    if c.op.startswith(('v_readlane', 'v_readfirstlane')) and vw & set(c.r): need, why = max(need, 1), 'VALU->readlane'
                    if c.op.startswith('v_permlane') and vw & set(c.r): need, why = max(need, 2), 'VALU->permlane'
                    if sw & set(c.r): need, why = max(need, 4 if c.op.startswith(('v_readlane', 'v_writelane')) else 2), 'VALU sgpr->VALU'
                    if ('exec', 0) in pw and c.dpp: need, why = max(need, 5), 'VALU exec->DPP'
                if c.cls == 'vmem' and sw & set(c.r): need, why = max(need, 5), 'VALU sgpr->VMEM'
                if c.cls == 'mfma' and ('exec', 0) in pw: need, why = max(need, 4), 'exec->mfma'
            if p.cls == 'mfma':
                big = 12 if p.passes == 8 else 8
                if c.cls == 'mfma':
                    if pw & set(c.srcAB): need, why = big, 'MFMA D->MFMA A/B'
                    elif pw & set(c.srcC) and p.w != c.srcC: need, why = big - 2, 'MFMA D->MFMA C partial'
                    elif pw & set(c.w) and p.w != c.srcC: need, why = big, 'MFMA D WAW?'
                elif c.cls in ('valu', 'vmem', 'ds'):
                    if pw & (set(c.r) | set(c.w)): need, why = big, 'MFMA D->%s' % c.cls
                    if c.cls == 'valu' and set(p.srcC) & set(c.w): need, why = max(need, 7 if p.passes == 8 else 3), 'MFMA srcC WAR'
            if p.cls == 'vmem' and getattr(p, 'widestore', False):
                if set(p.data) & set(c.w): need, why = (2 if c.cls == 'valu' else 1), 'store data WAR'
            if p.cls == 'salu' and ('m0', 0) in pw:
                if c.cls == 'vmem' and getattr(c, 'lds', False): need, why = 1, 'm0->DMA'
            if need > dist:
                errs.add('%s: need %d have %d: [%s] -> [%s]' % (why, need, dist, p.text, c.text))
            dist += p.states
            j -= 1

def check(text):
    lines = text.split('\n')
    seq = []; labels = {}
    errs = set()
    items = []
    for l in lines:
        s = l.split(';')[0].strip()
        if s.endswith(':'):
            labels[s[:-1]] = len(items); continue
        i = parse(l)
        if i is not None: items.append(i)
    check_seq(items, errs)
    for k, i in enumerate(items):
        if i.op.startswith(('s_cbranch', 's_branch')) and i.ops and i.ops[0] in labels:
            t = labels[i.ops[0]]
            w = items[max(0, k - 24):k + 1] + items[t:t + 24]
            check_seq(w, errs)
    return sorted(errs)

if __name__ == '__main__':
    e = check(open(sys.argv[1]).read())
    for x in e: print(x)
    print(len(e), 'hazards')
```

```python
import sys
from asmlib import *
import hazard

S = 2048; D = 576; FH = 2304
XN_F   = 0x0000000
XSTAT  = 0x0240000
KVB    = 0x0280000
YT     = 0x0500000
PSTAT  = 0x0780000
WIN_F  = 0x0800000
WOUT_F = 0x0E00000
WSP_F  = 0x1100000
Z2_F   = 0x1900000
Z1_P   = 0x2200000
H_F    = 0x2B00000
WS_END = 0x3500000
STAMP  = 0x3400000
DBG = {'on': False}
SC1 = {'on': ''}
def stamp(a, v, i):
    if not DBG['on']: return
    a('s_memrealtime s[98:99]')
    a('s_waitcnt lgkmcnt(0)')
    a('v_writelane_b32 v%d, s98, %d' % (v, i))
def stamp_flush(a, v, k, vtmp, last):
    if not DBG['on']: return
    a('s_waitcnt vmcnt(0)')
    stamp(a, v, last)
    a('s_lshl_b32 s96, s2, 3')
    a('s_add_u32 s96, s96, s3')
    a('s_lshl_b32 s96, s96, 6')
    a('s_add_u32 s96, s96, 0x%x' % (STAMP + k * 256 * 8 * 64))
    a('v_lshlrev_b32 v%d, 2, v0' % vtmp)
    a('s_mov_b64 exec, 0xffff')
    a('buffer_store_dword v%d, v%d, s[48:51], s96 offen' % (v, vtmp))

def f2u(x):
    import struct
    return struct.unpack('<I', struct.pack('<f', x))[0]

def wave_lane(a, sw, keep_tid=None):
    if keep_tid is not None:
        a('v_mov_b32 v%d, v0' % keep_tid)
    a('v_lshrrev_b32 v1, 6, v0')
    a('v_and_b32 v0, 63, v0')
    a('v_readfirstlane_b32 s%d, v1' % sw)

def wave_reduce(a, regs_, sdst):
    assert len(regs_) >= 1
    pad = max(0, 3 - len(regs_))
    def nop():
        if pad == 2: a('s_nop 1')
        elif pad == 1: a('s_nop 0')
    a('s_nop 1')
    for sh in (8, 4, 2, 1):
        for r in regs_:
            a('v_add_f32 v%d, v%d, v%d row_ror:%d' % (r, r, r, sh))
        nop()
    for r in regs_:
        a('v_add_f32 v%d, v%d, v%d row_bcast:15 row_mask:0xa' % (r, r, r))
    nop()
    for r in regs_:
        a('v_add_f32 v%d, v%d, v%d row_bcast:31 row_mask:0xc' % (r, r, r))
    a('s_nop 0')
    for r, s in zip(regs_, sdst):
        a('v_readlane_b32 s%d, v%d, 63' % (s, r))

def round_bf16(a, r):
    a('v_cvt_pk_bf16_f32 v%d, v%d, v%d' % (r, r, r))
    a('v_and_b32 v%d, 0xffff0000, v%d' % (r, r))

def gen_k0(a):
    name = 'k0_kernel'
    kernel_begin(a, name)
    a('s_cmp_ge_u32 s2, 256')
    a('s_cbranch_scc1 K0_end')
    a('s_load_dwordx4 s[4:7], s[0:1], 0')
    a('s_load_dwordx4 s[8:11], s[0:1], 16')
    a('s_load_dwordx4 s[12:15], s[0:1], 56')
    a('s_load_dwordx2 s[16:17], s[0:1], 80')
    a('s_load_dwordx2 s[18:19], s[0:1], 104')
    stamp(a, 127, 0)
    wave_lane(a, 3, keep_tid=2)
    a('v_lshlrev_b32 v3, 4, v0')
    a('s_lshr_b32 s60, s2, 2')
    a('s_lshl_b32 s61, s60, 5')
    a('s_and_b32 s62, s2, 1')
    a('s_lshl_b32 s63, s62, 4')
    a('s_add_u32 s61, s61, s63')
    a('s_lshr_b32 s63, s3, 2')
    a('s_lshl_b32 s63, s63, 3')
    a('s_add_u32 s61, s61, s63')
    a('s_bfe_u32 s64, s2, 0x10001')
    a('s_lshl_b32 s63, s64, 2')
    a('s_add_u32 s61, s61, s63')
    a('s_and_b32 s63, s3, 3')
    a('s_add_u32 s61, s61, s63')
    a('s_mul_i32 s65, s61, 1152')
    a('s_lshl_b32 s66, s3, 8')
    a('s_add_u32 s66, s66, s2')
    a('s_cmp_ge_u32 s66, 1944')
    a('s_cselect_b32 s67, 104, 0')
    a('s_sub_u32 s66, s66, s67')
    a('s_waitcnt lgkmcnt(0)')
    srd(a, 20, 4, S * D * 2)
    srd(a, 24, 6, S * D * 2)
    srd(a, 28, 8, S * D * 2)
    srd(a, 32, 10, D * 8)
    srd(a, 40, 14, S * S * 2)
    srd(a, 48, 18, WS_END)
    a('s_cmp_ge_u32 s3, 5')
    a('s_cbranch_scc1 K0_nokvld')
    a('v_lshlrev_b32 v60, 2, v2')
    a('v_mov_b32 v61, 0x7ffffff0')
    a('v_cmp_gt_u32 vcc, 288, v2')
    a('s_mul_i32 s68, s2, %d' % (8 * 1152))
    a('v_lshlrev_b32 v62, 4, v2')
    a('v_cndmask_b32 v60, v61, v60, vcc')
    a('v_add_u32 v63, s68, v60')
    a('v_subrev_u32 v64, %d, v63' % (3 * 1152))
    for r in range(3):
        a('v_add_u32 v65, %d, v64' % (r * 1152))
        a('buffer_load_dword v%d, v65, s[24:27], 0 offen' % (12 + r))
    a('v_add_u32 v65, %d, v63' % (4 * 1152))
    for r in range(8):
        a('buffer_load_dword v%d, v%d, s[24:27], 0 offen offset:%d' % (15 + r, 63 if r < 4 else 65, (r % 4) * 1152))
    for r in range(8):
        a('buffer_load_dword v%d, v%d, s[28:31], 0 offen offset:%d' % (24 + r, 63 if r < 4 else 65, (r % 4) * 1152))
    a('buffer_load_dwordx4 v[32:35], v62, s[32:35], 0 offen')
    a.label('K0_nokvld')
    a('v_mov_b32 v61, 0x7ffffff0')
    a('v_cmp_gt_u32 vcc, 8, v0')
    a('v_add_u32 v66, 1024, v3')
    a('buffer_load_dwordx4 v[4:7], v3, s[20:23], s65 offen')
    a('v_cndmask_b32 v66, v61, v66, vcc')
    a('buffer_load_dwordx4 v[8:11], v66, s[20:23], s65 offen')
    a('v_and_b32 v67, 15, v0')
    a('v_lshrrev_b32 v68, 4, v0')
    a('v_lshrrev_b32 v69, 2, v67')
    a('v_lshlrev_b32 v69, 3, v69')
    a('v_and_b32 v70, 3, v67')
    a('v_add_u32 v69, v69, v70')
    a('v_lshlrev_b32 v69, 12, v69')
    a('v_lshl_add_u32 v69, v68, 4, v69')
    a('v_add_u32 v70, %d, v69' % (4 * 4096))
    a('s_and_b32 s69, s2, 3')
    a('s_lshl_b32 s69, s69, 4')
    a('s_lshl_b32 s70, s3, 1')
    a('s_add_u32 s69, s69, s70')
    a('s_lshl_b32 s70, s60, 17')
    a('s_lshl_b32 s71, s69, 6')
    a('s_add_u32 s70, s70, s71')
    a('buffer_load_dwordx4 v[36:39], v69, s[40:43], s70 offen')
    a('buffer_load_dwordx4 v[40:43], v69, s[40:43], s70 offen offset:64')
    a('buffer_load_dwordx4 v[44:47], v70, s[40:43], s70 offen')
    a('buffer_load_dwordx4 v[48:51], v70, s[40:43], s70 offen offset:64')
    a('s_cmp_ge_u32 s66, 1296')
    a('s_cbranch_scc1 K0_wout_setup')
    srd(a, 52, 12, D * 4608 * 2)
    a('s_mul_hi_u32 s72, s66, 0x038E38E4')
    a('s_mul_i32 s73, s72, 72')
    a('s_sub_u32 s73, s66, s73')
    a('s_mov_b32 s74, 9216')
    a('s_lshl_b32 s75, s72, 5')
    a('s_mov_b32 s76, s75')
    a('s_mov_b32 s77, 1024')
    a('s_mov_b32 s78, 512')
    a('s_branch K0_dma')
    a.label('K0_wout_setup')
    srd(a, 52, 16, FH * D * 2)
    a('s_sub_u32 s79, s66, 1296')
    a('s_mul_hi_u32 s72, s79, 0x1C71C71D')
    a('s_mul_i32 s73, s72, 9')
    a('s_sub_u32 s73, s79, s73')
    a('s_mov_b32 s74, 1152')
    a('s_mul_hi_u32 s79, s72, 0x1C71C71D')
    a('s_mul_i32 s80, s79, 9')
    a('s_sub_u32 s80, s72, s80')
    a('s_mul_i32 s75, s79, 288')
    a('s_lshr_b32 s81, s80, 2')
    a('s_mul_i32 s81, s81, 144')
    a('s_and_b32 s82, s80, 3')
    a('s_lshl_b32 s82, s82, 5')
    a('s_add_u32 s81, s81, s82')
    a('s_cmp_eq_u32 s80, 8')
    a('s_cselect_b32 s81, 128, s81')
    a('s_cselect_b32 s82, 128, 0')
    a('s_add_u32 s75, s75, s81')
    a('s_add_u32 s76, s75, s82')
    a('s_mov_b32 s77, 512')
    a('s_mov_b32 s78, 2048')
    a.label('K0_dma')
    a('v_lshrrev_b32 v71, 3, v0')
    a('v_mul_lo_u32 v71, v71, s74')
    a('v_and_b32 v72, 7, v0')
    a('v_lshl_add_u32 v71, v72, 4, v71')
    a('s_lshl_b32 s83, s73, 7')
    a('s_lshl_b32 s84, s3, 12')
    for j in range(4):
        a('s_add_u32 s85, s%d, %d' % (75 if j < 2 else 76, 8 * j))
        a('s_mul_i32 s85, s85, s74')
        a('s_add_u32 s85, s85, s83')
        a('s_add_u32 m0, s84, %d' % (1024 * j))
        a('s_nop 0')
        a('buffer_load_dwordx4 v71, s[52:55], s85 offen lds')
    a('s_cmp_lg_u32 s3, 7')
    a('s_cbranch_scc1 K0_nosent')
    a('s_waitcnt vmcnt(8)')
    for r in range(4):
        a('v_mov_b32 v%d, -1' % (76 + r))
    a('s_mul_i32 s86, s2, 1536')
    a('s_add_u32 s86, s86, 0x%x' % PSTAT)
    a('v_cmp_gt_u32 vcc, 32, v0')
    a('v_add_u32 v80, 1024, v3')
    a('buffer_store_dwordx4 v[76:79], v3, s[48:51], s86 offen')
    a('v_cndmask_b32 v80, v61, v80, vcc')
    a('buffer_store_dwordx4 v[76:79], v80, s[48:51], s86 offen')
    a('s_branch K0_ln')
    a.label('K0_nosent')
    a('s_waitcnt vmcnt(8)')
    a.label('K0_ln')
    stamp(a, 127, 1)
    for i in range(8):
        a('v_lshlrev_b32 v%d, 16, v%d' % (84 + 2 * i, 4 + i))
        a('v_and_b32 v%d, 0xffff0000, v%d' % (85 + 2 * i, 4 + i))
    a('v_add_f32 v100, v84, v85')
    a('v_add_f32 v101, v86, v87')
    for i in range(2, 8):
        a('v_add_f32 v%d, v%d, v%d' % (100 + i % 2, 100 + i % 2, 84 + 2 * i))
        a('v_add_f32 v%d, v%d, v%d' % (100 + i % 2, 100 + i % 2, 85 + 2 * i))
    a('v_add_f32 v100, v100, v101')
    wave_reduce(a, [100], [87])
    a('v_mov_b32 v102, 0x%x' % f2u(1.0 / 576))
    a('s_nop 0')
    a('v_mul_f32 v102, s87, v102')
    a('v_cmp_gt_u32 vcc, 8, v0')
    a('v_mov_b32 v100, 0')
    a('v_mov_b32 v101, 0')
    for i in range(16):
        a('v_sub_f32 v103, v%d, v102' % (84 + i))
        a('v_fmac_f32 v%d, v103, v103' % (100 if i < 8 else 101))
    a('v_cndmask_b32 v101, 0, v101, vcc')
    a('v_add_f32 v100, v100, v101')
    wave_reduce(a, [100], [88])
    a('v_mov_b32 v103, 0x%x' % f2u(1.0 / 576))
    round_bf16(a, 102)
    a('v_mul_f32 v103, s88, v103')
    round_bf16(a, 103)
    a('v_add_f32 v103, 0x%x, v103' % f2u(1e-5))
    round_bf16(a, 103)
    a('v_sqrt_f32 v103, v103')
    a('s_nop 0')
    round_bf16(a, 103)
    a('v_rcp_f32 v103, v103')
    for i in range(8):
        a('v_sub_f32 v%d, v%d, v102' % (84 + 2 * i, 84 + 2 * i))
        a('v_sub_f32 v%d, v%d, v102' % (85 + 2 * i, 85 + 2 * i))
        a('v_cvt_pk_bf16_f32 v%d, v%d, v%d' % (4 + i, 84 + 2 * i, 85 + 2 * i))
    for i in range(8):
        a('v_lshlrev_b32 v%d, 16, v%d' % (84 + 2 * i, 4 + i))
        a('v_and_b32 v%d, 0xffff0000, v%d' % (85 + 2 * i, 4 + i))
        a('v_mul_f32 v%d, v%d, v103' % (84 + 2 * i, 84 + 2 * i))
        a('v_mul_f32 v%d, v%d, v103' % (85 + 2 * i, 85 + 2 * i))
        a('v_cvt_pk_bf16_f32 v%d, v%d, v%d' % (4 + i, 84 + 2 * i, 85 + 2 * i))
    a('s_lshl_b32 s89, s3, 4')
    a('s_add_u32 s89, s89, 32768')
    a('v_lshlrev_b32 v104, 7, v0')
    a('v_add_u32 v104, s89, v104')
    a('ds_write_b128 v104, v[4:7]')
    a('s_mov_b64 exec, 0xff')
    a('ds_write_b128 v104, v[8:11] offset:8192')
    a('s_mov_b64 exec, 1')
    a('s_lshl_b32 s89, s61, 3')
    a('s_add_u32 s89, s89, 0x%x' % XSTAT)
    a('buffer_store_dwordx2 v[102:103], v3, s[48:51], s89 offen')
    a('s_mov_b64 exec, -1')
    a('s_cmp_ge_u32 s3, 5')
    a('s_cbranch_scc1 K0_nokv')
    for c in range(2):
        for t in range(2):
            a('v_lshlrev_b32 v%d, 16, v%d' % (84 + 4 * c + 2 * t, 32 + 2 * c + t))
            a('v_and_b32 v%d, 0xffff0000, v%d' % (85 + 4 * c + 2 * t, 32 + 2 * c + t))
    for c in range(2):
        for r in range(11):
            if c == 0: a('v_lshlrev_b32 v%d, 16, v%d' % (92 + r, 12 + r))
            else:      a('v_and_b32 v%d, 0xffff0000, v%d' % (92 + r, 12 + r))
        for r in range(8):
            a('v_mul_f32 v%d, v%d, v%d' % (104 + r, 92 + r, 84 + 4 * c + 3))
        for j in (2, 1, 0):
            for r in range(8):
                a('v_fmac_f32 v%d, v%d, v%d' % (104 + r, 92 + 3 + r - j, 84 + 4 * c + j))
        for r in range(8):
            if c == 0: a('v_lshlrev_b32 v%d, 16, v%d' % (92 + r, 24 + r))
            else:      a('v_and_b32 v%d, 0xffff0000, v%d' % (92 + r, 24 + r))
            a('v_mul_f32 v%d, v%d, v%d' % (104 + r, 104 + r, 92 + r))
        for e in range(4):
            a('v_cvt_pk_bf16_f32 v%d, v%d, v%d' % (112 + 4 * c + e, 104 + 7 - 2 * e, 104 + 6 - 2 * e))
    a('v_lshlrev_b32 v60, 5, v2')
    a('v_cmp_gt_u32 vcc, 288, v2')
    a('s_mul_i32 s89, s2, 9216')
    a('s_add_u32 s89, s89, 0x%x' % KVB)
    a('v_cndmask_b32 v60, v61, v60, vcc')
    a('buffer_store_dwordx4 v[112:115], v60, s[48:51], s89 offen')
    a('buffer_store_dwordx4 v[116:119], v60, s[48:51], s89 offen offset:16')
    a.label('K0_nokv')
    stamp(a, 127, 2)
    a('s_waitcnt vmcnt(0) lgkmcnt(0)')
    stamp(a, 127, 3)
    a('s_barrier')
    a('s_lshl_b32 s89, s3, 10')
    a('s_add_u32 s89, s89, 32768')
    a('v_add_u32 v104, s89, v3')
    a('ds_read_b128 v[4:7], v104')
    a('ds_read_b128 v[8:11], v3 offset:%d' % (32768 + 8192))
    a('v_lshrrev_b32 v105, 5, v0')
    a('v_lshlrev_b32 v105, 11, v105')
    a('v_bfe_u32 v106, v0, 3, 2')
    a('v_lshl_add_u32 v105, v106, 8, v105')
    a('v_and_b32 v106, 7, v0')
    a('v_lshl_add_u32 v105, v106, 4, v105')
    a('s_mul_i32 s89, s60, %d' % (18 * 2048))
    a('s_lshl_b32 s90, s64, 10')
    a('s_add_u32 s89, s89, s90')
    a('s_lshl_b32 s90, s62, 7')
    a('s_add_u32 s89, s89, s90')
    a('s_lshl_b32 s90, s3, 12')
    a('s_add_u32 s90, s90, s89')
    a('s_add_u32 s89, s89, %d' % (8 * 4096))
    a('s_waitcnt lgkmcnt(0)')
    a('buffer_store_dwordx4 v[4:7], v105, s[48:51], s90 offen')
    a('s_cmp_lg_u32 s3, 0')
    a('s_cbranch_scc1 K0_nox8')
    a('buffer_store_dwordx4 v[8:11], v105, s[48:51], s89 offen')
    a.label('K0_nox8')
    a('s_lshr_b32 s89, s60, 2')
    a('s_lshl_b32 s89, s89, 6')
    a('s_add_u32 s89, s89, s69')
    a('s_lshl_b32 s89, s89, 13')
    a('s_and_b32 s90, s60, 3')
    a('s_lshl_b32 s90, s90, 11')
    a('s_add_u32 s89, s89, s90')
    a('s_add_u32 s89, s89, 0x%x' % WSP_F)
    a('s_add_u32 s90, s89, 8192')
    a('buffer_store_dwordx4 v[36:39], v3, s[48:51], s89 offen')
    a('buffer_store_dwordx4 v[40:43], v3, s[48:51], s90 offen')
    a('buffer_store_dwordx4 v[44:47], v3, s[48:51], s89 offen offset:1024')
    a('buffer_store_dwordx4 v[48:51], v3, s[48:51], s90 offen offset:1024')
    a('v_mul_lo_u32 v71, v68, s77')
    a('v_bfe_u32 v72, v0, 2, 2')
    a('v_lshl_add_u32 v71, v72, 7, v71')
    a('v_and_b32 v72, 3, v0')
    a('v_lshl_add_u32 v71, v72, 3, v71')
    a('v_add_u32 v71, s84, v71')
    a('v_add_u32 v72, s78, v71')
    for nt in range(4):
        a('ds_read_b64_tr_b16 v[%d:%d], v71 offset:%d' % (12 + 4 * nt, 13 + 4 * nt, 32 * nt))
        a('ds_read_b64_tr_b16 v[%d:%d], v72 offset:%d' % (14 + 4 * nt, 15 + 4 * nt, 32 * nt))
    a('s_cmp_ge_u32 s66, 1296')
    a('s_cbranch_scc1 K0_wout_st')
    a('s_waitcnt lgkmcnt(0)')
    for nt in range(4):
        a('s_lshl_b32 s89, s73, 2')
        a('s_add_u32 s89, s89, %d' % nt)
        a('s_cmp_ge_u32 s89, 144')
        a('s_cselect_b32 s90, 144, 0')
        a('s_cselect_b32 s93, 6, 1')
        a('s_cselect_b32 s94, 1, 18')
        a('s_cselect_b32 s95, 0, 108')
        a('s_sub_u32 s89, s89, s90')
        a('s_mul_hi_u32 s91, s89, 0x2AAAAAAB')
        a('s_mul_i32 s92, s91, 6')
        a('s_sub_u32 s92, s89, s92')
        a('s_mul_i32 s91, s91, 216')
        a('s_mul_i32 s92, s92, s94')
        a('s_mul_i32 s93, s93, s72')
        a('s_add_u32 s91, s91, s92')
        a('s_add_u32 s91, s91, s93')
        a('s_add_u32 s91, s91, s95')
        a('s_lshl_b32 s91, s91, 10')
        a('s_add_u32 s91, s91, 0x%x' % WIN_F)
        a('buffer_store_dwordx4 v[%d:%d], v3, s[48:51], s91 offen' % (12 + 4 * nt, 15 + 4 * nt))
    a('s_branch K0_fin')
    a.label('K0_wout_st')
    a('s_lshr_b32 s89, s79, 1')
    a('s_mul_i32 s90, s89, 18')
    a('s_sub_u32 s90, s72, s90')
    a('s_lshr_b32 s91, s90, 1')
    a('s_mul_i32 s91, s91, 9')
    a('s_mul_i32 s89, s89, 81')
    a('s_add_u32 s89, s89, s91')
    a('s_lshl_b32 s89, s89, 10')
    a('s_add_u32 s89, s89, 0x%x' % WOUT_F)
    a('s_and_b32 s90, s90, 1')
    a('s_lshl_b32 s91, s90, 12')
    a('s_lshl_b32 s92, s90, 7')
    a('s_add_u32 s92, s92, 8192')
    a('s_lshl_b32 s93, s73, 3')
    a('v_bfe_u32 v73, v0, 3, 1')
    a('v_add_u32 v73, s93, v73')
    a('v_and_b32 v74, 7, v0')
    a('v_lshlrev_b32 v74, 4, v74')
    a('v_lshl_add_u32 v74, v68, 8, v74')
    a('v_mov_b32 v80, s92')
    a('s_mov_b32 s94, %d' % (4 * 81 * 1024))
    a('s_waitcnt lgkmcnt(0)')
    for nt in range(4):
        a('v_add_u32 v75, %d, v73' % (2 * nt))
        a('v_mul_u32_u24 v76, 57, v75')
        a('v_lshrrev_b32 v76, 9, v76')
        a('v_mul_u32_u24 v77, 9, v76')
        a('v_sub_u32 v77, v75, v77')
        a('v_lshrrev_b32 v78, 1, v77')
        a('v_lshlrev_b32 v78, 10, v78')
        a('v_and_b32 v79, 1, v77')
        a('v_lshl_add_u32 v78, v79, 7, v78')
        a('v_add_u32 v78, s91, v78')
        a('v_cmp_eq_u32 vcc, 8, v77')
        a('v_mul_lo_u32 v76, v76, s94')
        a('s_nop 0')
        a('v_cndmask_b32 v78, v78, v80, vcc')
        a('v_add3_u32 v78, v78, v76, v74')
        a('buffer_store_dwordx4 v[%d:%d], v78, s[48:51], s89 offen' % (12 + 4 * nt, 15 + 4 * nt))
    a.label('K0_fin')
    stamp(a, 127, 4)
    stamp_flush(a, 127, 0, 126, 5)
    a.label('K0_end')
    a('s_endpgm')
    return kernel_desc(name, 128, 128), '; @launch kernel=k0_kernel grid=(256,1,1) block=(512,1,1) lds=%d' % (32768 + 9216)


class VM:
    def __init__(self): self.q = []
    def issue(self, tag, n=1): self.q += [tag] * n
    def need(self, tag):
        last = max(i for i, t in enumerate(self.q) if t == tag)
        return len(self.q) - 1 - last
    def wait(self, a, tag):
        if tag not in self.q: return
        n = self.need(tag)
        assert n <= 63
        a('s_waitcnt vmcnt(%d)' % n)
        self.q = self.q[len(self.q) - n:]

K1C = -2.0 * 0.7978845608028654 * 1.4426950408889634
K2C = K1C * 0.044715

def gelu_ops(xs, tmps, vk2):
    ops = []
    for x, t in zip(xs, tmps): ops.append('v_mul_f32 v%d, v%d, v%d' % (t, x, x))
    for x, t in zip(xs, tmps): ops.append('v_fmaak_f32 v%d, v%d, v%d, 0x%x' % (t, vk2, t, f2u(K1C)))
    for x, t in zip(xs, tmps): ops.append('v_mul_f32 v%d, v%d, v%d' % (t, x, t))
    for x, t in zip(xs, tmps): ops.append('v_exp_f32 v%d, v%d' % (t, t))
    for x, t in zip(xs, tmps): ops.append('v_add_f32 v%d, 1.0, v%d' % (t, t))
    for x, t in zip(xs, tmps): ops.append('v_rcp_f32 v%d, v%d' % (t, t))
    for x, t in zip(xs, tmps): ops.append('v_mul_f32 v%d, v%d, v%d' % (x, x, t))
    return ops

K1_LDS = 153600
def gen_k1(a, opt={}):
    name = 'k1_kernel'
    kernel_begin(a, name)
    a('s_cmp_ge_u32 s2, 256')
    a('s_cbranch_scc1 K1_end')
    a('s_load_dwordx2 s[18:19], s[0:1], 104')
    a('s_load_dwordx4 s[4:7], s[0:1], 32')
    stamp(a, 11, 0)
    if DBG['on']: a('v_mov_b32 v31, v11')
    wave_lane(a, 3)
    a('v_lshlrev_b32 v1, 4, v0')
    a('s_and_b32 s20, s2, 7')
    a('s_lshr_b32 s21, s2, 3')
    a('s_cmp_ge_u32 s21, 24')
    a('s_cbranch_scc1 K1_conv')
    a('s_and_b32 s22, s20, 1')
    a('s_lshl_b32 s22, s22, 2')
    a('s_and_b32 s23, s21, 3')
    a('s_add_u32 s22, s22, s23')
    a('s_lshl_b32 s22, s22, 3')
    a('s_add_u32 s22, s22, s3')
    a('s_lshr_b32 s23, s20, 1')
    a('s_mul_i32 s23, s23, 6')
    a('s_lshr_b32 s24, s21, 2')
    a('s_add_u32 s23, s23, s24')
    a('s_mul_i32 s25, s22, %d' % (36 * 1024))
    a('s_mul_i32 s26, s23, %d' % (216 * 1024))
    a('s_mul_i32 s27, s3, 3072')
    a('s_add_u32 s26, s26, s27')
    a('s_add_u32 s26, s26, 0x%x' % WIN_F)
    a('s_mul_i32 s28, s22, 144')
    a('s_mul_i32 s29, s23, 6')
    a('s_add_u32 s28, s28, s29')
    a('s_lshl_b32 s28, s28, 10')
    a('s_add_u32 s29, s28, 0x%x' % Z2_F)
    a('s_add_u32 s28, s28, 0x%x' % Z1_P)
    a('s_mul_i32 s30, s22, %d' % (24 * 256))
    a('s_add_u32 s30, s30, 0x%x' % PSTAT)
    a('s_lshl_b32 s31, s23, 8')
    a('s_add_u32 s31, s31, s30')
    a('v_mov_b32 v2, v1')
    a('v_mov_b32 v3, 0x%x' % f2u(K2C))
    a('s_waitcnt lgkmcnt(0)')
    srd(a, 48, 18, WS_END)
    vm = VM()
    AB = 112; C2 = 64; BR = 32; NB = 8; C1 = 16
    def A(ks, j): return vr(AB + (ks * 2 + j) * 4, 4)
    def dmaB(st):
        l = ['s_add_u32 m0, s27, %d' % ((24 * st % 144) * 1024),
             's_add_u32 s32, s26, %d' % (24 * st * 1024)]
        for i in range(3):
            l.append(('buffer_load_dwordx4 v1, s[48:51], s32 offen offset:%d lds' % (1024 * i), 'B%d' % st))
        return l
    def ldA(ks):
        l = []
        if ks % 2 == 0:
            l.append('s_add_u32 s33, s25, %d' % (ks * 2048))
        for j in range(2):
            l.append(('buffer_load_dwordx4 %s, v1, s[48:51], s33 offen offset:%d' % (A(ks, j), (ks % 2) * 2048 + j * 1024), 'A%d' % ks))
        return l
    def emit(x):
        if isinstance(x, tuple):
            a(x[0]); vm.issue(x[1])
        else:
            a(x)
    for x in dmaB(0) + ldA(0) + ldA(1) + ldA(2) + dmaB(1): emit(x)
    state = {'seg': 0, 'nrd': 0}
    def rdB(n):
        if n % 24 == 0:
            vm.wait(a, 'B%d' % (n // 24))
            a('s_barrier')
        off = (n % 144) * 1024
        seg = off // 65536
        if seg != state['seg']:
            a('v_add_u32 v2, %d, v1' % (seg * 65536))
            state['seg'] = seg
        a('ds_read_b128 %s, v2 offset:%d' % (vr(BR + (n % NB) * 4, 4), off % 65536))
        state['nrd'] = n + 1
    LOOK = NB - 1
    for n in range(LOOK): rdB(n)
    def useB(n):
        out = state['nrd'] - 1 - n
        a('s_waitcnt lgkmcnt(%d)' % out)
        return vr(BR + (n % NB) * 4, 4)
    for ks in range(18):
        if ks == 1: stamp(a, 11, 1)
        fill = []
        if ks + 3 < 18: fill += ldA(ks + 3)
        if ks % 4 == 1: fill += dmaB(ks // 4 + 2)
        vm.wait(a, 'A%d' % ks)
        for jt in range(6):
            n = ks * 6 + jt
            b = useB(n)
            for j in range(2):
                c = vr(C2 + (jt * 2 + j) * 4, 4)
                a('v_mfma_f32_16x16x32_bf16 %s, %s, %s, %s' % (c, A(ks, j), b, c if ks else '0'))
                k = 0
                while fill and (k == 0 or not isinstance(fill[0], tuple)) and k < 3:
                    x = fill.pop(0); emit(x)
                    if isinstance(x, tuple): break
                    k += 1
            if n + LOOK < 216: rdB(n + LOOK)
        assert not fill
    V = []
    for e in range(8):
        xs = [C2 + jt * 8 + e for jt in range(6)]
        for h in range(2):
            V += gelu_ops(xs[3 * h: 3 * h + 3], [4, 5, 6], 3)
            for i, x in enumerate(xs[3 * h: 3 * h + 3]):
                if h == 0 and i == 0:
                    continue
                if h == 0 and i == 1:
                    V.append('v_add_f32 v7, v%d, v%d' % (xs[0], xs[1]))
                    V.append('v_mul_f32 v8, v%d, v%d' % (xs[0], xs[0]))
                else:
                    V.append('v_add_f32 v7, v7, v%d' % x)
                V.append('v_fmac_f32 v8, v%d, v%d' % (x, x))
        t = 9 + (e & 1)
        V.append('s_nop 1')
        V.append('v_add_f32 v%d, v7, v7 row_ror:8 bank_mask:0x3' % t)
        V.append('s_nop 1')
        V.append('v_add_f32 v%d, v8, v8 row_ror:8 bank_mask:0xc' % t)
        if e & 1:
            u = 12 + (e >> 1)
            V.append('v_add_f32 v%d, v9, v9 row_half_mirror bank_mask:0x5' % u)
            V.append('s_nop 1')
            V.append('v_add_f32 v%d, v10, v10 row_half_mirror bank_mask:0xa' % u)
    V.append('s_nop 1')
    for u in range(12, 16): V.append('v_add_f32 v%d, v%d, v%d quad_perm:[1,0,3,2]' % (u, u, u))
    for u in range(12, 16): V.append('v_add_f32 v%d, v%d, v%d quad_perm:[2,3,0,1]' % (u, u, u))
    V.append('v_lshrrev_b32 v4, 2, v1')
    V.append('s_mov_b64 exec, s[34:35]')
    V.append(('buffer_store_dwordx4 v[12:15], v4, s[48:51], s31 offen sc1', 'ST'))
    V.append('s_mov_b64 exec, -1')
    stamp(a, 11, 2)
    a('s_mov_b32 s34, 0x11111111')
    a('s_mov_b32 s35, 0x11111111')
    rate = opt.get('rate', 4)
    first = True
    pend = []
    for jt in range(6):
        cb_ = C1 + (jt & 1) * 8
        fill = []
        if jt in (1, 2): fill += dmaB(6 + jt)
        for ks in range(18):
            n = 108 + jt * 18 + ks
            b = useB(n)
            for j in range(2):
                c = vr(cb_ + j * 4, 4)
                a('v_mfma_f32_16x16x32_bf16 %s, %s, %s, %s' % (c, b, A(ks, j), c if ks else '0'))
                if jt == 0 and ks < 3:
                    continue
                k = 0
                while V and k < rate:
                    x = V.pop(0)
                    if x == 's_mov_b64 exec, s[34:35]':
                        emit(x); emit(V.pop(0)); emit(V.pop(0))
                        stamp(a, 11, 3)
                    else:
                        emit(x)
                    k += 1
            if ks == 5 and pend:
                for x in pend: emit(x)
                pend = []
            if ks == 8:
                for x in fill: emit(x)
            if n + LOOK < 216: rdB(n + LOOK)
        pend = ['v_cvt_pk_bf16_f32 v%d, v%d, v%d' % (cb_ + i, cb_ + 2 * i, cb_ + 2 * i + 1) for i in range(4)]
        if jt == 4: pend.append('s_add_u32 s28, s28, 4096')
        pend.append(('buffer_store_dwordx4 %s, v1, s[48:51], s28 offen offset:%d' % (vr(cb_, 4), (jt % 4) * 1024), 'Z1'))
    for x in V: emit(x)
    a('s_nop 7')
    for x in pend: emit(x)
    stamp(a, 11, 4)
    a('v_bfe_u32 v4, v0, 2, 2')
    a('v_lshlrev_b32 v4, 8, v4')
    a('v_lshrrev_b32 v5, 4, v0')
    a('v_lshl_add_u32 v4, v5, 6, v4')
    a('v_and_b32 v5, 3, v0')
    a('v_lshl_add_u32 v4, v5, 4, v4')
    a('v_add_u32 v5, 4096, v4')
    a('s_mov_b32 s36, 200000')
    a.label('K1_poll')
    for i in range(6):
        a('buffer_load_dwordx4 %s, v%d, s[48:51], s30 offen offset:%d sc1' % (vr(112 + 4 * i, 4), 4 if i < 4 else 5, (i % 4) * 1024))
    a('s_waitcnt vmcnt(0)')
    a('v_max3_u32 v6, v112, v113, v114')
    for i in range(115, 135, 2):
        a('v_max3_u32 v6, v6, v%d, v%d' % (i, i + 1))
    a('v_max_u32 v6, v6, v135')
    a('v_cmp_eq_u32 vcc, -1, v6')
    a('s_sub_u32 s36, s36, 1')
    a('s_cmp_eq_u32 s36, 0')
    a('s_cbranch_scc1 K1_polldone')
    a('s_cbranch_vccnz K1_poll')
    a.label('K1_polldone')
    stamp(a, 11, 5)
    a('v_mov_b32 v140, 0x%x' % f2u(1.0 / FH))
    for i in range(1, 6):
        for r in range(4):
            a('v_add_f32 v%d, v%d, v%d' % (112 + r, 112 + r, 112 + 4 * i + r))
    for sh in (4, 8):
        for r in range(4):
            a('v_add_f32 v%d, v%d, v%d row_ror:%d' % (112 + r, 112 + r, 112 + r, sh))
    for r in range(4):
        a('v_mul_f32 v%d, v%d, v140 quad_perm:[0,1,0,1]' % (116 + r, 112 + r))
    for r in range(4):
        a('v_mul_f32 v%d, v%d, v140 quad_perm:[2,3,2,3]' % (120 + r, 112 + r))
    for r in range(4):
        a('v_fma_f32 v%d, -v%d, v%d, v%d' % (120 + r, 116 + r, 116 + r, 120 + r))
    for r in range(4):
        a('v_max_f32 v%d, 0, v%d' % (120 + r, 120 + r))
    for r in range(4): round_bf16(a, 120 + r)
    for r in range(4): a('v_add_f32 v%d, 0x%x, v%d' % (120 + r, f2u(1e-5), 120 + r))
    for r in range(4): round_bf16(a, 120 + r)
    for r in range(4): a('v_sqrt_f32 v%d, v%d' % (120 + r, 120 + r))
    for r in range(4): round_bf16(a, 116 + r)
    for r in range(4): round_bf16(a, 120 + r)
    for r in range(4): a('v_rcp_f32 v%d, v%d' % (120 + r, 120 + r))
    a('s_nop 0')
    for r in range(4): a('v_mul_f32 v%d, -v%d, v%d' % (116 + r, 116 + r, 120 + r))
    a('s_nop 1')
    for e in range(8):
        p = e & 1
        a('v_mov_b32 v%d, v%d quad_perm:[%d,%d,%d,%d]' % (124 + e, 120 + (e >> 1), p, p, p, p))
        a('v_mov_b32 v%d, v%d quad_perm:[%d,%d,%d,%d]' % (132 + e, 116 + (e >> 1), p, p, p, p))
    for jt in range(6):
        b = C2 + jt * 8
        for e in range(8):
            a('v_fma_f32 v%d, v%d, v%d, v%d' % (b + e, b + e, 124 + e, 132 + e))
        for i in range(4):
            a('v_cvt_pk_bf16_f32 v%d, v%d, v%d' % (b + i, b + 2 * i, b + 2 * i + 1))
        if jt == 4: a('s_add_u32 s29, s29, 4096')
        a('buffer_store_dwordx4 %s, v1, s[48:51], s29 offen offset:%d' % (vr(b, 4), (jt % 4) * 1024))
    stamp(a, 11, 6)
    stamp_flush(a, 11, 1, 4, 7)
    a('s_endpgm')
    a.label('K1_conv')
    gen_conv(a)
    a.label('K1_end')
    a('s_endpgm')
    return kernel_desc(name, 256, 256), '; @launch kernel=k1_kernel grid=(256,1,1) block=(512,1,1) lds=%d' % K1_LDS

HSLOT = 16640
UBASE = 7 * HSLOT
def gen_conv(a):
    a('s_sub_u32 s21, s21, 24')
    a('s_lshl_b32 s22, s20, 3')
    a('s_add_u32 s22, s22, s21')
    a('s_mul_i32 s22, s22, 9')
    a('s_lshr_b32 s23, s3, 1')
    a('s_and_b32 s24, s3, 1')
    a('s_waitcnt lgkmcnt(0)')
    srd(a, 48, 18, WS_END)
    srd(a, 52, 4, D * S * 2)
    srd(a, 56, 6, D * 2)
    def uvoff(dst, jexpr):
        a('v_add_u32 v4, %s, v0' % jexpr)
        a('v_mul_u32_u24 v5, 7282, v4')
        a('v_lshrrev_b32 v5, 16, v5')
        a('v_mul_u32_u24 v6, 9, v5')
        a('v_sub_u32 v6, v4, v6')
        a('v_mul_u32_u24 v5, 9216, v5')
        a('v_lshl_add_u32 v%d, v6, 4, v5' % dst)
    a('s_lshl_b32 s25, s3, 6')
    uvoff(7, 's25')
    a('s_lshl_b32 s26, s22, 4')
    a('s_add_u32 s26, s26, 0x%x' % KVB)
    a('s_lshl_b32 s27, s3, 10')
    a('s_add_u32 s27, s27, %d' % (UBASE + 144))
    for rep in range(4):
        a('s_add_u32 m0, s27, %d' % (rep * 9216))
        a('s_add_u32 s28, s26, %d' % (rep * 64 * 9216))
        a('buffer_load_dwordx4 v7, s[48:51], s28 offen lds')
    a('s_cmp_ge_u32 s3, 4')
    a('s_cbranch_scc1 KC_nou8')
    uvoff(7, '512')
    a('s_mul_i32 s28, s3, 9216')
    a('s_add_u32 m0, s28, %d' % (UBASE + 144 + 8192))
    a('s_mul_i32 s28, s3, %d' % (64 * 9216))
    a('s_add_u32 s28, s28, s26')
    a('buffer_load_dwordx4 v7, s[48:51], s28 offen lds')
    a.label('KC_nou8')
    def loadH(lab):
        a('s_add_u32 s31, s22, s29')
        a('s_lshl_b32 s31, s31, 12')
        a('s_mul_i32 s32, s30, %d' % HSLOT)
        for sg in range(4):
            a('s_add_u32 m0, s32, %d' % (sg * 4160 + 32))
            a('s_add_u32 s33, s31, %d' % (2 * sg))
            for j in range(4):
                a('buffer_load_dwordx4 v1, s[52:55], s33 offen offset:%d lds' % (1024 * j))
        a('v_and_b32 v4, 3, v0')
        a('v_lshlrev_b32 v5, 1, v4')
        a('buffer_load_ushort v8, v5, s[52:55], s31 offen')
        a('v_bfe_u32 v6, v0, 2, 2')
        a('v_mul_u32_u24 v9, 4158, v6')
        a('v_add3_u32 v9, v9, v5, s32')
        a('v_bfe_u32 v10, v0, 1, 2')
        a('v_mul_u32_u24 v10, 4160, v10')
        a('v_and_b32 v11, 1, v0')
        a('v_lshl_add_u32 v10, v11, 4, v10')
        a('v_add_u32 v10, s32, v10')
        for r in range(4): a('v_mov_b32 v%d, 0' % (12 + r))
        a('s_mov_b64 exec, 0xff')
        a('ds_write_b128 v10, v[12:15]')
        a('s_mov_b64 exec, 0x7310')
        a('s_waitcnt vmcnt(0)')
        a('ds_write_b16 v9, v8 offset:32')
        a('s_mov_b64 exec, -1')
    a('s_cmp_eq_u32 s3, 7')
    a('s_cbranch_scc1 KC_w7')
    a('s_mov_b32 s29, s3')
    a('s_mov_b32 s30, s3')
    loadH('a')
    a('s_branch KC_ld_done')
    a.label('KC_w7')
    for r in range(4): a('v_mov_b32 v%d, 0' % (12 + r))
    a('v_add_u32 v10, %d, v1' % UBASE)
    a('s_mov_b64 exec, 0x1ff')
    a('ds_write_b128 v10, v[12:15]')
    a('s_mov_b64 exec, -1')
    a.label('KC_ld_done')
    a('v_and_b32 v2, 15, v0')
    a('v_lshrrev_b32 v3, 4, v0')
    a('v_add_u32 v4, 1, v2')
    a('v_and_b32 v5, 3, v4')
    a('v_mul_u32_u24 v6, 4158, v5')
    a('v_lshl_add_u32 v6, v4, 1, v6')
    a('v_lshl_add_u32 v16, v3, 4, v6')
    a('s_lshl_b32 s34, s24, 8')
    a('v_add_u32 v16, s34, v16')
    a('v_lshlrev_b32 v17, 1, v2')
    a('v_sub_u32 v17, v17, v3')
    a('s_lshl_b32 s34, s24, 4')
    a('s_sub_u32 s34, 1, s34')
    a('v_add_u32 v17, s34, v17')
    a('v_lshrrev_b32 v4, 1, v3')
    a('v_lshl_add_u32 v4, v2, 1, v4')
    a('v_mul_u32_u24 v18, 144, v4')
    a('v_and_b32 v4, 1, v3')
    a('v_lshlrev_b32 v4, 3, v4')
    a('v_sub_u32 v18, v18, v4')
    a('s_mul_i32 s34, s24, %d' % (4 * 4608))
    a('s_add_u32 s34, s34, %d' % (UBASE + 144 + 8))
    a('v_add_u32 v18, s34, v18')
    a('v_lshlrev_b32 v19, 5, v2')
    a('v_lshl_add_u32 v19, v3, 3, v19')
    a('s_lshl_b32 s34, s24, 11')
    a('v_add_u32 v19, s34, v19')
    a('s_mov_b32 s35, 0')
    a('s_mov_b32 s36, 0')
    a('s_mov_b32 s37, 0')
    a('s_mov_b32 s38, 4')
    a('s_waitcnt vmcnt(0) lgkmcnt(0)')
    a('s_barrier')
    stamp(a, 31, 1)
    a.label('KC_round')
    a('s_cmp_ge_u32 s23, s38')
    a('s_cbranch_scc1 KC_idle')
    a('s_add_u32 s39, s36, s23')
    a('s_add_u32 s40, s37, s23')
    a('s_mul_i32 s40, s40, %d' % HSLOT)
    a('s_add_u32 s41, s22, s39')
    a('s_lshl_b32 s42, s41, 1')
    a('v_mov_b32 v4, 0')
    a('buffer_load_ushort v20, v4, s[56:59], s42 offen')
    a('v_add_u32 v21, s40, v16')
    a('s_lshl_b32 s43, s39, 4')
    a('s_add_u32 s43, s43, %d' % (UBASE + 144))
    AC = 32; FA = [64, 128]; FB = [96, 160]
    def reads(i):
        l = []
        fa, fb = FA[i & 1], FB[i & 1]
        l.append('v_add_u32 v4, %d, v17' % ((-4 * i) & 0xffffffff if i else 0))
        l.append('v_max_i32 v5, -1, v4')
        l.append('v_mul_i32_i24 v4, 144, v4')
        l.append('v_mul_i32_i24 v5, 144, v5')
        l.append('v_add_u32 v22, s43, v4')
        l.append('v_add_u32 v23, s43, v5')
        for x in range(8):
            l.append('ds_read_b64 %s, v21 offset:%d' % (vr(fa + 4 * x, 2), 512 * x + 64 * i))
            l.append('ds_read_b64 %s, v21 offset:%d' % (vr(fa + 4 * x + 2, 2), 512 * x + 64 * i + 8))
            if x == 0: l.append('ds_read_b128 %s, v23' % vr(fb, 4))
            else:      l.append('ds_read_b128 %s, v22 offset:%d' % (vr(fb + 4 * x, 4), 4608 * x))
        return l
    for x in reads(0): a(x)
    for i in range(4):
        a('s_waitcnt lgkmcnt(0)')
        nxt = reads(i + 1) if i < 3 else []
        fa, fb = FA[i & 1], FB[i & 1]
        seen = set()
        for aa in range(8):
            for bb in range(8 - aa):
                c = aa + bb
                cr = vr(AC + 4 * c, 4)
                init = (i == 0 and c not in seen); seen.add(c)
                a('v_mfma_f32_16x16x32_bf16 %s, %s, %s, %s' % (cr, vr(fa + 4 * aa, 4), vr(fb + 4 * bb, 4), '0' if init else cr))
                if nxt: a(nxt.pop(0))
        assert not nxt
    a('s_nop 7')
    a('s_barrier')
    a('s_lshl_b32 s44, s24, 12')
    a('s_add_u32 s44, s44, s40')
    a('v_add_u32 v4, s44, v1')
    a('s_cmp_eq_u32 s24, 0')
    a('s_cbranch_scc1 KC_h0')
    for t in range(4): a('ds_write_b128 v4, %s offset:%d' % (vr(AC + 4 * t, 4), 1024 * t))
    for r in range(16): a('v_mov_b32 v%d, v%d' % (64 + r, AC + 16 + r))
    a('s_branch KC_h1')
    a.label('KC_h0')
    for t in range(4): a('ds_write_b128 v4, %s offset:%d' % (vr(AC + 16 + 4 * t, 4), 1024 * t))
    for r in range(16): a('v_mov_b32 v%d, v%d' % (64 + r, AC + r))
    a.label('KC_h1')
    a('s_xor_b32 s44, s24, 1')
    a('s_lshl_b32 s44, s44, 12')
    a('s_add_u32 s44, s44, s40')
    a('v_add_u32 v4, s44, v1')
    a('s_lshl_b32 s45, s39, 4')
    a('v_add_u32 v5, s45, v18')
    for t in range(4): a('ds_read_b64 %s, v5 offset:%d' % (vr(96 + 2 * t, 2), 4608 * t))
    a('s_waitcnt lgkmcnt(0)')
    a('s_barrier')
    for t in range(4): a('ds_read_b128 %s, v4 offset:%d' % (vr(80 + 4 * t, 4), 1024 * t))
    a('s_lshl_b32 s46, s41, 12')
    a('s_add_u32 s46, s46, 0x%x' % YT)
    a('s_waitcnt vmcnt(0)')
    a('v_lshlrev_b32 v20, 16, v20')
    for t in range(4):
        a('v_and_b32 v6, 0xffff0000, v%d' % (97 + 2 * t))
        a('v_lshlrev_b32 v7, 16, v%d' % (97 + 2 * t))
        a('v_and_b32 v8, 0xffff0000, v%d' % (96 + 2 * t))
        a('v_lshlrev_b32 v9, 16, v%d' % (96 + 2 * t))
        for r in range(4): a('v_fmac_f32 v%d, v%d, v20' % (64 + 4 * t + r, 6 + r))
    a('s_waitcnt lgkmcnt(0)')
    for t in range(4):
        for r in range(4): a('v_add_f32 v%d, v%d, v%d' % (64 + 4 * t + r, 64 + 4 * t + r, 80 + 4 * t + r))
        a('v_cvt_pk_bf16_f32 v%d, v%d, v%d' % (104 + 2 * t, 64 + 4 * t, 65 + 4 * t))
        a('v_cvt_pk_bf16_f32 v%d, v%d, v%d' % (105 + 2 * t, 66 + 4 * t, 67 + 4 * t))
        a('buffer_store_dwordx2 %s, v19, s[48:51], s46 offen offset:%d' % (vr(104 + 2 * t, 2), 512 * t))
    a('s_branch KC_next')
    a.label('KC_idle')
    a('s_cmp_lg_u32 s35, 1')
    a('s_cbranch_scc1 KC_idle2')
    a('s_add_u32 s29, s24, 7')
    a('s_mov_b32 s30, s24')
    loadH('b')
    a('s_waitcnt vmcnt(0) lgkmcnt(0)')
    a.label('KC_idle2')
    a('s_barrier')
    a('s_barrier')
    a.label('KC_next')
    a('s_barrier')
    a('s_add_u32 s35, s35, 1')
    a('s_add_u32 s36, s36, s38')
    a('s_sub_u32 s38, s38, 1')
    a('s_cmp_eq_u32 s35, 1')
    a('s_cselect_b32 s37, 4, 0')
    if DBG['on']:
        a('s_memrealtime s[98:99]')
        a('s_waitcnt lgkmcnt(0)')
        a('s_add_u32 m0, s35, 1')
        a('v_writelane_b32 v31, s98, m0')
    a('s_cmp_lt_u32 s35, 3')
    a('s_cbranch_scc1 KC_round')
    stamp_flush(a, 31, 1, 4, 7)


K2_LDS = 147456
def gen_k2(a, opt={}):
    name = 'k2_kernel'
    kernel_begin(a, name)
    a('s_cmp_ge_u32 s2, 256')
    a('s_cbranch_scc1 K2_end')
    a('s_load_dwordx2 s[18:19], s[0:1], 104')
    a('s_load_dwordx2 s[4:5], s[0:1], 72')
    stamp(a, 15, 0)
    wave_lane(a, 3)
    a('v_lshlrev_b32 v1, 4, v0')
    a('s_and_b32 s20, s2, 7')
    a('s_lshr_b32 s21, s2, 3')
    a('s_and_b32 s22, s20, 1')
    a('s_lshl_b32 s22, s22, 3')
    a('s_and_b32 s23, s21, 7')
    a('s_add_u32 s22, s22, s23')
    a('s_lshr_b32 s23, s20, 1')
    a('s_lshl_b32 s23, s23, 2')
    a('s_lshr_b32 s24, s21, 3')
    a('s_add_u32 s23, s23, s24')
    a('s_lshl_b32 s25, s22, 19')
    a('s_lshl_b32 s26, s3, 17')
    a('s_add_u32 s25, s25, s26')
    a('s_add_u32 s25, s25, 0x%x' % WSP_F)
    a('s_mul_i32 s26, s3, %d' % (16 * 144 * 1024))
    a('s_mul_i32 s27, s23, 9216')
    a('s_add_u32 s26, s26, s27')
    a('s_add_u32 s26, s26, 0x%x' % Z2_F)
    for p in range(4):
        a('s_add_u32 s28, s3, %d' % p)
        a('s_and_b32 s28, s28, 3')
        a('s_lshl_b32 s28, s28, 11')
        a('v_add_u32 v%d, s28, v1' % (4 + p))
    a('v_add_u32 v2, 4096, v1')
    a('v_add_u32 v3, 8192, v1')
    a('s_lshl_b32 s29, s22, 2')
    a('s_add_u32 s29, s29, s3')
    a('s_waitcnt lgkmcnt(0)')
    srd(a, 48, 18, WS_END)
    srd(a, 52, 4, S * 2)
    OWN = 16; WB = 88; ZB = 120
    def acc(tt, ft):
        if tt < 2: return vr(OWN + (tt * 9 + ft) * 4, 4)
        return ar(((tt - 2) * 9 + ft) * 4, 4)
    def ldW(tt): return 'buffer_load_dwordx4 %s, v%d, s[48:51], s25 offen offset:%d' % (vr(WB + 4 * tt, 4), 4 + tt // 2, (tt & 1) * 1024)
    def ldZ(st, ft): return 'buffer_load_dwordx4 %s, v%d, s[48:51], s26 offen offset:%d' % (vr(ZB + 36 * st + 4 * ft, 4), 1 + ft // 4, (ft % 4) * 1024)
    for ft in range(9): a(ldZ(0, ft))
    for tt in range(8): a(ldW(tt))
    a('s_add_u32 s26, s26, %d' % (144 * 1024))
    a('s_add_u32 s25, s25, 8192')
    for ft in range(9): a(ldZ(1, ft))
    a('s_add_u32 s26, s26, %d' % (144 * 1024))
    a('s_mov_b32 s30, 0')
    a('s_mov_b32 s31, 0x%x' % WS_END)
    def step(st, first):
        for tt in range(8):
            if first:
                n = (7 - tt) + 9 + (2 * tt + (1 if tt > 0 else 0))
            else:
                n = 15 + (1 if tt > 0 else 0) if tt < 8 else 0
                after_prev = 2 * (7 - tt)
                cur = 2 * tt + (1 if tt > 0 else 0)
                n = after_prev + cur
            a('s_waitcnt vmcnt(%d)' % n)
            for ft in range(9):
                c = acc(tt, ft)
                a('v_mfma_f32_16x16x32_bf16 %s, %s, %s, %s' % (c, vr(ZB + 36 * st + 4 * ft, 4), vr(WB + 4 * tt, 4), '0' if first else c))
                if tt == 0 and ft == 1: a(ldZ((st + 2) % 3, 0))
                if ft == 4: a(ldZ((st + 2) % 3, tt + 1))
            a(ldW(tt))
        a('s_add_u32 s30, s30, 1')
        a('s_add_u32 s26, s26, %d' % (144 * 1024))
        a('s_add_u32 s25, s25, 8192')
        a('s_cmp_ge_u32 s30, 14')
        a('s_cselect_b32 s26, s31, s26')
        a('s_cmp_ge_u32 s30, 15')
        a('s_cselect_b32 s25, s31, s25')
    step(0, True)
    stamp(a, 15, 1)
    a.label('K2_loop')
    step(1, False); step(2, False); step(0, False)
    a('s_cmp_lt_u32 s30, 16')
    a('s_cbranch_scc1 K2_loop')
    stamp(a, 15, 2)
    a('s_mul_i32 s32, s29, %d' % (144 * 1024))
    a('s_add_u32 s32, s32, s27')
    a('s_add_u32 s32, s32, 0x%x' % Z1_P)
    a('v_bfe_u32 v10, v0, 2, 2')
    a('v_lshlrev_b32 v10, 3, v10')
    a('v_and_b32 v11, 3, v0')
    a('v_add_u32 v10, v10, v11')
    a('v_lshlrev_b32 v10, 1, v10')
    a('s_lshl_b32 s33, s29, 6')
    a('s_waitcnt vmcnt(0)')
    for ft in range(9):
        a('buffer_load_dwordx4 %s, v%d, s[48:51], s32 offen offset:%d' % (vr(88 + 4 * ft, 4), 1 + ft // 4, (ft % 4) * 1024))
    a('buffer_load_ushort v8, v10, s[52:55], s33 offen')
    a('buffer_load_ushort v9, v10, s[52:55], s33 offen offset:8')
    RB = 124
    def wr(p, k):
        a('s_add_u32 s34, s3, %d' % p)
        a('s_and_b32 s34, s34, 3')
        a('s_mul_i32 s34, s34, %d' % (36 * 1024))
        a('v_add_u32 v12, s34, v1')
        for i in range(18):
            a('ds_write_b128 v12, %s offset:%d' % (ar(((p - 1) * 18 + i) * 4, 4), (k * 18 + i) * 1024))
    def rd(k):
        for i in range(18):
            a('ds_read_b128 %s, v13 offset:%d' % (vr(RB + 4 * i, 4), (k * 18 + i) * 1024))
            if i == 11: a('s_waitcnt lgkmcnt(6)')
        a('s_waitcnt lgkmcnt(0)')
        for r in range(72):
            a('v_add_f32 v%d, v%d, v%d' % (OWN + r, OWN + r, RB + r))
    a('s_mul_i32 s35, s3, %d' % (36 * 1024))
    a('v_add_u32 v13, s35, v1')
    wr(1, 0); wr(2, 1)
    a('s_waitcnt lgkmcnt(0)')
    a('s_barrier')
    rd(0)
    a('s_barrier')
    wr(3, 0)
    rd(1)
    a('s_barrier')
    rd(0)
    stamp(a, 15, 3)
    a('s_waitcnt vmcnt(0)')
    a('v_lshlrev_b32 v8, 16, v8')
    a('v_lshlrev_b32 v9, 16, v9')
    a('v_mov_b32 v14, 0x%x' % f2u(K2C))
    for ft in range(9):
        z = [RB + i for i in range(8)]
        for i in range(4):
            a('v_lshlrev_b32 v%d, 16, v%d' % (z[2 * i], 88 + 4 * ft + i))
            a('v_and_b32 v%d, 0xffff0000, v%d' % (z[2 * i + 1], 88 + 4 * ft + i))
        for x in gelu_ops(z, [RB + 8 + i for i in range(8)], 14): a(x)
        for j in range(2):
            for r in range(4):
                c = OWN + (j * 9 + ft) * 4 + r
                a('v_add_f32 v%d, v%d, v%d' % (c, c, 8 + j))
        for j in range(2):
            for r in range(4):
                c = OWN + (j * 9 + ft) * 4 + r
                a('v_mul_f32 v%d, v%d, v%d' % (c, c, z[4 * j + r]))
    stamp(a, 15, 4)
    a('s_lshr_b32 s36, s29, 1')
    a('s_mul_i32 s36, s36, 72')
    a('s_lshr_b32 s37, s23, 1')
    a('s_mul_i32 s37, s37, 9')
    a('s_add_u32 s36, s36, s37')
    a('s_lshl_b32 s36, s36, 12')
    a('s_and_b32 s37, s29, 1')
    a('s_lshl_b32 s37, s37, 11')
    a('s_add_u32 s36, s36, s37')
    a('s_add_u32 s36, s36, 0x%x' % H_F)
    a('s_and_b32 s37, s23, 1')
    a('s_lshl_b32 s38, s37, 10')
    a('s_add_u32 s38, s38, s36')
    a('s_add_u32 s38, s38, %d' % (8 * 4096))
    a('s_lshl_b32 s37, s37, 14')
    a('s_add_u32 s36, s36, s37')
    n = 0
    for i in range(4):
        for j in range(2):
            d = 160 + 4 * n; n += 1
            c = OWN + (j * 9 + 2 * i) * 4
            for r in range(4): a('v_cvt_pk_bf16_f32 v%d, v%d, v%d' % (d + r, c + 2 * r, c + 2 * r + 1))
            a('buffer_store_dwordx4 %s, v1, s[48:51], s36 offen offset:%d' % (vr(d, 4), j * 1024))
        a('s_add_u32 s36, s36, 4096')
    d = 160 + 4 * n
    for j in range(2):
        c = OWN + (j * 9 + 8) * 4
        for r in range(2): a('v_cvt_pk_bf16_f32 v%d, v%d, v%d' % (d + 2 * j + r, c + 2 * r, c + 2 * r + 1))
    a('buffer_store_dwordx4 %s, v1, s[48:51], s38 offen' % vr(d, 4))
    stamp(a, 15, 5)
    stamp_flush(a, 15, 2, 14, 6)
    a.label('K2_end')
    a('s_endpgm')
    return kernel_desc(name, 512, 256), '; @launch kernel=k2_kernel grid=(256,1,1) block=(256,1,1) lds=%d' % K2_LDS

K3_LDS = 81920 + 9216 + 1024
def gen_k3(a, opt={}):
    name = 'k3_kernel'
    kernel_begin(a, name)
    a('s_cmp_ge_u32 s2, 256')
    a('s_cbranch_scc1 K3_end')
    a('s_load_dwordx2 s[18:19], s[0:1], 104')
    a('s_load_dwordx2 s[4:5], s[0:1], 0')
    a('s_load_dwordx2 s[6:7], s[0:1], 88')
    stamp(a, 15, 0)
    wave_lane(a, 3)
    a('v_lshlrev_b32 v1, 4, v0')
    a('s_and_b32 s20, s2, 7')
    a('s_lshr_b32 s21, s2, 3')
    a('s_lshr_b32 s22, s20, 1')
    a('s_lshl_b32 s22, s22, 3')
    a('s_and_b32 s23, s21, 7')
    a('s_add_u32 s22, s22, s23')
    a('s_and_b32 s23, s20, 1')
    a('s_lshl_b32 s23, s23, 2')
    a('s_lshr_b32 s24, s21, 3')
    a('s_add_u32 s23, s23, s24')
    a('s_mul_i32 s25, s22, 72')
    a('s_mul_i32 s26, s3, 18')
    a('s_add_u32 s25, s25, s26')
    a('s_lshl_b32 s25, s25, 12')
    a('s_add_u32 s25, s25, 0x%x' % H_F)
    a('s_lshl_b32 s26, s23, 2')
    a('s_add_u32 s26, s26, s3')
    a('s_mul_i32 s26, s26, %d' % (81 * 1024))
    a('s_add_u32 s26, s26, 0x%x' % WOUT_F)
    a('v_add_u32 v2, 4096, v1')
    a('v_add_u32 v3, 8192, v1')
    a('s_waitcnt lgkmcnt(0)')
    srd(a, 48, 18, WS_END)
    srd(a, 52, 4, S * D * 2)
    srd(a, 56, 6, S * D * 2)
    vm = VM()
    SB = 40
    def loads(pr):
        b = SB + (pr % 3) * 68
        l = []
        order = [('w', 0), ('w', 1), ('w', 2), ('w', 3), ('w', 8), ('h', 0), ('h', 1), ('h', 2), ('h', 3),
                 ('w', 4), ('w', 5), ('w', 6), ('w', 7), ('h', 4), ('h', 5), ('h', 6), ('h', 7)]
        for n, (k, i) in enumerate(order):
            tag = 'P%d_%d' % (pr, 0 if n < 9 else 1)
            if k == 'w': l.append(('buffer_load_dwordx4 %s, v%d, s[48:51], s26 offen offset:%d' % (vr(b + 4 * i, 4), 1 + i // 4, (i % 4) * 1024), tag))
            else:        l.append(('buffer_load_dwordx4 %s, v%d, s[48:51], s25 offen offset:%d' % (vr(b + 36 + 4 * i, 4), 1 + i // 4, (i % 4) * 1024), tag))
        l.append('s_add_u32 s25, s25, 8192')
        l.append('s_add_u32 s26, s26, 9216')
        return l
    def emit(x):
        if isinstance(x, tuple):
            a(x[0]); vm.issue(x[1])
        else: a(x)
    for x in loads(0): emit(x)
    a('v_bfe_u32 v4, v0, 2, 2')
    a('v_lshlrev_b32 v4, 3, v4')
    a('v_and_b32 v5, 3, v0')
    a('v_add_u32 v4, v4, v5')
    a('s_lshl_b32 s27, s22, 6')
    a('s_lshr_b32 s28, s3, 1')
    a('s_lshl_b32 s28, s28, 5')
    a('s_add_u32 s27, s27, s28')
    a('s_and_b32 s29, s3, 1')
    a('s_lshl_b32 s29, s29, 2')
    a('s_add_u32 s27, s27, s29')
    a('v_add_u32 v4, s27, v4')
    a('v_lshlrev_b32 v6, 3, v4')
    a('v_mul_u32_u24 v4, 1152, v4')
    a('v_lshrrev_b32 v5, 4, v0')
    a('v_lshl_add_u32 v4, v5, 3, v4')
    a('s_mul_i32 s30, s23, 144')
    a('s_mov_b32 s31, 0x%x' % XSTAT)
    for x in loads(1): emit(x)
    a('v_mov_b32 v7, 0x7ffffff0')
    a('v_cmp_gt_u32 vcc, 32, v0')
    for dt in range(4):
        emit(('buffer_load_dwordx2 %s, v4, s[52:55], s30 offen offset:%d' % (vr(20 + 2 * dt, 2), 32 * dt), 'E'))
    a('v_cndmask_b32 v7, v7, v4, vcc')
    emit(('buffer_load_dwordx2 v[28:29], v7, s[52:55], s30 offen offset:128', 'E'))
    emit(('buffer_load_dwordx2 v[30:31], v6, s[48:51], s31 offen', 'E'))
    a('v_lshrrev_b32 v8, 3, v0')
    a('v_lshlrev_b32 v8, 12, v8')
    a('v_and_b32 v9, 7, v0')
    a('v_lshl_add_u32 v8, v9, 4, v8')
    a('s_mul_i32 s32, s23, %d' % (72 * 4096))
    a('s_lshl_b32 s33, s22, 7')
    a('s_add_u32 s32, s32, s33')
    a('s_add_u32 s32, s32, 0x%x' % YT)
    a('s_lshl_b32 s33, s3, 15')
    a('s_add_u32 s33, s33, s32')
    a('s_lshl_b32 s34, s3, 10')
    a('s_add_u32 m0, s34, 81920')
    a('s_add_u32 s35, s33, %d' % (4 * 32768))
    emit(('buffer_load_dwordx4 v8, s[48:51], s33 offen lds', 'E'))
    a('s_add_u32 m0, s34, %d' % (81920 + 4096))
    a('s_add_u32 s36, s32, %d' % (8 * 32768))
    emit(('buffer_load_dwordx4 v8, s[48:51], s35 offen lds', 'E'))
    a('s_mov_b32 m0, %d' % (81920 + 8192))
    a('s_nop 0')
    emit(('buffer_load_dwordx4 v8, s[48:51], s36 offen lds', 'E'))
    def acc(dt, tt): return ar((dt * 4 + tt) * 4, 4)
    for pr in range(9):
        b = SB + (pr % 3) * 68
        if pr == 1: stamp(a, 15, 1)
        fill = loads(pr + 2) if pr + 2 < 9 else []
        for par in range(2):
            vm.wait(a, 'P%d_%d' % (pr, par))
            hb = b + 36 + 16 * par
            if 2 * pr + par in (8, 17):
                for gg in range(2):
                    a('v_swap_b32 v%d, v%d' % (hb + 8 * gg + 2, hb + 8 * gg + 4))
                    a('v_swap_b32 v%d, v%d' % (hb + 8 * gg + 3, hb + 8 * gg + 5))
                a('s_nop 1')
            cnt = 0
            for dt in range(5):
                for tt in range(4):
                    wf = vr(b + 4 * (4 * par + dt), 4) if dt < 4 else vr(b + 32, 4)
                    c = acc(dt if dt < 4 else 4 + par, tt)
                    init = (pr == 0 and (par == 0 or dt == 4))
                    a('v_mfma_f32_16x16x32_bf16 %s, %s, %s, %s' % (c, wf, vr(hb + 4 * tt, 4), '0' if init else c))
                    cnt += 1
                    if cnt % 2 == 0 and fill: emit(fill.pop(0))
        for x in fill: emit(x)
    stamp(a, 15, 2)
    a('s_nop 7')
    a('v_cmp_gt_u32 vcc, 32, v0')
    a('s_mul_i32 s37, s3, 5120')
    a('v_add_u32 v10, s37, v1')
    a('v_add_u32 v11, 40960, v10')
    for tt in range(4):
        for r in range(4):
            a('v_accvgpr_read_b32 v%d, a%d' % (40 + 8 * tt + r, (16 + tt) * 4 + r))
            a('v_accvgpr_read_b32 v%d, a%d' % (44 + 8 * tt + r, (20 + tt) * 4 + r))
        for r in range(4):
            a('v_cndmask_b32 v%d, v%d, v%d, vcc' % (40 + 8 * tt + r, 44 + 8 * tt + r, 40 + 8 * tt + r))
        for dt in range(4):
            a('ds_write_b128 v%d, %s offset:%d' % (10 + tt // 2, acc(dt, tt), (tt & 1) * 20480 + dt * 1024))
        a('ds_write_b128 v%d, %s offset:%d' % (10 + tt // 2, vr(40 + 8 * tt, 4), (tt & 1) * 20480 + 4096))
    a('s_mul_i32 s37, s3, 20480')
    a('v_add_u32 v10, s37, v1')
    a('v_xor_b32 v11, 512, v10')
    a('v_lshrrev_b32 v12, 2, v0')
    a('v_lshlrev_b32 v12, 7, v12')
    a('v_and_b32 v13, 3, v0')
    a('v_lshl_add_u32 v12, v13, 4, v12')
    a('s_add_u32 s28, s28, s29')
    a('s_lshl_b32 s28, s28, 1')
    a('s_add_u32 s28, s28, 81920')
    a('v_add_u32 v12, s28, v12')
    a('s_waitcnt vmcnt(0) lgkmcnt(0)')
    a('s_barrier')
    for w in range(4):
        for dt in range(5):
            a('ds_read_b128 %s, v10 offset:%d' % (vr(80 + (w * 6 + dt) * 4, 4), w * 5120 + dt * 1024))
        a('ds_read_b128 %s, v11 offset:%d' % (vr(80 + (w * 6 + 5) * 4, 4), w * 5120 + 4096))
        if w % 2 == 1: a('s_waitcnt lgkmcnt(%d)' % (6 if w == 1 else 8))
    for dt in range(5):
        a('ds_read_b64_tr_b16 %s, v12 offset:%d' % (vr(180 + 2 * dt, 2), dt * 2048))
    a('s_waitcnt lgkmcnt(0)')
    stamp(a, 15, 3)
    for w in range(1, 4):
        for r in range(24):
            a('v_add_f32 v%d, v%d, v%d' % (80 + r, 80 + r, 80 + w * 24 + r))
    for r in range(4): a('v_add_f32 v%d, v%d, v%d' % (96 + r, 96 + r, 100 + r))
    for dt in range(5):
        X = [110, 111, 112, 113]; Y = [114, 115, 116, 117]; T = [118, 119, 120, 121]
        for i in range(2):
            a('v_lshlrev_b32 v%d, 16, v%d' % (X[2 * i], 20 + 2 * dt + i))
            a('v_and_b32 v%d, 0xffff0000, v%d' % (X[2 * i + 1], 20 + 2 * dt + i))
            a('v_lshlrev_b32 v%d, 16, v%d' % (Y[2 * i], 180 + 2 * dt + i))
            a('v_and_b32 v%d, 0xffff0000, v%d' % (Y[2 * i + 1], 180 + 2 * dt + i))
        for r in range(4): a('v_sub_f32 v%d, v%d, v30' % (T[r], X[r]))
        for r in range(4): a('v_mul_f32 v%d, v%d, v31' % (T[r], T[r]))
        for r in range(4): a('v_add_f32 v%d, v%d, v%d' % (80 + 4 * dt + r, 80 + 4 * dt + r, X[r]))
        for r in range(4): a('v_fmac_f32 v%d, v%d, v%d' % (80 + 4 * dt + r, T[r], Y[r]))
        a('v_cvt_pk_bf16_f32 v%d, v%d, v%d' % (130 + 2 * dt, 80 + 4 * dt, 81 + 4 * dt))
        a('v_cvt_pk_bf16_f32 v%d, v%d, v%d' % (131 + 2 * dt, 82 + 4 * dt, 83 + 4 * dt))
        a('buffer_store_dwordx2 %s, v%d, s[56:59], s30 offen offset:%d' % (vr(130 + 2 * dt, 2), 4 if dt < 4 else 7, 32 * dt))
    stamp(a, 15, 4)
    stamp_flush(a, 15, 3, 14, 5)
    a.label('K3_end')
    a('s_endpgm')
    return kernel_desc(name, 352, 256), '; @launch kernel=k3_kernel grid=(256,1,1) block=(256,1,1) lds=%d' % K3_LDS

def gen_empty(n):
    def f(a):
        name = 'k%d_kernel' % n
        kernel_begin(a, name)
        a('s_endpgm')
        return kernel_desc(name, 64, 64), '; @launch kernel=%s grid=(256,1,1) block=(256,1,1) lds=0' % name
    return f
KERNELS = {'k0': gen_k0, 'k1': gen_k1, 'k2': gen_k2, 'k3': gen_k3, 'e1': gen_empty(7), 'e2': gen_empty(8), 'e3': gen_empty(9)}

def build(names):
    a = Asm()
    descs = []; hdr = []
    for n in names:
        d, h = KERNELS[n](a)
        descs.append(d); hdr.append(h)
    if SC1['on']:
        a.lines = [l + ' ' + SC1['on'] if ('buffer_store_dwordx4' in l and 'sc1' not in l) else l for l in a.lines]
    txt = build_file(hdr, a.text(), descs)
    errs = hazard.check(a.text())
    for e in errs: print('HAZARD', e, file=sys.stderr)
    return txt

if __name__ == '__main__':
    out = sys.argv[1]
    names = sys.argv[2].split(',')
    if len(sys.argv) > 3 and 'dbg' in sys.argv[3]: DBG['on'] = True
    if len(sys.argv) > 3 and 'sc1' in sys.argv[3]: SC1['on'] = 'sc1'
    if len(sys.argv) > 3 and 'sc01' in sys.argv[3]: SC1['on'] = 'sc0 sc1'
    if len(sys.argv) > 3 and 'nt' in sys.argv[3]: SC1['on'] = 'nt'
    open(out, 'w').write(build(names))
```

```python
import sys
from asmlib import *
import hazard

S = 2048; D = 576; FH = 2304
XN_F   = 0x0000000
XSTAT  = 0x0240000
KVB    = 0x0280000
YT     = 0x0500000
PSTAT  = 0x0780000
YFLAG  = 0x07F0000
ZFLAG  = 0x07F1000
WIN_F  = 0x0800000
WOUT_F = 0x0E00000
WSP_F  = 0x1100000
Z2_F   = 0x1900000
Z1_P   = 0x2200000
H_F    = 0x2B00000
WS_END = 0x3500000
import os
WS_BASE = int(os.environ.get('WSB', '0')) << 20
STAMP  = 0x3400000
DBG = {'on': False}
OPT = {}
SC1 = {'on': ''}
def stamp(a, v, i):
    if not DBG['on']: return
    a('s_memrealtime s[98:99]')
    a('s_memtime s[100:101]')
    a('s_waitcnt lgkmcnt(0)')
    a('v_writelane_b32 v%d, s98, %d' % (v, i))
    a('v_writelane_b32 v%d, s100, %d' % (v, 8 + i))
def stamp_flush(a, v, k, vtmp, last):
    if not DBG['on']: return
    a('s_waitcnt vmcnt(0)')
    stamp(a, v, last)
    a('s_lshl_b32 s96, s2, 3')
    a('s_add_u32 s96, s96, s3')
    a('s_lshl_b32 s96, s96, 6')
    a('s_add_u32 s96, s96, 0x%x' % (STAMP + k * 256 * 8 * 64))
    a('v_lshlrev_b32 v%d, 2, v0' % vtmp)
    a('s_mov_b64 exec, 0xffff')
    a('buffer_store_dword v%d, v%d, s[48:51], s96 offen' % (v, vtmp))

def f2u(x):
    import struct
    return struct.unpack('<I', struct.pack('<f', x))[0]

def wave_lane(a, sw, keep_tid=None):
    if keep_tid is not None:
        a('v_mov_b32 v%d, v0' % keep_tid)
    a('v_lshrrev_b32 v1, 6, v0')
    a('v_and_b32 v0, 63, v0')
    a('v_readfirstlane_b32 s%d, v1' % sw)

def wave_reduce(a, regs_, sdst):
    assert len(regs_) >= 1
    pad = max(0, 3 - len(regs_))
    def nop():
        if pad == 2: a('s_nop 1')
        elif pad == 1: a('s_nop 0')
    a('s_nop 1')
    for sh in (8, 4, 2, 1):
        for r in regs_:
            a('v_add_f32 v%d, v%d, v%d row_ror:%d' % (r, r, r, sh))
        nop()
    for r in regs_:
        a('v_add_f32 v%d, v%d, v%d row_bcast:15 row_mask:0xa' % (r, r, r))
    nop()
    for r in regs_:
        a('v_add_f32 v%d, v%d, v%d row_bcast:31 row_mask:0xc' % (r, r, r))
    a('s_nop 0')
    for r, s in zip(regs_, sdst):
        a('v_readlane_b32 s%d, v%d, 63' % (s, r))

def round_bf16(a, r):
    a('v_cvt_pk_bf16_f32 v%d, v%d, v%d' % (r, r, r))
    a('v_and_b32 v%d, 0xffff0000, v%d' % (r, r))

def tr_block_dma(a, srdn, s_r0, s_r1, pitch, s_col, s_lds, vtmp):
    for j in range(4):
        a('s_add_u32 s85, s%d, %d' % (s_r0 if j < 2 else s_r1, 8 * j))
        a('s_mul_i32 s85, s85, %d' % pitch)
        a('s_add_u32 m0, s%d, %d' % (s_lds, 1024 * j))
        a('s_add_u32 s85, s85, s%d' % s_col)
        a('buffer_load_dwordx4 v%d, s[%d:%d], s85 offen lds' % (vtmp, srdn, srdn + 3))

def kv_addr(vp, t, schunk, lim=None):
    l = ['s_mul_i32 s68, %s, %d' % (schunk, 8 * 1152), 'v_lshlrev_b32 v%d, 2, v%d' % (t, vp)]
    if lim:
        l += ['v_cmp_gt_u32 vcc, %d, v%d' % (lim, vp), 'v_mov_b32 v%d, 0x7ffffff0' % (t + 1), 'v_lshlrev_b32 v%d, 4, v%d' % (t + 5, vp),
              'v_cndmask_b32 v%d, v%d, v%d, vcc' % (t, t + 1, t)]
    else:
        l += ['v_lshlrev_b32 v%d, 4, v%d' % (t + 5, vp)]
    l += ['v_add_u32 v%d, s68, v%d' % (t, t), 'v_add_u32 v%d, %d, v%d' % (t + 1, 4 * 1152, t)]
    for r in range(3): l.append('v_subrev_u32 v%d, %d, v%d' % (t + 2 + r, (3 - r) * 1152, t))
    return l
def kv_loads(t, d, tag='KV'):
    l = []
    for r in range(3): l.append(('buffer_load_dword v%d, v%d, s[24:27], 0 offen' % (d + r, t + 2 + r), tag))
    for r in range(8): l.append(('buffer_load_dword v%d, v%d, s[24:27], 0 offen offset:%d' % (d + 3 + r, t if r < 4 else t + 1, (r % 4) * 1152), tag))
    for r in range(8): l.append(('buffer_load_dword v%d, v%d, s[28:31], 0 offen offset:%d' % (d + 12 + r, t if r < 4 else t + 1, (r % 4) * 1152), tag))
    l.append(('buffer_load_dwordx4 v[%d:%d], v%d, s[32:35], 0 offen' % (d + 20, d + 23, t + 5), tag))
    return l
def kv_compute(d, w, pk=False):
    l = []
    K = w + 8; O = w + 20
    for c in range(2):
        for t in range(2):
            l.append('v_lshlrev_b32 v%d, 16, v%d' % (w + 4 + 2 * t, d + 20 + 2 * c + t))
            l.append('v_and_b32 v%d, 0xffff0000, v%d' % (w + 5 + 2 * t, d + 20 + 2 * c + t))
        un = (lambda dst, src: 'v_lshlrev_b32 v%d, 16, v%d' % (dst, src)) if c == 0 else (lambda dst, src: 'v_and_b32 v%d, 0xffff0000, v%d' % (dst, src))
        for r in range(11): l.append(un(K + r, d + r))
        for r in range(8): l.append('v_mul_f32 v%d, v%d, v%d' % (O + r, K + r, w + 4 + 3))
        for j in (2, 1, 0):
            for r in range(8): l.append('v_fmac_f32 v%d, v%d, v%d' % (O + r, K + 3 + r - j, w + 4 + j))
        for r in range(8): l.append(un(K + r, d + 12 + r))
        if pk:
            for r in range(4): l.append('v_pk_mul_f32 v[%d:%d], v[%d:%d], v[%d:%d]' % (O + 2 * r, O + 1 + 2 * r, O + 2 * r, O + 1 + 2 * r, K + 2 * r, K + 1 + 2 * r))
        else:
            for r in range(8): l.append('v_mul_f32 v%d, v%d, v%d' % (O + r, O + r, K + r))
        for e in range(4): l.append('v_cvt_pk_bf16_f32 v%d, v%d, v%d' % (w + 28 + 4 * c + e, O + 7 - 2 * e, O + 6 - 2 * e))
    return l
def kv_store(vp, t, w, schunk, lim=None, tag='KS'):
    l = ['v_lshrrev_b32 v%d, 2, v%d' % (t, vp), 'v_lshlrev_b32 v%d, 14, v%d' % (t, t), 'v_and_b32 v%d, 3, v%d' % (t + 1, vp),
         'v_lshl_add_u32 v%d, v%d, 4, v%d' % (t, t + 1, t), 's_lshl_b32 s68, %s, 6' % schunk, 's_add_u32 s68, s68, 0x%x' % KVB,
         's_add_u32 s69, s68, %d' % (72 * 16384)]
    if lim:
        l += ['v_cmp_gt_u32 vcc, %d, v%d' % (lim, vp), 'v_mov_b32 v%d, 0x7ffffff0' % (t + 1), 's_nop 0', 'v_cndmask_b32 v%d, v%d, v%d, vcc' % (t, t + 1, t)]
    l.append(('buffer_store_dwordx4 v[%d:%d], v%d, s[48:51], s68 offen sc1' % (w + 28, w + 31, t), tag))
    l.append(('buffer_store_dwordx4 v[%d:%d], v%d, s[48:51], s69 offen sc1' % (w + 32, w + 35, t), tag))
    return l

def gen_k0(a, opt={}):
    name = 'k0_kernel'
    kernel_begin(a, name)
    a('s_cmp_ge_u32 s2, 256')
    a('s_cbranch_scc1 K0_end')
    a('s_load_dwordx4 s[4:7], s[0:1], 0')
    a('s_load_dwordx8 s[8:15], s[0:1], 16')
    a('s_load_dwordx2 s[16:17], s[0:1], 56')
    a('s_load_dwordx2 s[18:19], s[0:1], 104')
    a('s_load_dwordx4 s[56:59], s[0:1], 64')
    stamp(a, 127, 0)
    wave_lane(a, 3)
    a('v_lshlrev_b32 v3, 4, v0')
    a('s_lshr_b32 s60, s2, 2')
    a('s_lshl_b32 s61, s60, 5')
    a('s_and_b32 s62, s2, 1')
    a('s_lshl_b32 s63, s62, 4')
    a('s_add_u32 s61, s61, s63')
    a('s_lshr_b32 s63, s3, 2')
    a('s_lshl_b32 s63, s63, 3')
    a('s_add_u32 s61, s61, s63')
    a('s_bfe_u32 s64, s2, 0x10001')
    a('s_lshl_b32 s63, s64, 2')
    a('s_add_u32 s61, s61, s63')
    a('s_and_b32 s63, s3, 3')
    a('s_add_u32 s61, s61, s63')
    a('s_mul_i32 s65, s61, 1152')
    a('v_mov_b32 v61, 0x7ffffff0')
    a('v_cmp_gt_u32 vcc, 8, v0')
    a('v_add_u32 v66, 1024, v3')
    a('v_add_u32 v2, 256, v0')
    a('v_cndmask_b32 v66, v61, v66, vcc')
    a('v_lshrrev_b32 v71, 3, v0')
    a('v_mul_u32_u24 v71, 9216, v71')
    a('v_and_b32 v72, 7, v0')
    a('v_lshl_add_u32 v71, v72, 4, v71')
    a('s_mov_b32 s22, %d' % (S * D * 2))
    a('s_mov_b32 s23, 0x00020000')
    a('s_waitcnt lgkmcnt(0)')
    a('s_mov_b32 s20, s4')
    a('s_mov_b32 s21, s5')
    a('buffer_load_dwordx4 v[4:7], v3, s[20:23], s65 offen')
    a('buffer_load_dwordx4 v[8:11], v66, s[20:23], s65 offen')
    srd(a, 48, 18, WS_END, off=WS_BASE)
    a('s_barrier')
    a('s_cmp_ge_u32 s3, 2')
    a('s_cbranch_scc1 K0_blkld')
    a('s_cmp_eq_u32 s3, 1')
    a('s_cbranch_scc1 K0_w1')
    srd(a, 24, 6, S * D * 2)
    srd(a, 28, 8, S * D * 2)
    srd(a, 32, 10, D * 8)
    for x in kv_addr(2, 60, 's2', 288) + kv_loads(60, 12): a(x[0] if isinstance(x, tuple) else x)
    a('s_waitcnt vmcnt(20)')
    a('s_branch K0_ln')
    a.label('K0_w1')
    a('s_waitcnt vmcnt(0)')
    if opt.get('k0t', 0):
        a('s_cmp_lg_u32 s3, 1')
        a('s_cbranch_scc1 K0_ln')
        srd(a, 36, 56, S * S * 2)
        a('v_lshlrev_b32 v73, 7, v0')
        a('s_lshl_b32 s91, s2, 15')
        for i in range(4):
            a('buffer_load_dword v%d, v73, s[36:39], s91 offen' % (40 + i))
            a('s_add_u32 s91, s91, 8192')
    a('s_branch K0_ln')
    a.label('K0_blkld')
    srd(a, 52, 16, D * 4608 * 2)
    a('s_sub_u32 s66, s3, 2')
    a('s_lshl_b32 s84, s66, 12')
    a('s_lshl_b32 s66, s66, 8')
    a('s_add_u32 s66, s66, s2')
    a('s_cmp_ge_u32 s66, 1296')
    a('s_cbranch_scc1 K0_w1')
    a('s_mul_hi_u32 s72, s66, 0x038E38E4')
    a('s_mul_i32 s73, s72, 72')
    a('s_sub_u32 s73, s66, s73')
    a('s_lshl_b32 s76, s72, 5')
    a('s_lshl_b32 s77, s73, 7')
    tr_block_dma(a, 52, 76, 76, 9216, 77, 84, 71)
    a('s_waitcnt vmcnt(4)')
    a.label('K0_ln')
    stamp(a, 127, 1)
    for i in range(8):
        a('v_lshlrev_b32 v%d, 16, v%d' % (84 + 2 * i, 4 + i))
        a('v_and_b32 v%d, 0xffff0000, v%d' % (85 + 2 * i, 4 + i))
    a('v_pk_add_f32 v[100:101], v[84:85], v[86:87]')
    a('v_pk_add_f32 v[102:103], v[88:89], v[90:91]')
    a('v_pk_add_f32 v[104:105], v[92:93], v[94:95]')
    a('v_pk_add_f32 v[106:107], v[96:97], v[98:99]')
    a('v_pk_add_f32 v[100:101], v[100:101], v[102:103]')
    a('v_pk_add_f32 v[104:105], v[104:105], v[106:107]')
    a('v_pk_add_f32 v[100:101], v[100:101], v[104:105]')
    a('v_add_f32 v100, v100, v101')
    wave_reduce(a, [100], [87])
    a('v_mov_b32 v102, 0x%x' % f2u(1.0 / 576))
    a('v_cmp_gt_u32 vcc, 8, v0')
    a('v_mul_f32 v102, s87, v102')
    a('v_mov_b32 v103, v102')
    for i in range(8):
        a('v_pk_add_f32 v[%d:%d], v[%d:%d], v[102:103] neg_lo:[0,1] neg_hi:[0,1]' % (108 + 2 * i, 109 + 2 * i, 84 + 2 * i, 85 + 2 * i))
    a('v_pk_mul_f32 v[100:101], v[108:109], v[108:109]')
    a('v_pk_mul_f32 v[104:105], v[116:117], v[116:117]')
    for i in range(1, 4):
        a('v_pk_fma_f32 v[100:101], v[%d:%d], v[%d:%d], v[100:101]' % (108 + 2 * i, 109 + 2 * i, 108 + 2 * i, 109 + 2 * i))
        a('v_pk_fma_f32 v[104:105], v[%d:%d], v[%d:%d], v[104:105]' % (116 + 2 * i, 117 + 2 * i, 116 + 2 * i, 117 + 2 * i))
    a('v_add_f32 v100, v100, v101')
    a('v_add_f32 v104, v104, v105')
    a('v_cndmask_b32 v104, 0, v104, vcc')
    a('v_add_f32 v100, v100, v104')
    wave_reduce(a, [100], [88])
    a('v_mov_b32 v105, 0x%x' % f2u(1.0 / 576))
    round_bf16(a, 102)
    a('v_mul_f32 v105, s88, v105')
    a('v_mov_b32 v103, v102')
    round_bf16(a, 105)
    a('v_add_f32 v105, 0x%x, v105' % f2u(1e-5))
    round_bf16(a, 105)
    a('v_sqrt_f32 v105, v105')
    for i in range(8):
        a('v_pk_add_f32 v[%d:%d], v[%d:%d], v[102:103] neg_lo:[0,1] neg_hi:[0,1]' % (84 + 2 * i, 85 + 2 * i, 84 + 2 * i, 85 + 2 * i))
    round_bf16(a, 105)
    a('v_rcp_f32 v105, v105')
    for i in range(8):
        a('v_cvt_pk_bf16_f32 v%d, v%d, v%d' % (4 + i, 84 + 2 * i, 85 + 2 * i))
    a('v_mov_b32 v104, v105')
    a('v_mov_b32 v103, v105')
    for i in range(8):
        a('v_lshlrev_b32 v%d, 16, v%d' % (84 + 2 * i, 4 + i))
        a('v_and_b32 v%d, 0xffff0000, v%d' % (85 + 2 * i, 4 + i))
    for i in range(8):
        a('v_pk_mul_f32 v[%d:%d], v[%d:%d], v[104:105]' % (84 + 2 * i, 85 + 2 * i, 84 + 2 * i, 85 + 2 * i))
    for i in range(8):
        a('v_cvt_pk_bf16_f32 v%d, v%d, v%d' % (4 + i, 84 + 2 * i, 85 + 2 * i))
    XL = 24576
    a('s_lshl_b32 s89, s3, 4')
    a('s_add_u32 s89, s89, %d' % XL)
    a('v_lshlrev_b32 v106, 7, v0')
    a('v_add_u32 v106, s89, v106')
    a('ds_write_b128 v106, v[4:7]')
    a('s_mov_b64 exec, 0xff')
    a('ds_write_b128 v106, v[8:11] offset:8192')
    a('s_mov_b64 exec, 1')
    a('s_lshl_b32 s89, s61, 3')
    a('s_add_u32 s89, s89, 0x%x' % XSTAT)
    a('buffer_store_dwordx2 v[102:103], v3, s[48:51], s89 offen sc1')
    a('s_mov_b64 exec, -1')
    a('s_lshl_b32 s89, s3, 10')
    a('s_add_u32 s89, s89, %d' % XL)
    a('v_add_u32 v104, s89, v3')
    a('v_lshrrev_b32 v105, 5, v0')
    a('v_lshlrev_b32 v105, 11, v105')
    a('v_bfe_u32 v106, v0, 3, 2')
    a('v_lshl_add_u32 v105, v106, 8, v105')
    a('v_and_b32 v106, 7, v0')
    a('v_lshl_add_u32 v105, v106, 4, v105')
    a('s_mul_i32 s89, s60, %d' % (18 * 2048))
    a('s_lshl_b32 s90, s64, 10')
    a('s_add_u32 s89, s89, s90')
    a('s_lshl_b32 s90, s62, 7')
    a('s_add_u32 s89, s89, s90')
    a('s_lshl_b32 s90, s3, 12')
    a('s_add_u32 s90, s90, s89')
    a('s_add_u32 s89, s89, %d' % (8 * 4096))
    a('s_waitcnt lgkmcnt(0)')
    stamp(a, 127, 2)
    a('s_barrier')
    a('ds_read_b128 v[4:7], v104')
    a('ds_read_b128 v[8:11], v3 offset:%d' % (XL + 8192))
    a('s_waitcnt lgkmcnt(1)')
    a('buffer_store_dwordx4 v[4:7], v105, s[48:51], s90 offen sc1')
    stamp(a, 127, 3)
    a('s_cmp_ge_u32 s3, 2')
    a('s_cbranch_scc1 K0_blk')
    a('s_cmp_eq_u32 s3, 1')
    a('s_cbranch_scc1 K0_misc')
    a('s_waitcnt vmcnt(2)')
    for x in kv_compute(12, 84, pk=True) + kv_store(2, 60, 84, 's2', 288): a(x[0] if isinstance(x, tuple) else x)
    a('s_branch K0_fin')
    a.label('K0_misc')
    a('s_waitcnt lgkmcnt(0)')
    a('buffer_store_dwordx4 v[8:11], v105, s[48:51], s89 offen sc1')
    for r in range(4):
        a('v_mov_b32 v%d, -1' % (76 + r))
    a('s_lshl_b32 s86, s2, 10')
    a('s_add_u32 s86, s86, 0x%x' % PSTAT)
    a('buffer_store_dwordx4 v[76:79], v3, s[48:51], s86 offen sc1')
    a('s_cmp_ge_u32 s2, 8')
    a('s_cbranch_scc1 K0_fin')
    srd(a, 40, 58, S * 2)
    srd(a, 44, 14, D * 2)
    a('v_lshlrev_b32 v73, 7, v0')
    a('buffer_load_dword v75, v73, s[40:43], 0 offen')
    a('buffer_load_dword v74, v73, s[44:47], 0 offen')
    for r in range(4):
        a('v_mov_b32 v%d, 0' % (80 + r))
    a('s_lshl_b32 s86, s2, 10')
    a('s_add_u32 s86, s86, 0x%x' % YFLAG)
    a('buffer_store_dwordx4 v[80:83], v3, s[48:51], s86 offen sc1')
    a('s_branch K0_fin')
    a.label('K0_blk')
    a('s_cmp_ge_u32 s66, 1296')
    a('s_cbranch_scc1 K0_fin')
    a('v_lshrrev_b32 v68, 4, v0')
    a('v_lshlrev_b32 v71, 10, v68')
    a('v_bfe_u32 v72, v0, 2, 2')
    a('v_lshl_add_u32 v71, v72, 7, v71')
    a('v_and_b32 v72, 3, v0')
    a('v_lshl_add_u32 v71, v72, 3, v71')
    a('v_add_u32 v71, s84, v71')
    a('s_waitcnt vmcnt(2)')
    for nt in range(4):
        b = 12 + 4 * nt
        a('ds_read_b64_tr_b16 v[%d:%d], v71 offset:%d' % (b, b + 1, 32 * nt))
        a('ds_read_b64_tr_b16 v[%d:%d], v71 offset:%d' % (b + 2, b + 3, 512 + 32 * nt))
    a('s_cmp_ge_u32 s73, 36')
    a('s_cselect_b32 s90, 144, 0')
    a('s_cselect_b32 s93, 9, 1')
    a('s_cselect_b32 s94, 1, 18')
    a('s_cselect_b32 s95, 0, 162')
    a('s_mul_i32 s93, s93, s72')
    a('s_add_u32 s95, s95, s93')
    a('s_lshl_b32 s89, s73, 2')
    a('s_sub_u32 s89, s89, s90')
    for nt in range(4):
        a('s_mul_hi_u32 s91, s89, 0x1C71C71D')
        a('s_mul_i32 s92, s91, 9')
        a('s_sub_u32 s92, s89, s92')
        a('s_mul_i32 s91, s91, 324')
        a('s_mul_i32 s92, s92, s94')
        a('s_add_u32 s91, s91, s92')
        a('s_add_u32 s91, s91, s95')
        a('s_lshl_b32 s91, s91, 10')
        a('s_add_u32 s91, s91, 0x%x' % WIN_F)
        b = 12 + 4 * nt
        a('s_waitcnt lgkmcnt(%d)' % (6 - 2 * nt))
        a('buffer_store_dwordx4 v[%d:%d], v3, s[48:51], s91 offen sc1' % (b, b + 3))
        a('s_add_u32 s89, s89, 1')
    a.label('K0_fin')
    stamp(a, 127, 4)
    stamp_flush(a, 127, 0, 126, 5)
    if opt.get('k0e', 0):
        a('s_mov_b64 exec, -1')
        a('s_cmp_ge_u32 s3, 4')
        a('s_cbranch_scc1 K0_end')
        srd(a, 36, 56, S * S * 2)
        a('v_lshlrev_b32 v73, 7, v0')
        a('s_lshl_b32 s91, s2, 2')
        a('s_add_u32 s91, s91, s3')
        a('s_lshl_b32 s91, s91, 13')
        a('buffer_load_dword v40, v73, s[36:39], s91 offen')
    a.label('K0_end')
    a('s_endpgm')
    return kernel_desc(name, 128, 128), '; @launch kernel=k0_kernel grid=(256,1,1) block=(512,1,1) lds=%d' % (24576 + 9216)

class VM:
    def __init__(self): self.q = []
    def issue(self, tag, n=1): self.q += [tag] * n
    def need(self, tag):
        last = max(i for i, t in enumerate(self.q) if t == tag)
        return len(self.q) - 1 - last
    def wait(self, a, tag):
        if tag not in self.q: return
        n = self.need(tag)
        n = min(n, 63)
        a('s_waitcnt vmcnt(%d)' % n)
        self.q = self.q[len(self.q) - n:]

K1C = -2.0 * 0.7978845608028654 * 1.4426950408889634
K2C = K1C * 0.044715

def gelu_ops(xs, tmps, vk2):
    ops = []
    for x, t in zip(xs, tmps): ops.append('v_mul_f32 v%d, v%d, v%d' % (t, x, x))
    for x, t in zip(xs, tmps): ops.append('v_fmaak_f32 v%d, v%d, v%d, 0x%x' % (t, vk2, t, f2u(K1C)))
    for x, t in zip(xs, tmps): ops.append('v_mul_f32 v%d, v%d, v%d' % (t, x, t))
    for x, t in zip(xs, tmps): ops.append('v_exp_f32 v%d, v%d' % (t, t))
    for x, t in zip(xs, tmps): ops.append('v_add_f32 v%d, 1.0, v%d' % (t, t))
    for x, t in zip(xs, tmps): ops.append('v_rcp_f32 v%d, v%d' % (t, t))
    for x, t in zip(xs, tmps): ops.append('v_mul_f32 v%d, v%d, v%d' % (x, x, t))
    return ops

K1_LDS = 163840
def cost(x):
    t = x[0] if isinstance(x, tuple) else x
    if t.startswith(('v_exp', 'v_rcp', 'v_sqrt', 'v_rsq')): return 2
    if t.startswith('s_'): return 0 if not t.startswith('s_nop') else 1
    return 1

def wg_map_16x16(a):
    a('s_and_b32 s20, s2, 7')
    a('s_lshr_b32 s21, s2, 3')
    a('s_and_b32 s22, s20, 1')
    a('s_lshl_b32 s22, s22, 3')
    a('s_and_b32 s23, s21, 7')
    a('s_add_u32 s22, s22, s23')
    a('s_lshr_b32 s23, s20, 1')
    a('s_lshl_b32 s23, s23, 2')
    a('s_lshr_b32 s24, s21, 3')
    a('s_add_u32 s23, s23, s24')

class Cap:
    def __init__(self): self.l = []
    def __call__(self, x): self.l.append(x)

def gen_k1(a, opt={}):
    name = 'k1_kernel'
    kernel_begin(a, name)
    a('s_cmp_ge_u32 s2, 256')
    a('s_cbranch_scc1 K1_end')
    a('s_load_dwordx2 s[48:49], s[0:1], 104')
    a('s_load_dwordx8 s[4:11], s[0:1], 8')
    a('s_load_dwordx2 s[12:13], s[0:1], 64')
    a('s_load_dwordx2 s[14:15], s[0:1], 80')
    stamp(a, 15, 0)
    wave_lane(a, 3)
    a('v_lshlrev_b32 v1, 4, v0')
    wg_map_16x16(a)
    a('s_lshl_b32 s22, s22, 2')
    a('s_add_u32 s22, s22, s3')
    a('s_mul_i32 s60, s22, %d' % (36 * 1024))
    a('s_mul_i32 s61, s23, %d' % (324 * 1024))
    a('s_mul_i32 s62, s3, 3072')
    a('s_add_u32 s61, s61, s62')
    a('s_add_u32 s61, s61, 0x%x' % WIN_F)
    a('s_mov_b32 s50, 0x%x' % WS_END)
    a('s_mov_b32 s51, 0x00020000')
    a('v_mov_b32 v2, v1')
    a('s_waitcnt lgkmcnt(0)')
    vm = VM()
    C2 = 184; T = 112; C1 = 96; BR = 64; NB = 8
    def A(ks, j): return ar((ks * 2 + j) * 4, 4)
    def emit(x):
        if isinstance(x, tuple):
            a(x[0]); vm.issue(x[1])
        else: a(x)
    def dmaB(u):
        out = []
        for i in range(3):
            pre = ['s_add_u32 m0, s62, %d' % ((12 * u % 144) * 1024), 's_add_u32 s63, s61, %d' % (12 * u * 1024)] if i == 0 else []
            out.append((pre, ('buffer_load_dwordx4 v1, s[48:51], s63 offen offset:%d lds' % (1024 * i), 'B%d' % u)))
        return out
    def ldA(ks):
        out = []
        for j in range(2):
            pre = ['s_add_u32 s64, s60, %d' % (ks * 2048)] if (j == 0 and ks % 2 == 0) else []
            out.append((pre, ('buffer_load_dwordx4 %s, v1, s[48:51], s64 offen offset:%d' % (A(ks, j), (ks % 2) * 2048 + j * 1024), 'A%d' % ks)))
        return out
    LOOK = NB - 1
    P1 = 324
    bars = list(range(14)) + [14, 18, 22, 25]
    def bar_cover(u):
        nxt = [b for b in bars if b > u]
        return list(range(u, nxt[0] if nxt else 27))
    def barpos(u): return max(0, 2 * (12 * u - LOOK + 1))
    def need_unit(u): return barpos(max(b for b in bars if b <= u))
    def war_ok(u):
        if u < 12: return 0
        b = min(b for b in bars if b >= u - 12 + 2)
        return barpos(b) + 1
    LEAD = opt.get('lead1', 64)
    ev = []
    for u in range(14): ev.append((need_unit(u), 0, u))
    for ks in range(18): ev.append((18 * ks, 1, ks))
    ev.sort()
    LQ = []
    for need, kind, n in ev:
        for pre, ld in (dmaB(n) if kind == 0 else ldA(n)):
            LQ.append((max(need - LEAD, war_ok(n) if kind == 0 else 0), pre, ld, 0))
    CB = opt.get('cB', 80); CS = opt.get('cS', 70)
    def addB(us):
        for u in us:
            for pre, ld in dmaB(u): LQ.append((war_ok(u), pre, ld, CB))
    for _ in range(opt.get('pro', 10)):
        e, pre, ld, c_ = LQ.pop(0)
        for x in pre: a(x)
        emit(ld)
    c = Cap()
    c('s_mul_i32 s70, s22, 144')
    c('s_mul_i32 s71, s23, 9')
    c('s_add_u32 s70, s70, s71')
    c('s_lshl_b32 s70, s70, 10')
    c('s_add_u32 s71, s70, 0x%x' % Z2_F)
    c('s_add_u32 s70, s70, 0x%x' % Z1_P)
    c('s_lshl_b32 s72, s22, 12')
    c('s_add_u32 s72, s72, 0x%x' % PSTAT)
    c('s_lshl_b32 s73, s23, 8')
    c('s_add_u32 s73, s73, s72')
    srd(c, 24, 4, S * D * 2)
    srd(c, 28, 6, S * D * 2)
    srd(c, 32, 8, D * 8)
    srd(c, 36, 10, D * S * 2)
    srd(c, 40, 12, S * S * 2)
    srd(c, 44, 14, FH * D * 2)
    c('s_mov_b32 s74, 0x11111111')
    c('s_mov_b32 s75, 0x11111111')
    for r in range(2):
        c('v_mov_b32 v%d, 0x%x' % (4 + r, f2u(K2C)))
        c('v_mov_b32 v%d, 0x%x' % (6 + r, f2u(K1C)))
        c('v_mov_b32 v%d, 1.0' % (12 + r))
    c('v_mov_b32 v11, 0x%x' % f2u(1.0 / FH))
    c('s_lshl_b32 s65, s3, 6')
    c('v_add_u32 v3, s65, v0')
    for x in kv_addr(3, 40, 's2'): c(x)
    c('v_lshrrev_b32 v10, 4, v0')
    c('v_bfe_u32 v54, v0, 2, 2')
    c('v_lshlrev_b32 v54, 8, v54')
    c('v_lshl_add_u32 v54, v10, 6, v54')
    c('v_and_b32 v8, 3, v0')
    c('v_lshl_add_u32 v54, v8, 4, v54')
    c('v_lshrrev_b32 v55, 2, v1')
    c('v_lshlrev_b32 v56, 7, v0')
    c('s_lshl_b32 s93, s3, 8')
    c('s_add_u32 s93, s93, s2')
    c('s_lshl_b32 s76, s93, 13')
    c('v_add_u32 v56, s76, v56')
    c('v_subrev_u32 v53, %d, v56' % (324 * 8192))
    c('s_mov_b32 s94, 200000')
    FQ = [(4, x) for x in c.l]
    side = opt.get('side', 7)
    PL = 48 + 16
    addB(range(14, 24))
    clk = {'t': 0.0, 'free': 0.0}
    pos = [0]
    def pump():
        if LQ and LQ[0][0] <= pos[0] and (LQ[0][3] == 0 or clk['t'] >= clk['free']):
            e, pre, ld, c_ = LQ.pop(0)
            for x in pre: a(x)
            emit(ld)
            clk['free'] = max(clk['free'], clk['t'] - 100) + c_
            return 1
        return 0
    def force(tag):
        while tag in [l[2][1] for l in LQ]:
            e, pre, ld, c_ = LQ.pop(0)
            assert e <= pos[0]
            print('forced', ld[1], 'at', pos[0], file=sys.stderr)
            for x in pre: a(x)
            emit(ld)
    state = {'seg': 0, 'nrd': 0}
    def rdB(n):
        u = n // 12
        if n % 12 == 0 and u in bars:
            for uu in bar_cover(u): force('B%d' % uu)
            vm.wait(a, 'B%d' % bar_cover(u)[-1])
            a('s_barrier')
        off = (n % 144) * 1024
        seg = off // 65536
        if seg != state['seg']:
            a('v_add_u32 v2, %d, v1' % (seg * 65536))
            state['seg'] = seg
        a('ds_read_b128 %s, v2 offset:%d' % (vr(BR + (n % NB) * 4, 4), off % 65536))
        state['nrd'] = n + 1
    def useB(n):
        a('s_waitcnt lgkmcnt(%d)' % (state['nrd'] - 1 - n))
        return vr(BR + (n % NB) * 4, 4)
    for n in range(LOOK): rdB(n)
    def fill(slots):
        clk['t'] += 17 if pos[0] > P1 else 20
        slots -= pump()
        ns = 0
        while FQ and FQ[0][0] <= pos[0] and slots > 0:
            x = FQ[0][1]
            if isinstance(x, tuple) and x[0] == 'WAIT':
                if x[1] in [l[2][1] for l in LQ]: break
                FQ.pop(0); vm.wait(a, x[1]); continue
            if isinstance(x, tuple) and x[0] == 'BLOCK':
                FQ.pop(0)
                for y in x[1]:
                    if callable(y): y()
                    else: emit(y)
                slots -= 2
                continue
            if isinstance(x, tuple):
                if clk['t'] < clk['free'] and pos[0] < 10000: break
                clk['free'] = max(clk['free'], clk['t'] - 100) + CS
            if cost(x) > slots and slots < 2: break
            FQ.pop(0); emit(x); slots -= cost(x)
            if cost(x) == 0:
                ns += 1
                if ns % 2 == 0: slots -= 1
    for ks in range(18):
        if ks == 1: stamp(a, 15, 1)
        force('A%d' % ks)
        vm.wait(a, 'A%d' % ks)
        for jt in range(9):
            n = ks * 9 + jt
            b = useB(n)
            for j in range(2):
                cc = vr(C2 + jt * 8 + j * 4, 4)
                a('v_mfma_f32_16x16x32_bf16 %s, %s, %s, %s' % (cc, A(ks, j), b, cc if ks else '0'))
                pos[0] += 1
                fill(2 if j == 0 else 1)
            if n + LOOK < 168: rdB(n + LOOK)
    assert not FQ
    stamp(a, 15, 2)
    def pr(r): return 'v[%d:%d]' % (r, r + 1)
    pairs = [(C2 + 8 * jt + 2 * i, T + 8 * jt + 2 * i, i, jt) for jt in range(9) for i in range(4)]
    G = []
    for x, t, i, jt in pairs: G.append('v_pk_mul_f32 %s, %s, %s' % (pr(t), pr(x), pr(x)))
    for x, t, i, jt in pairs: G.append('v_pk_fma_f32 %s, %s, v[4:5], v[6:7]' % (pr(t), pr(t)))
    for x, t, i, jt in pairs: G.append('v_pk_mul_f32 %s, %s, %s' % (pr(t), pr(x), pr(t)))
    for r in range(72): G.append('v_exp_f32 v%d, v%d' % (T + r, T + r))
    for x, t, i, jt in pairs: G.append('v_pk_add_f32 %s, %s, v[12:13]' % (pr(t), pr(t)))
    for r in range(72): G.append('v_rcp_f32 v%d, v%d' % (T + r, T + r))
    for x, t, i, jt in pairs: G.append('v_pk_mul_f32 %s, %s, %s' % (pr(x), pr(x), pr(t)))
    SU = T; SQ = T + 8
    for x, t, i, jt in pairs:
        if jt == 0:
            G.append('v_pk_mul_f32 %s, %s, %s' % (pr(SQ + 2 * i), pr(x), pr(x)))
        else:
            G.append('v_pk_add_f32 %s, %s, %s' % (pr(SU + 2 * i), pr(SU + 2 * i) if jt > 1 else pr(x - 8), pr(x)))
            G.append('v_pk_fma_f32 %s, %s, %s, %s' % (pr(SQ + 2 * i), pr(x), pr(x), pr(SQ + 2 * i)))
    kvpos = opt.get('kvpos', -1)
    if side & 1 and kvpos < 0:
        k0 = [n for n, l in enumerate(LQ) if l[2][1] == 'B%d' % (-kvpos + 17)]
        k0 = k0[0] if k0 else 0
        LQ[k0:k0] = [(0, [], x, opt.get('cK', 40)) for x in kv_loads(40, 16)]
    for x in G:
        a(x)
        clk['t'] += 4.4 * cost(x)
        pump()
    TT = T + 16; U = T + 24
    a('s_nop 0')
    for e in range(8): a('v_add_f32 v%d, v%d, v%d row_ror:8 bank_mask:0x3' % (TT + e, SU + e, SU + e))
    for e in range(8): a('v_add_f32 v%d, v%d, v%d row_ror:8 bank_mask:0xc' % (TT + e, SQ + e, SQ + e))
    for i in range(4): a('v_add_f32 v%d, v%d, v%d row_half_mirror bank_mask:0x5' % (U + i, TT + 2 * i, TT + 2 * i))
    for i in range(4): a('v_add_f32 v%d, v%d, v%d row_half_mirror bank_mask:0xa' % (U + i, TT + 2 * i + 1, TT + 2 * i + 1))
    for i in range(4): a('v_add_f32 v%d, v%d, v%d quad_perm:[1,0,3,2]' % (U + i, U + i, U + i))
    for i in range(4): a('v_add_f32 v%d, v%d, v%d quad_perm:[2,3,0,1]' % (U + i, U + i, U + i))
    a('s_mov_b64 exec, s[74:75]')
    emit(('buffer_store_dwordx4 %s, v55, s[48:51], s73 offen sc1' % vr(U, 4), 'ST'))
    a('s_mov_b64 exec, -1')
    stamp(a, 15, 3)
    rdB(168)
    addB(range(24, 27))
    W = T + 32; PL = T; SC = T + 16; BI = 48
    polls = [('buffer_load_dwordx4 %s, v54, s[48:51], s72 offen offset:%d sc1' % (vr(PL + 4 * i, 4), i * 1024), 'PL') for i in range(4)]
    pp = P1 + opt.get('pollpos', 70)
    for x in polls: LQ.append((pp, [], x, 20))
    tp = P1 + opt.get('tchpos', 80)
    if side & 1 and kvpos >= 0:
        for x in kv_loads(40, 16): LQ.append((P1 + kvpos, [], x, opt.get('cK', 40)))
    if side & 2: LQ.append((tp, [], ('buffer_load_dword v57, v56, s[40:43], 0 offen', 'TCH'), 300))
    if side & 4:
        LQ.append((tp, [], ('buffer_load_dword v58, v56, s[44:47], 0 offen', 'TCH'), 300))
        LQ.append((tp, [], ('buffer_load_dword v59, v53, s[36:39], 0 offen', 'TCH'), 300))
    kvf = [(0, ('WAIT', 'KV'))] + [(0, x) for x in kv_compute(16, W) + kv_store(3, 40, W, 's2')]
    if side & 1 and kvpos < 0: FQ += [(P1 + opt.get('kvc', 10), x[1]) for x in kvf]
    def check():
        vm.wait(a, 'PL')
        a('s_branch K1_chk')
        a.label('K1_poll')
        for x in polls: a(x[0])
        a('s_waitcnt vmcnt(0)')
        a.label('K1_chk')
        a('v_max3_u32 v8, v%d, v%d, v%d' % (PL, PL + 1, PL + 2))
        a('v_max3_u32 v9, v%d, v%d, v%d' % (PL + 3, PL + 4, PL + 5))
        for i in range(6, 14, 4):
            a('v_max3_u32 v8, v8, v%d, v%d' % (PL + i, PL + i + 1))
            a('v_max3_u32 v9, v9, v%d, v%d' % (PL + i + 2, PL + i + 3))
        a('v_max3_u32 v8, v8, v%d, v%d' % (PL + 14, PL + 15))
        a('v_max_u32 v8, v8, v9')
        a('v_cmp_eq_u32 vcc, -1, v8')
        a('s_sub_u32 s94, s94, 1')
        a('s_cmp_eq_u32 s94, 0')
        a('s_cbranch_scc1 K1_polldone')
        a('s_cbranch_vccnz K1_poll')
        a.label('K1_polldone')
        stamp(a, 15, 4)
    cp = P1 + opt.get('chkpos', 125)
    FQ.append((cp, ('WAIT', 'PL')))
    FQ.append((cp, ('BLOCK', [check])))
    c = Cap()
    for r in range(4): c('v_add_f32 v%d, v%d, v%d' % (PL + r, PL + r, PL + 4 + r))
    for r in range(4): c('v_add_f32 v%d, v%d, v%d' % (PL + 8 + r, PL + 8 + r, PL + 12 + r))
    for r in range(4): c('v_add_f32 v%d, v%d, v%d' % (PL + r, PL + r, PL + 8 + r))
    for sh in (4, 8):
        for r in range(4): c('v_add_f32 v%d, v%d, v%d row_ror:%d' % (PL + r, PL + r, PL + r, sh))
    M = PL + 4; Vv = PL + 8
    for r in range(4): c('v_mul_f32 v%d, v%d, v11 quad_perm:[0,1,0,1]' % (M + r, PL + r))
    for r in range(4): c('v_mul_f32 v%d, v%d, v11 quad_perm:[2,3,2,3]' % (Vv + r, PL + r))
    for r in range(4): c('v_fma_f32 v%d, -v%d, v%d, v%d' % (Vv + r, M + r, M + r, Vv + r))
    for r in range(4): c('v_max_f32 v%d, 0, v%d' % (Vv + r, Vv + r))
    def round2(r):
        c('v_cvt_pk_bf16_f32 v%d, v%d, v%d' % (r + 1, r, r + 1))
        c('v_lshlrev_b32 v%d, 16, v%d' % (r, r + 1))
        c('v_and_b32 v%d, 0xffff0000, v%d' % (r + 1, r + 1))
    round2(Vv); round2(Vv + 2)
    for r in range(4): c('v_add_f32 v%d, 0x%x, v%d' % (Vv + r, f2u(1e-5), Vv + r))
    round2(Vv); round2(Vv + 2)
    for r in range(4): c('v_sqrt_f32 v%d, v%d' % (Vv + r, Vv + r))
    round2(M); round2(M + 2)
    round2(Vv); round2(Vv + 2)
    for r in range(4): c('v_rcp_f32 v%d, v%d' % (Vv + r, Vv + r))
    c('s_nop 0')
    for r in range(4): c('v_mul_f32 v%d, -v%d, v%d' % (M + r, M + r, Vv + r))
    BI = T + 68 if False else 60
    SC = T + 12; BI = T + 20
    for e in range(8):
        p = e & 1
        c('v_mov_b32 v%d, v%d quad_perm:[%d,%d,%d,%d]' % (SC + e, Vv + (e >> 1), p, p, p, p))
    for e in range(8):
        p = e & 1
        c('v_mov_b32 v%d, v%d quad_perm:[%d,%d,%d,%d]' % (BI + e, M + (e >> 1), p, p, p, p))
    for jt in range(9):
        b = C2 + jt * 8
        for e in range(8): c('v_fma_f32 v%d, v%d, v%d, v%d' % (b + e, b + e, SC + e, BI + e))
        for i in range(4): c('v_cvt_pk_bf16_f32 v%d, v%d, v%d' % (b + i, b + 2 * i, b + 2 * i + 1))
        if jt in (4, 8): c('s_add_u32 s71, s71, 4096')
        c(('buffer_store_dwordx4 %s, v1, s[48:51], s71 offen offset:%d sc1' % (vr(b, 4), (jt % 4) * 1024), 'Z2'))
    FQ += [(0, x) for x in c.l]
    if side & 1 and kvpos >= 0: FQ += kvf
    pend = []
    for jt in range(9):
        cb_ = C1 + (jt & 1) * 8
        for ks in range(18):
            n = 162 + jt * 18 + ks
            b = useB(n)
            for j in range(2):
                cc = vr(cb_ + j * 4, 4)
                a('v_mfma_f32_16x16x32_bf16 %s, %s, %s, %s' % (cc, b, A(ks, j), cc if ks else '0'))
                pos[0] += 1
                if ks >= 4 and pend:
                    clk['t'] += 17
                    emit(pend.pop(0))
                    if pend and j == 0: emit(pend.pop(0))
                    if not pend: clk['free'] = max(clk['free'], clk['t'] - 100) + CS
                else:
                    fill(2 if j == 0 else opt.get('s2', 1))
            if n + LOOK < 324: rdB(n + LOOK)
        pend = ['v_cvt_pk_bf16_f32 v%d, v%d, v%d' % (cb_ + i, cb_ + 2 * i, cb_ + 2 * i + 1) for i in range(4)]
        if jt in (4, 8): pend.append('s_add_u32 s70, s70, 4096')
        pend.append(('buffer_store_dwordx4 %s, v1, s[48:51], s70 offen offset:%d sc1' % (vr(cb_, 4), (jt % 4) * 1024), 'Z1'))
    print('K1 leftover loads', len(LQ), 'fillers', len(FQ), file=sys.stderr)
    stamp(a, 15, 5)
    pos[0] = 10000
    a('s_nop 7')
    for x in pend: emit(x)
    while FQ or LQ: fill(2)
    stamp(a, 15, 6)
    stamp_flush(a, 15, 1, 4, 7)
    a.label('K1_end')
    a('s_endpgm')
    return kernel_desc(name, 512, 256), '; @launch kernel=k1_kernel grid=(256,1,1) block=(256,1,1) lds=%d' % 147456

def wout_store_addr2(c):
    c('s_lshr_b32 s71, s63, 1')
    c('s_mul_i32 s72, s71, 18')
    c('s_sub_u32 s72, s61, s72')
    c('s_lshr_b32 s73, s72, 1')
    c('s_mul_i32 s73, s73, 9')
    c('s_mul_i32 s71, s71, 81')
    c('s_add_u32 s71, s71, s73')
    c('s_lshl_b32 s71, s71, 10')
    c('s_add_u32 s71, s71, 0x%x' % WOUT_F)
    c('s_and_b32 s72, s72, 1')
    c('s_lshl_b32 s73, s72, 12')
    c('s_lshl_b32 s74, s72, 7')
    c('s_add_u32 s74, s74, 8192')
    c('s_lshl_b32 s72, s62, 4')
    c('v_bfe_u32 v38, v0, 2, 2')
    c('v_lshlrev_b32 v37, 9, v10')
    c('v_lshl_add_u32 v37, v38, 7, v37')
    c('v_add_u32 v38, s72, v38')
    c('v_and_b32 v39, 3, v0')
    c('v_lshl_add_u32 v37, v39, 3, v37')
    c('v_add_u32 v37, s68, v37')
    c('v_lshlrev_b32 v39, 4, v39')
    c('v_lshl_add_u32 v39, v10, 8, v39')
    c('v_add_u32 v39, s69, v39')
    c('s_mov_b32 s75, %d' % (4 * 81 * 1024))
    for nt in range(4):
        c('v_add_u32 v8, %d, v38' % (4 * nt))
        c('v_mul_u32_u24 v9, 57, v8')
        c('v_lshrrev_b32 v9, 10, v9')
        c('v_mul_u32_u24 v11, 18, v9')
        c('v_sub_u32 v11, v8, v11')
        c('v_mul_lo_u32 v9, v9, s75')
        c('v_lshrrev_b32 v8, 3, v11')
        c('v_lshlrev_b32 v8, 11, v8')
        c('v_and_b32 v14, 1, v11')
        c('v_lshl_add_u32 v8, v14, 10, v8')
        c('v_lshl_add_u32 v14, v14, 6, s74')
        c('v_cmp_le_u32 vcc, 16, v11')
        c('v_bfe_u32 v11, v11, 1, 2')
        c('v_lshl_add_u32 v8, v11, 6, v8')
        c('v_add_u32 v8, s73, v8')
        c('v_cndmask_b32 v8, v8, v14, vcc')
        c('v_add3_u32 v%d, v8, v9, v39' % (32 + nt))
    c('v_lshrrev_b32 v36, 3, v0')
    c('v_mul_u32_u24 v36, 1152, v36')
    c('v_and_b32 v8, 7, v0')
    c('v_lshl_add_u32 v36, v8, 4, v36')
    c('s_sub_u32 s72, s60, 700')
    c('s_lshl_b32 s72, s72, 13')
    c('v_lshlrev_b32 v38, 7, v0')
    c('v_add_u32 v38, s72, v38')

def wout_store_addr(a, vd, vt, vq):
    a('s_lshr_b32 s92, s86, 1')
    a('s_mul_i32 s95, s92, 18')
    a('s_sub_u32 s95, s82, s95')
    a('s_lshr_b32 s96, s95, 1')
    a('s_mul_i32 s96, s96, 9')
    a('s_mul_i32 s92, s92, 81')
    a('s_add_u32 s92, s92, s96')
    a('s_lshl_b32 s92, s92, 10')
    a('s_add_u32 s92, s92, 0x%x' % WOUT_F)
    a('s_cmp_ge_u32 s81, 648')
    a('s_cselect_b32 s92, 0x%x, s92' % WS_END)
    a('s_and_b32 s95, s95, 1')
    a('s_lshl_b32 s96, s95, 12')
    a('s_lshl_b32 s97, s95, 7')
    a('s_add_u32 s97, s97, 8192')
    a('s_lshl_b32 s95, s83, 4')
    a('v_bfe_u32 v%d, v0, 2, 2' % vt)
    a('v_add_u32 v%d, s95, v%d' % (vt, vt))
    a('v_and_b32 v%d, 3, v0' % (vt + 1))
    a('v_lshlrev_b32 v%d, 4, v%d' % (vt + 1, vt + 1))
    a('v_lshl_add_u32 v%d, v%d, 8, v%d' % (vt + 1, vq, vt + 1))
    a('s_mov_b32 s95, %d' % (4 * 81 * 1024))
    for nt in range(4):
        a('v_add_u32 v11, %d, v%d' % (4 * nt, vt))
        a('v_mul_u32_u24 v12, 57, v11')
        a('v_lshrrev_b32 v12, 10, v12')
        a('v_mul_u32_u24 v13, 18, v12')
        a('v_sub_u32 v13, v11, v13')
        a('v_mul_lo_u32 v12, v12, s95')
        a('v_lshrrev_b32 v11, 3, v13')
        a('v_lshlrev_b32 v11, 11, v11')
        a('v_and_b32 v14, 1, v13')
        a('v_lshl_add_u32 v11, v14, 10, v11')
        a('v_lshl_add_u32 v14, v14, 6, s97')
        a('v_cmp_le_u32 vcc, 16, v13')
        a('v_bfe_u32 v13, v13, 1, 2')
        a('v_lshl_add_u32 v11, v13, 6, v11')
        a('v_add_u32 v11, s96, v11')
        a('v_cndmask_b32 v11, v11, v14, vcc')
        a('v_add3_u32 v%d, v11, v12, v%d' % (vd + nt, vt + 1))

K2_LDS = 4 * 27 * 1024
def gen_k2(a, opt={}):
    name = 'k2_kernel'
    kernel_begin(a, name)
    a('s_cmp_ge_u32 s2, 256')
    a('s_cbranch_scc1 K2_end')
    a('s_load_dwordx2 s[18:19], s[0:1], 104')
    a('s_load_dwordx2 s[4:5], s[0:1], 72')
    stamp(a, 15, 0)
    wave_lane(a, 3)
    a('v_lshlrev_b32 v1, 4, v0')
    a('s_and_b32 s20, s2, 7')
    a('s_lshr_b32 s21, s2, 3')
    a('s_and_b32 s22, s20, 1')
    a('s_lshl_b32 s22, s22, 3')
    a('s_and_b32 s23, s21, 7')
    a('s_add_u32 s22, s22, s23')
    a('s_lshr_b32 s23, s20, 1')
    a('s_lshl_b32 s23, s23, 2')
    a('s_lshr_b32 s24, s21, 3')
    a('s_add_u32 s23, s23, s24')
    a('s_lshl_b32 s25, s22, 19')
    a('s_lshl_b32 s26, s3, 17')
    a('s_add_u32 s25, s25, s26')
    a('s_add_u32 s25, s25, 0x%x' % WSP_F)
    a('s_mul_i32 s26, s3, %d' % (16 * 144 * 1024))
    a('s_mul_i32 s27, s23, 9216')
    a('s_add_u32 s26, s26, s27')
    a('s_add_u32 s26, s26, 0x%x' % Z2_F)
    for p in range(4):
        a('s_add_u32 s28, s3, %d' % p)
        a('s_and_b32 s28, s28, 3')
        a('s_lshl_b32 s28, s28, 11')
        a('v_add_u32 v%d, s28, v1' % (4 + p))
    a('v_add_u32 v2, 4096, v1')
    a('v_add_u32 v3, 8192, v1')
    a('s_lshl_b32 s29, s22, 2')
    a('s_add_u32 s29, s29, s3')
    rot = opt.get('rot', 0)
    a('s_and_b32 s40, s21, 7')
    a('s_lshr_b32 s41, s21, 3')
    a('s_add_u32 s40, s40, s41')
    a('s_and_b32 s40, s40, %d' % rot)
    a('s_mul_i32 s41, s3, %d' % opt.get('wph', 0))
    a('v_bfe_u32 v10, v0, 2, 2')
    a('v_lshlrev_b32 v10, 3, v10')
    a('v_and_b32 v11, 3, v0')
    a('v_add_u32 v10, v10, v11')
    a('v_lshlrev_b32 v10, 1, v10')
    a('s_lshl_b32 s33, s29, 6')
    a('s_waitcnt lgkmcnt(0)')
    srd(a, 48, 18, WS_END, off=WS_BASE)
    srd(a, 52, 4, S * 2)
    vm = VM()
    def emit(x):
        if isinstance(x, tuple):
            a(x[0]); vm.issue(x[1])
        else: a(x)
    NO = 40
    GEL = 72; WB = 108; ZB = 140; XB = 248
    ownV = {}
    def acc(tt, ft, late=False):
        if tt < 2:
            return vr(ownV[(tt, ft)], 4) if late else ar((tt * 9 + ft) * 4, 4)
        return vr(NO + ((tt - 2) * 9 + ft) * 4, 4)
    def Wbuf(k, tt):
        if k < 15: return WB + 4 * tt
        if tt in (2, 3): return XB + 4 * (tt - 2)
        return ZB + 36 * (13 % 3) + 4 * {4: 0, 5: 1, 6: 2, 7: 3, 0: 4, 1: 5}[tt]
    def Zbuf(k, ft): return ZB + 36 * (k % 3) + 4 * ft
    def setoff(kind, k):
        l = ['s_add_u32 s42, s41, %d' % k, 's_and_b32 s42, s42, 15', 's_xor_b32 s42, s42, s40']
        if kind == 'W':
            l += ['s_lshl_b32 s42, s42, 13', 's_add_u32 s%d, s42, s25' % (44 + (k & 1))]
        else:
            l += ['s_mul_i32 s42, s42, %d' % (144 * 1024), 's_add_u32 s46, s42, s26']
        return l
    def ldW(k, tt): return ('buffer_load_dwordx4 %s, v%d, s[48:51], s%d offen offset:%d' % (ar(Wbuf(k, tt), 4), 4 + tt // 2, 44 + (k & 1), (tt & 1) * 1024), 'W%d_%d' % (k, tt))
    def ldZ(k, ft): return ('buffer_load_dwordx4 %s, v%d, s[48:51], s46 offen offset:%d' % (ar(Zbuf(k, ft), 4), 1 + ft // 4, (ft % 4) * 1024), 'Z%d' % k)
    groups = []
    for k in range(14):
        order = [2, 3, 4, 5, 6, 7]
        ins_ = max(0, 6 - k)
        order[ins_:ins_] = [0, 1]
        groups += [(k, tt) for tt in order]
    groups += [(14, 0), (14, 1)]
    for tt in range(2, 8): groups += [(14, tt), (15, tt)]
    groups += [(15, 0), (15, 1)]
    gend = {g: 9 * (i + 1) for i, g in enumerate(groups)}
    stepend = {k: max(gend[(k, tt)] for tt in range(8)) for k in range(16)}
    emit(('buffer_load_ushort v8, v10, s[52:55], s33 offen', 'b'))
    emit(('buffer_load_ushort v9, v10, s[52:55], s33 offen offset:8', 'b'))
    for x in setoff('Z', 0) + setoff('W', 0): a(x)
    emit(ldW(0, 2))
    for ft in range(9): emit(ldZ(0, ft))
    for tt in [3, 4, 5, 6, 7, 0, 1]: emit(ldW(0, tt))
    LQ = []
    def addZ(k, early):
        for ft in range(9): LQ.append((early, setoff('Z', k) if ft == 0 else [], ldZ(k, ft)))
    addZ(1, 0)
    z1pos = {}
    for k in range(14):
        zs = [(stepend[k - 1] if k else 0, setoff('Z', k + 2) if ft == 0 else [], ldZ(k + 2, ft)) for ft in range(9)]
        tts = [g[1] for g in groups if g[0] == k]
        ws_ = [(gend[(k, tt)], setoff('W', k + 1) if n == 0 else [], ldW(k + 1, tt)) for n, tt in enumerate(tts)]
        LQ.append(zs.pop(0))
        if 1 <= k <= 9:
            u = k - 1
            LQ.append((stepend[k - 1], [], ('buffer_load_dwordx4 %s, v%d, s[48:51], s32 offen offset:%d' % (vr(16 + 4 * (u & 1), 4), 1 + u // 4, (u % 4) * 1024), 'U%d' % u)))
        for n in range(8):
            LQ.append(zs.pop(0)); LQ.append(ws_.pop(0))
            if k == 13 and n == 3:
                LQ.append((0, setoff('W', 15), ldW(15, 2))); LQ.append((0, [], ldW(15, 3)))
    for tt in [4, 5, 6, 7, 0, 1]: LQ.append((stepend[13], [], ldW(15, tt)))
    a('s_mul_i32 s32, s29, %d' % (144 * 1024))
    a('s_add_u32 s32, s32, s27')
    a('s_add_u32 s32, s32, 0x%x' % Z1_P)
    a('v_mov_b32 v14, 0x%x' % f2u(K2C))
    a('s_lshr_b32 s36, s29, 1')
    a('s_mul_i32 s36, s36, 72')
    a('s_lshr_b32 s37, s23, 1')
    a('s_mul_i32 s37, s37, 9')
    a('s_add_u32 s36, s36, s37')
    a('s_lshl_b32 s36, s36, 12')
    a('s_and_b32 s37, s29, 1')
    a('s_lshl_b32 s37, s37, 11')
    a('s_add_u32 s36, s36, s37')
    a('s_add_u32 s36, s36, 0x%x' % H_F)
    a('s_and_b32 s37, s23, 1')
    a('s_lshl_b32 s38, s37, 10')
    a('s_add_u32 s38, s38, s36')
    a('s_add_u32 s38, s38, %d' % (8 * 4096))
    a('s_lshl_b32 s37, s37, 14')
    a('s_add_u32 s36, s36, s37')
    for p in range(1, 4):
        a('s_add_u32 s34, s3, %d' % p)
        a('s_and_b32 s34, s34, 3')
        a('s_mul_i32 s34, s34, %d' % (27 * 1024))
        a('s_add_u32 s34, s34, %d' % ((p - 1) * 9 * 1024))
        a('v_add_u32 v%d, s34, v1' % (10 + p))
    a('s_mul_i32 s35, s3, %d' % (27 * 1024))
    vm.wait(a, 'b')
    a('v_lshlrev_b32 v8, 16, v8')
    a('v_lshlrev_b32 v9, 16, v9')
    for j in range(2):
        for r in range(4): a('v_accvgpr_write_b32 a%d, v%d' % (GEL + 4 * j + r, 8 + j))
    a('v_add_u32 v10, s35, v1')
    FQ = []
    for u in range(9 if not opt.get('nogelu') else 0):
        e0 = stepend[u + 1]
        FQ.append((e0, ('WAIT', 'U%d' % u)))
        z = [24 + i for i in range(8)]
        src = 16 + 4 * (u & 1)
        for i in range(4):
            FQ.append((e0, 'v_lshlrev_b32 v%d, 16, v%d' % (z[2 * i], src + i)))
            FQ.append((e0, 'v_and_b32 v%d, 0xffff0000, v%d' % (z[2 * i + 1], src + i)))
        for x in gelu_ops(z, [32 + i for i in range(8)], 14): FQ.append((e0, x))
        for i in range(4): FQ.append((e0, 'v_cvt_pk_bf16_f32 v%d, v%d, v%d' % (32 + i, z[2 * i], z[2 * i + 1])))
        for i in range(4): FQ.append((e0, 'v_accvgpr_write_b32 a%d, v%d' % (GEL + 4 * u + i, 32 + i)))
    e0 = stepend[12]
    FQ += [(e0, x) for x in [
        'v_bfe_u32 v24, v0, 2, 2', 'v_lshrrev_b32 v25, 4, v0', 'v_cmp_eq_u32 vcc, v24, v25', 'v_and_b32 v24, 1, v0',
        'v_lshlrev_b32 v24, 4, v24', 'v_mov_b32 v25, 0x3f80', 'v_lshlrev_b32 v24, v24, v25', 'v_cndmask_b32 v24, 0, v24, vcc',
        'v_and_b32 v25, 2, v0', 'v_cmp_eq_u32 vcc, 0, v25', 'v_mov_b32 v16, 0', 'v_mov_b32 v17, 0', 'v_mov_b32 v20, 0', 'v_mov_b32 v21, 0',
        'v_cndmask_b32 v18, 0, v24, vcc', 'v_cndmask_b32 v19, v24, v21, vcc']]
    freeY = []; Xregs = []
    own_list = [(j, ft) for j in range(2) for ft in range(9)]
    def base(tt, ft): return NO + ((tt - 2) * 9 + ft) * 4
    def packwr(X, Y, p, slot, e):
        for r in range(2): FQ.append((e, 'v_cvt_pk_bf16_f32 v%d, v%d, v%d' % (X + r, X + 2 * r, X + 2 * r + 1)))
        for r in range(2): FQ.append((e, 'v_cvt_pk_bf16_f32 v%d, v%d, v%d' % (X + 2 + r, Y + 2 * r, Y + 2 * r + 1)))
        FQ.append((e, 'ds_write_b128 v%d, %s offset:%d' % (10 + p, vr(X, 4), slot * 1024)))
        Xregs.append(X)
        if own_list:
            o = own_list.pop(0); ownV[o] = Y
            for r in range(4): FQ.append((e, 'v_accvgpr_read_b32 v%d, a%d' % (Y + r, (o[0] * 9 + o[1]) * 4 + r)))
        else:
            freeY.append(Y)
    for tt in range(2, 8):
        p = tt // 2; j = tt & 1
        g0 = gend[(15, tt)] - 9
        for i in range(4):
            packwr(base(tt, 2 * i), base(tt, 2 * i + 1), p, 2 * i + j, g0 + 2 * i + 2 + 7)
        if j == 1:
            packwr(base(tt - 1, 8), base(tt, 8), p, 8, g0 + 9 + 7)
    pos = 0; credit = 0.0
    lrate = opt.get('lrate', 0.27)
    for (k, tt) in groups:
        if pos == 72: stamp(a, 15, 1)
        if pos == 72 * 14: stamp(a, 15, 2)
        late = (k == 15 and tt < 2)
        if late:
            while any('accvgpr_read' in (x[1] if isinstance(x[1], str) else '') for x in FQ):
                emit(FQ.pop(0)[1])
        vm.wait(a, 'Z%d' % k)
        assert ('W%d_%d' % (k, tt)) not in [l[2][1] for l in LQ], (k, tt)
        assert ('Z%d' % k) not in [l[2][1] for l in LQ], (k, tt)
        vm.wait(a, 'W%d_%d' % (k, tt))
        for ft in range(9):
            c = acc(tt, ft, late)
            cin = c if k else ('0' if tt >= 2 else ar(GEL + 4 * tt, 4))
            a('v_mfma_f32_16x16x32_bf16 %s, %s, %s, %s' % (c, ar(Zbuf(k, ft), 4), ar(Wbuf(k, tt), 4), cin))
            pos += 1
            slots = 2 if k >= 13 else opt.get('slots', 2)
            credit = min(credit + lrate * (2.0 if pos < 40 else 1.0), 2.0)
            if LQ and credit >= 1.0 and LQ[0][0] <= pos:
                e, pre, ld = LQ.pop(0)
                for x in pre: a(x)
                emit(ld); credit -= 1.0; slots -= 1
            while FQ and FQ[0][0] <= pos and slots > 0:
                x = FQ[0][1]
                if isinstance(x, tuple) and x[0] == 'WAIT':
                    FQ.pop(0); vm.wait(a, x[1]); continue
                if cost(x) > slots and slots < (2 if k >= 13 else opt.get('slots', 2)): break
                FQ.pop(0); emit(x); slots -= cost(x)
    assert not LQ
    if FQ: a('s_nop 3')
    for x in FQ: emit(x[1])
    stamp(a, 15, 3)
    a('s_waitcnt lgkmcnt(0)')
    a('s_barrier')
    stamp(a, 15, 4)
    rd = []
    slots_ = [0, 1, 2, 3, 4, 5, 6, 7, 8]
    n = 0
    R = {}
    for sl in slots_:
        for p in range(3):
            R[(sl, p)] = Xregs[n]
            rd.append('ds_read_b128 %s, v10 offset:%d' % (vr(Xregs[n], 4), (p * 9 + sl) * 1024)); n += 1
    def tiles(sl):
        if sl < 8: return (sl & 1, 2 * (sl >> 1)), (sl & 1, 2 * (sl >> 1) + 1)
        return (0, 8), (1, 8)
    for x in rd[:12]: a(x)
    nissued = 12
    G = [freeY[0], freeY[1], freeY[2], freeY[3], freeY[4], freeY[5]]
    def unpack(sl):
        l = []
        tX, tY = tiles(sl)
        for n_, (j, ft) in enumerate((tX, tY)):
            g = G[(2 * sl + n_) % 6]
            for r in range(2): l.append('v_accvgpr_read_b32 v%d, a%d' % (g + 2 * r + 1, GEL + 4 * ft + 2 * j + r))
            for r in range(2):
                l.append('v_lshlrev_b32 v%d, 16, v%d' % (g + 2 * r, g + 2 * r + 1))
                l.append('v_and_b32 v%d, 0xffff0000, v%d' % (g + 2 * r + 1, g + 2 * r + 1))
        return l
    def finish(sl):
        l = []
        tX, tY = tiles(sl)
        o = 24 + 4 * (sl % 4)
        for n_, t in enumerate((tX, tY)):
            g = G[(2 * sl + n_) % 6]; c = ownV[t]
            for r in range(4): l.append('v_mul_f32 v%d, v%d, v%d' % (c + r, c + r, g + r))
        for n_, t in enumerate((tX, tY)):
            c = ownV[t]
            for r in range(2): l.append('v_cvt_pk_bf16_f32 v%d, v%d, v%d' % (o + 2 * n_ + r, c + 2 * r, c + 2 * r + 1))
        if sl < 8:
            l.append('buffer_store_dwordx4 %s, v1, s[48:51], s36 offen offset:%d sc1' % (vr(o, 4), (sl & 1) * 1024))
            if sl & 1: l.append('s_add_u32 s36, s36, 4096')
        else:
            l.append('buffer_store_dwordx4 %s, v1, s[48:51], s38 offen sc1' % vr(o, 4))
        return l
    for x in unpack(0) + unpack(1): a(x)
    for sl in slots_:
        fill = []
        if sl >= 1: fill += ['s_nop 0'] * 0
        fl = (unpack(sl + 1) if 1 <= sl < 8 else [])
        fin = finish(sl - 1) if sl >= 1 else []
        tX, tY = tiles(sl)
        cnt = 0
        for p in range(3):
            a('s_waitcnt lgkmcnt(%d)' % (nissued - (3 * sl + p) - 1))
            for (t, Sreg) in ((tX, 18), (tY, 16)):
                c = vr(ownV[t], 4)
                a('v_mfma_f32_16x16x32_bf16 %s, %s, %s, %s' % (c, vr(Sreg, 4), vr(R[(sl, p)], 4), c))
                cnt += 1
                for _ in range(4):
                    if fl: a(fl.pop(0))
                    elif cnt >= 3 and fin: a(fin.pop(0))
            if nissued < 27:
                a(rd[nissued]); nissued += 1
        for x in fl + fin: a(x)
    a('s_nop 7')
    for x in finish(8): a(x)
    stamp(a, 15, 5)
    stamp_flush(a, 15, 2, 14, 6)
    a.label('K2_end')
    a('s_endpgm')
    return kernel_desc(name, 512, 256), '; @launch kernel=k2_kernel grid=(256,1,1) block=(256,1,1) lds=%d' % K2_LDS

def pr(r): return 'v[%d:%d]' % (r, r + 1)
def gelu_pure(X, T, n):
    P = [(X + 2 * i, T + 2 * i) for i in range(n // 2)]
    G = []
    for x, t in P: G.append('v_pk_mul_f32 %s, %s, %s' % (pr(t), pr(x), pr(x)))
    for x, t in P: G.append('v_pk_fma_f32 %s, %s, v[4:5], v[6:7]' % (pr(t), pr(t)))
    for x, t in P: G.append('v_pk_mul_f32 %s, %s, %s' % (pr(t), pr(x), pr(t)))
    for r in range(n): G.append('v_exp_f32 v%d, v%d' % (T + r, T + r))
    for x, t in P: G.append('v_pk_add_f32 %s, %s, v[12:13]' % (pr(t), pr(t)))
    for r in range(n): G.append('v_rcp_f32 v%d, v%d' % (T + r, T + r))
    for x, t in P: G.append('v_pk_mul_f32 %s, %s, %s' % (pr(x), pr(x), pr(t)))
    return G

class Sched:
    def __init__(self, a):
        self.a = a; self.vm = VM(); self.LQ = []; self.FQ = []; self.t = 0.0; self.free = 0.0; self.pos = 0; self.CS = 70; self.BQ = []
    def emit(self, x):
        if callable(x): x()
        elif isinstance(x, tuple):
            self.a(x[0]); self.vm.issue(x[1])
        else: self.a(x)
    def pending(self, tag): return tag in [l[2][1] for l in self.LQ]
    def pump(self):
        LQ = self.LQ
        if LQ and LQ[0][0] <= self.pos and (LQ[0][3] == 0 or self.t >= self.free):
            e, pre, ld, c_ = LQ.pop(0)
            for x in pre: self.a(x)
            self.emit(ld)
            self.free = max(self.free, self.t - 100) + c_
            return 1
        return 0
    def force(self, tag):
        while self.pending(tag):
            e, pre, ld, c_ = self.LQ.pop(0)
            assert e <= self.pos, (tag, e, self.pos, ld)
            print('forced', ld[1], 'at', self.pos, file=sys.stderr)
            for x in pre: self.a(x)
            self.emit(ld)
    def wait(self, tag):
        self.force(tag); self.vm.wait(self.a, tag)
    def fill(self, slots, dt=17, flush=False):
        self.t += dt
        slots -= self.pump()
        FQ = self.FQ; ns = 0
        while FQ and (FQ[0][0] <= self.pos or flush) and slots > 0:
            x = FQ[0][1]
            if isinstance(x, tuple) and x[0] == 'WAIT':
                if self.pending(x[1]): break
                FQ.pop(0); self.vm.wait(self.a, x[1]); continue
            if isinstance(x, tuple) and x[0] == 'BLOCK':
                FQ.pop(0)
                for y in x[1]: self.emit(y)
                slots -= 2
                continue
            if isinstance(x, tuple):
                if self.t < self.free and not flush: break
                self.free = max(self.free, self.t - 100) + self.CS
            if cost(x) > slots and slots < 2: break
            FQ.pop(0); self.emit(x); slots -= cost(x)
            if cost(x) == 0:
                ns += 1
                if ns % 2 == 0: slots -= 1
        self.back(slots)
    def back(self, slots):
        BQ = self.BQ
        while BQ and BQ[0][0] <= self.pos and slots > 0:
            x = BQ.pop(0)[1]
            if isinstance(x, tuple) and x[0] == 'WAIT': self.vm.wait(self.a, x[1])
            else:
                self.emit(x); slots -= 1
            if not BQ: self.bqend = self.pos
    def pure(self, l):
        for x in l:
            self.emit(x)
            if isinstance(x, str):
                self.t += 4.4 * max(cost(x), 0.5)
                if x.startswith('v_') and 'vcc' not in x: self.pump()

def gen_kf(a, opt={}):
    name = 'k1_kernel'
    kernel_begin(a, name)
    a('s_cmp_ge_u32 s2, 256')
    a('s_cbranch_scc1 KF_end')
    a('s_load_dwordx2 s[48:49], s[0:1], 104')
    a('s_load_dwordx8 s[4:11], s[0:1], 8')
    a('s_load_dwordx4 s[12:15], s[0:1], 64')
    a('s_load_dwordx2 s[16:17], s[0:1], 80')
    stamp(a, 15, 0)
    wave_lane(a, 3)
    a('v_lshlrev_b32 v1, 4, v0')
    wg_map_16x16(a)
    a('s_mov_b32 s19, s22')
    a('s_lshl_b32 s22, s22, 2')
    a('s_add_u32 s22, s22, s3')
    a('s_mul_i32 s60, s22, %d' % (36 * 1024))
    a('s_mul_i32 s61, s23, %d' % (324 * 1024))
    a('s_mul_i32 s62, s3, 3072')
    a('s_add_u32 s61, s61, s62')
    a('s_add_u32 s61, s61, 0x%x' % WIN_F)
    a('s_mov_b32 s50, 0x%x' % WS_END)
    a('s_mov_b32 s51, 0x00020000')
    a('v_add_u32 v2, %d, v1' % 131072)
    a('s_waitcnt lgkmcnt(0)')
    if WS_BASE:
        a('s_add_u32 s48, s48, 0x%x' % WS_BASE)
        a('s_addc_u32 s49, s49, 0')
    sc = Sched(a); vm = sc.vm; LQ = sc.LQ; FQ = sc.FQ
    C2 = 184; T = 112; BR = 64; NB = 8
    def A(ks, j): return ar((ks * 2 + j) * 4, 4)
    def slotB(u): return ((u - 1) % 13) * 12288
    def dmaB(u):
        out = []
        for i in range(3):
            pre = ['s_add_u32 m0, s62, %d' % slotB(u), 's_add_u32 s63, s61, %d' % (12 * u * 1024)] if i == 0 else []
            out.append((pre, ('buffer_load_dwordx4 v1, s[48:51], s63 offen offset:%d lds' % (1024 * i), 'B%d' % u)))
        return out
    def ldA(ks):
        out = []
        for j in range(2):
            pre = ['s_add_u32 s64, s60, %d' % (ks * 2048)] if (j == 0 and ks % 2 == 0) else []
            out.append((pre, ('buffer_load_dwordx4 %s, v1, s[48:51], s64 offen offset:%d' % (A(ks, j), (ks % 2) * 2048 + j * 1024), 'A%d' % ks)))
        return out
    LOOK = NB - 1
    P1 = 324
    bars = list(range(14)) + [14, 17, 19, 21, 23, 25]
    def bar_cover(u):
        if u == 25: return [25, 26]
        nxt = [b for b in bars if b > u]
        return list(range(u, nxt[0]))
    def barpos(u): return max(0, 2 * (12 * u - LOOK + 1))
    def war_ok(u):
        if u < 13: return 0
        if u >= 25: return P1 + 1
        return barpos(u - 13 + 2) + 1
    LEAD = opt.get('lead1', 64)
    ev = [(barpos(u), 0, u) for u in range(14)] + [(18 * ks, 1, ks) for ks in range(18)]
    ev.sort()
    for need, kind, n in ev:
        for pre, ld in (dmaB(n) if kind == 0 else ldA(n)):
            LQ.append((max(need - LEAD, war_ok(n) if kind == 0 else 0), pre, ld, 0))
    CB = opt.get('cB', 80)
    for _ in range(opt.get('pro', 10)):
        e, pre, ld, c_ = LQ.pop(0)
        for x in pre: a(x)
        sc.emit(ld)
    c = Cap()
    c('s_mul_i32 s71, s22, 144')
    c('s_mul_i32 s70, s23, 9')
    c('s_add_u32 s71, s71, s70')
    c('s_lshl_b32 s71, s71, 10')
    c('s_add_u32 s71, s71, 0x%x' % Z2_F)
    c('s_lshl_b32 s72, s22, 12')
    c('s_add_u32 s72, s72, 0x%x' % PSTAT)
    c('s_lshl_b32 s73, s23, 8')
    c('s_add_u32 s76, s73, 0x%x' % ZFLAG)
    c('s_add_u32 s73, s73, s72')
    c('s_lshl_b32 s77, s22, 2')
    c('s_add_u32 s77, s77, s76')
    c('s_lshl_b32 s78, s3, 6')
    c('s_add_u32 s76, s76, s78')
    srd(c, 24, 4, S * D * 2)
    srd(c, 28, 6, S * D * 2)
    srd(c, 32, 8, D * 8)
    srd(c, 36, 10, D * S * 2)
    srd(c, 40, 12, S * S * 2)
    srd(c, 44, 16, FH * D * 2)
    srd(c, 52, 14, S * 2)
    c('s_mov_b32 s74, 0x11111111')
    c('s_mov_b32 s75, 0x11111111')
    for r in range(2):
        c('v_mov_b32 v%d, 0x%x' % (4 + r, f2u(K2C)))
        c('v_mov_b32 v%d, 0x%x' % (6 + r, f2u(K1C)))
        c('v_mov_b32 v%d, 1.0' % (12 + r))
    c('v_mov_b32 v11, 0x%x' % f2u(1.0 / FH))
    c('v_add_u32 v3, s78, v0')
    for x in kv_addr(3, 40, 's2'): c(x)
    c('v_lshrrev_b32 v10, 4, v0')
    c('v_bfe_u32 v9, v0, 2, 2')
    c('v_lshlrev_b32 v54, 8, v9')
    c('v_lshl_add_u32 v54, v10, 6, v54')
    c('v_and_b32 v8, 3, v0')
    c('v_lshl_add_u32 v54, v8, 4, v54')
    c('v_lshrrev_b32 v55, 2, v1')
    c('v_lshl_add_u32 v52, v9, 3, v8')
    c('v_lshlrev_b32 v52, 1, v52')
    c('s_lshl_b32 s79, s22, 6')
    c('s_mov_b32 s94, 200000')
    c('v_lshrrev_b32 v8, 3, v0')
    c('v_lshrrev_b32 v9, 2, v8')
    c('v_lshlrev_b32 v9, 3, v9')
    c('v_and_b32 v8, 3, v8')
    c('v_add_u32 v8, v8, v9')
    c('v_lshlrev_b32 v8, 12, v8')
    c('v_and_b32 v9, 7, v0')
    c('v_xor_b32 v9, v9, v10')
    c('v_lshl_add_u32 v46, v9, 4, v8')
    c('v_xor_b32 v47, 64, v46')
    c('v_add_u32 v47, %d, v47' % (16 * 4096 - 1024))
    c('v_add_u32 v48, %d, v46' % (4 * 4096 - 2048))
    c('v_add_u32 v49, %d, v47' % (4 * 4096 - 2048))
    c('s_lshl_b32 s80, s19, 19')
    c('s_lshl_b32 s81, s3, 10')
    c('s_add_u32 s80, s80, s81')
    for p in range(4):
        c('s_add_u32 s81, s3, %d' % p)
        c('s_and_b32 s81, s81, 3')
        c('s_lshl_b32 s81, s81, 17')
        c('s_add_u32 s%d, s81, s80' % (84 + p))
    c('s_lshl_b32 s82, s3, 12')
    c('s_mul_i32 s83, s3, %d' % (16 * 144 * 1024))
    c('s_mul_i32 s81, s23, 9216')
    c('s_add_u32 s83, s83, s81')
    c('s_add_u32 s83, s83, 0x%x' % Z2_F)
    c('s_lshr_b32 s90, s23, 2')
    c('s_lshl_b32 s90, s90, %d' % (8 if opt.get('krot', 1) else 20))
    FQ += [(4, x) for x in c.l]
    tmode = opt.get('tmode', 2)
    nb1 = opt.get('nb1', 19) if tmode else 27
    for u in range(14, nb1):
        for pre, ld in dmaB(u): LQ.append((war_ok(u), pre, ld, CB))
    LQ.append((P1 - 40, [], ('buffer_load_ushort v50, v52, s[52:55], s79 offen', 'b'), 20))
    LQ.append((P1 - 40, [], ('buffer_load_ushort v51, v52, s[52:55], s79 offen offset:8', 'b'), 20))
    if tmode:
        kl = kv_loads(40, 16)
        for n_, x in enumerate(kl): LQ.append((0, [], x, opt.get('cK', 30) if n_ < 19 else opt.get('cT', 1500)))
        for u in range(nb1, 27):
            for pre, ld in dmaB(u): LQ.append((war_ok(u), pre, ld, CB))
    state = {'seg': 2, 'nrd': 0}
    def rdB(n):
        u = n // 12
        if n % 12 == 0 and u in bars:
            if bar_cover(u): sc.wait('B%d' % bar_cover(u)[-1])
            a('s_barrier')
        off = slotB(u) + (n % 12) * 1024
        seg = off // 65536
        if seg != state['seg']:
            a('v_add_u32 v2, %d, v1' % (seg * 65536))
            state['seg'] = seg
        a('ds_read_b128 %s, v2 offset:%d' % (vr(BR + (n % NB) * 4, 4), off % 65536))
        state['nrd'] = n + 1
    def useB(n):
        a('s_waitcnt lgkmcnt(%d)' % (state['nrd'] - 1 - n))
        return vr(BR + (n % NB) * 4, 4)
    for n in range(LOOK): rdB(n)
    for ks in range(18):
        if ks == 1: stamp(a, 15, 1)
        sc.wait('A%d' % ks)
        for jt in range(9):
            n = ks * 9 + jt
            b = useB(n)
            for j in range(2):
                cc = vr(C2 + jt * 8 + j * 4, 4)
                a('v_mfma_f32_16x16x32_bf16 %s, %s, %s, %s' % (cc, A(ks, j), b, cc if ks else '0'))
                sc.pos += 1
                sc.fill(2 if j == 0 else 1, 20)
            if n + LOOK < 168: rdB(n + LOOK)
    assert not FQ
    a('s_waitcnt lgkmcnt(0)')
    a('s_barrier')
    sc.pos += 1
    stamp(a, 15, 2)
    G = gelu_pure(C2, T, 72)
    SU = 96; SQ = 104
    for jt in range(9):
        for i in range(4):
            x = C2 + 8 * jt + 2 * i
            if jt == 0:
                G.append('v_pk_mul_f32 %s, %s, %s' % (pr(SQ + 2 * i), pr(x), pr(x)))
            else:
                G.append('v_pk_add_f32 %s, %s, %s' % (pr(SU + 2 * i), pr(SU + 2 * i) if jt > 1 else pr(x - 8), pr(x)))
                G.append('v_pk_fma_f32 %s, %s, %s, %s' % (pr(SQ + 2 * i), pr(x), pr(x), pr(SQ + 2 * i)))
    sc.pure(G)
    TT = T; U = 60
    assert not sc.pending('KV')
    a('s_nop 0')
    for e in range(8): a('v_add_f32 v%d, v%d, v%d row_ror:8 bank_mask:0x3' % (TT + e, SU + e, SU + e))
    for e in range(8): a('v_add_f32 v%d, v%d, v%d row_ror:8 bank_mask:0xc' % (TT + e, SQ + e, SQ + e))
    for i in range(4): a('v_add_f32 v%d, v%d, v%d row_half_mirror bank_mask:0x5' % (U + i, TT + 2 * i, TT + 2 * i))
    for i in range(4): a('v_add_f32 v%d, v%d, v%d row_half_mirror bank_mask:0xa' % (U + i, TT + 2 * i + 1, TT + 2 * i + 1))
    for i in range(4): a('v_add_f32 v%d, v%d, v%d quad_perm:[1,0,3,2]' % (U + i, U + i, U + i))
    for i in range(4): a('v_add_f32 v%d, v%d, v%d quad_perm:[2,3,0,1]' % (U + i, U + i, U + i))
    sc.force('b')
    a('s_mov_b64 exec, s[74:75]')
    sc.emit(('buffer_store_dwordx4 %s, v55, s[48:51], s73 offen sc1' % vr(U, 4), 'ST'))
    a('s_mov_b64 exec, -1')
    stamp(a, 15, 3)
    rdB(168)
    P1 = sc.pos
    PL = 96
    polls = [('buffer_load_dwordx4 %s, v54, s[48:51], s72 offen offset:%d sc1' % (vr(PL + 4 * i, 4), i * 1024), 'PL') for i in range(4)]
    if tmode:
        sc.BQ += [(P1 + opt.get('kvc', 4), x) for x in [('WAIT', 'KV')] + kv_compute(16, T + 36) + kv_store(3, 40, T + 36, 's2')]
    FQ.append((P1 + opt.get('pollpos', 40), ('BLOCK', polls)))
    side = opt.get('side', 0)
    tp = P1 + opt.get('tchpos', 75)
    if side & 2: LQ.append((tp, [], ('buffer_load_dword v57, v56, s[40:43], 0 offen', 'TCH'), opt.get('cT', 300)))
    def check():
        a('s_branch KF_chk')
        a.label('KF_poll')
        for x in polls: a(x[0])
        a('s_waitcnt vmcnt(0)')
        a.label('KF_chk')
        a('v_max3_u32 v8, v%d, v%d, v%d' % (PL, PL + 1, PL + 2))
        a('v_max3_u32 v9, v%d, v%d, v%d' % (PL + 3, PL + 4, PL + 5))
        for i in range(6, 14, 4):
            a('v_max3_u32 v8, v8, v%d, v%d' % (PL + i, PL + i + 1))
            a('v_max3_u32 v9, v9, v%d, v%d' % (PL + i + 2, PL + i + 3))
        a('v_max3_u32 v8, v8, v%d, v%d' % (PL + 14, PL + 15))
        a('v_max_u32 v8, v8, v9')
        a('v_cmp_eq_u32 vcc, -1, v8')
        a('s_sub_u32 s94, s94, 1')
        a('s_cmp_eq_u32 s94, 0')
        a('s_cbranch_scc1 KF_polldone')
        a('s_cbranch_vccnz KF_poll')
        a.label('KF_polldone')
        stamp(a, 15, 4)
    cp = P1 + opt.get('chkpos', 85)
    FQ.append((cp, ('WAIT', 'PL')))
    FQ.append((cp, ('BLOCK', [check])))
    c = Cap()
    for r in range(4): c('v_add_f32 v%d, v%d, v%d' % (PL + r, PL + r, PL + 4 + r))
    for r in range(4): c('v_add_f32 v%d, v%d, v%d' % (PL + 8 + r, PL + 8 + r, PL + 12 + r))
    for r in range(4): c('v_add_f32 v%d, v%d, v%d' % (PL + r, PL + r, PL + 8 + r))
    for sh in (4, 8):
        for r in range(4): c('v_add_f32 v%d, v%d, v%d row_ror:%d' % (PL + r, PL + r, PL + r, sh))
    M = 56; Vv = 60
    for r in range(4): c('v_mul_f32 v%d, v%d, v11 quad_perm:[0,1,0,1]' % (M + r, PL + r))
    for r in range(4): c('v_mul_f32 v%d, v%d, v11 quad_perm:[2,3,2,3]' % (Vv + r, PL + r))
    for r in range(4): c('v_fma_f32 v%d, -v%d, v%d, v%d' % (Vv + r, M + r, M + r, Vv + r))
    for r in range(4): c('v_max_f32 v%d, 0, v%d' % (Vv + r, Vv + r))
    def round2(r):
        c('v_cvt_pk_bf16_f32 v%d, v%d, v%d' % (r + 1, r, r + 1))
        c('v_lshlrev_b32 v%d, 16, v%d' % (r, r + 1))
        c('v_and_b32 v%d, 0xffff0000, v%d' % (r + 1, r + 1))
    round2(Vv); round2(Vv + 2)
    for r in range(4): c('v_add_f32 v%d, 0x%x, v%d' % (Vv + r, f2u(1e-5), Vv + r))
    round2(Vv); round2(Vv + 2)
    for r in range(4): c('v_sqrt_f32 v%d, v%d' % (Vv + r, Vv + r))
    round2(M); round2(M + 2)
    round2(Vv); round2(Vv + 2)
    for r in range(4): c('v_rcp_f32 v%d, v%d' % (Vv + r, Vv + r))
    c('s_nop 0')
    for r in range(4): c('v_mul_f32 v%d, -v%d, v%d' % (M + r, M + r, Vv + r))
    SC = PL; BI = PL + 8
    for e in range(8):
        p = e & 1
        c('v_mov_b32 v%d, v%d quad_perm:[%d,%d,%d,%d]' % (SC + e, Vv + (e >> 1), p, p, p, p))
    for e in range(8):
        p = e & 1
        c('v_mov_b32 v%d, v%d quad_perm:[%d,%d,%d,%d]' % (BI + e, M + (e >> 1), p, p, p, p))
    for jt in range(9):
        b = C2 + jt * 8
        for i in range(4): c('v_pk_fma_f32 %s, %s, %s, %s' % (pr(b + 2 * i), pr(b + 2 * i), pr(SC + 2 * i), pr(BI + 2 * i)))
        for i in range(4): c('v_cvt_pk_bf16_f32 v%d, v%d, v%d' % (b + i, b + 2 * i, b + 2 * i + 1))
        if jt in (4, 8): c('s_add_u32 s71, s71, 4096')
        c(('buffer_store_dwordx4 %s, v1, s[48:51], s71 offen offset:%d sc1' % (vr(b, 4), (jt % 4) * 1024), 'S2'))
    npure = opt.get('npure', 1)
    GEL = 72; ZB = 144
    BQ = 252 - 4
    CW = opt.get('cW', 85)
    def dmaW(n, early, cst):
        kp, p = divmod(n, 4)
        for i in range(4):
            pre = ['s_add_u32 s88, s90, %d' % (kp * 128), 's_and_b32 s88, s88, 1023', 's_add_u32 m0, s82, %d' % ((n % 10) * 16384), 's_add_u32 s88, s88, s%d' % (84 + p)] if i == 0 else []
            LQ.append((early, pre, ('buffer_load_dwordx4 v%d, s[40:43], s88 offen offset:%d lds' % (WV + i, 1024 * i), 'W%d' % n), cst))
    WV = 46; ZV = [1, 58, 59]
    def Zbuf(k, ft): return ZB + 36 * (k % 3) + 4 * ft
    def ldZ(k, ft, early, cst):
        pre = ['s_add_u32 s89, s90, %d' % (k * 64), 's_and_b32 s89, s89, 1023', 's_mul_i32 s89, s89, 2304', 's_add_u32 s89, s89, s83'] if ft == 0 else []
        return (early, pre, ('buffer_load_dwordx4 %s, v%d, s[48:51], s89 offen offset:%d sc1' % (ar(Zbuf(k, ft), 4), ZV[ft // 4], (ft % 4) * 1024), 'Z%d' % k), cst)
    def wfree(n):
        u = 14 + (16 * (n + 1) + 11) // 12 - 1
        ok = [b for b in bars if b >= u + 2]
        return barpos(ok[0]) + 3 if ok else 100000
    CW0 = opt.get('cW0', 150)
    def after_z2():
        for n in range(10):
            if wfree(n) < 100000: dmaW(n, wfree(n), CW0); wdone.append(n)
    wdone = []; marks0 = {}
    blocks = [[]]
    for x in c.l:
        blocks[-1].append(x)
        if isinstance(x, tuple): blocks.append([])
    blocks[opt.get('wstart', 0)].append(after_z2)
    for n_, bl in enumerate(blocks):
        FQ.append((cp + opt.get('stsp', 14) * min(n_, 8), ('BLOCK', bl)))
    marks = {}
    def publish():
        vm.wait(a, 'S2')
        a('v_mov_b32 v8, 1')
        a('s_mov_b64 exec, 1')
        sc.emit(('buffer_store_dword v8, v1, s[48:51], s77 offen sc1', 'FL'))
        a('s_mov_b64 exec, -1')
        stamp(a, 15, 5)
    fpoll = ('buffer_load_dword v14, v9, s[48:51], s76 offen sc1', 'FP')
    def fcheck():
        vm.wait(a, 'FP')
        a('s_branch KF_fchk')
        a.label('KF_fpoll')
        a(fpoll[0])
        a('s_waitcnt vmcnt(0)')
        a.label('KF_fchk')
        a('v_cmp_ne_u32 vcc, 1, v14')
        a('s_sub_u32 s94, s94, 1')
        a('s_cmp_eq_u32 s94, 0')
        a('s_cbranch_scc1 KF_fdone')
        a('s_cbranch_vccnz KF_fpoll')
        a.label('KF_fdone')
        LQ[0:0] = [ldZ(k, ft, 0, CW) for k in range(2) for ft in range(9)]
        LQ.extend([ldZ(2, ft, 0, CW) for ft in range(9)])
        stamp(a, 15, 6)
    FQ.append((cp + opt.get('pubd', 400), ('BLOCK', [publish])))
    FQ.append((0, ('BLOCK', ['v_and_b32 v9, 60, v55', 'v_add_u32 v58, 4096, v1', 'v_add_u32 v59, 8192, v1'])))
    for jt in range(9):
        cb_ = T + jt * 8
        for ks in range(18):
            n = 162 + jt * 18 + ks
            b = useB(n)
            for j in range(2):
                cc = vr(cb_ + j * 4, 4)
                a('v_mfma_f32_16x16x32_bf16 %s, %s, %s, %s' % (cc, b, A(ks, j), cc if ks else '0'))
                sc.pos += 1
                if j == 0: sc.fill(2, 34)
                elif ks % opt.get('kvj1', 2) == 0: sc.back(1)
            if n + LOOK < 324: rdB(n + LOOK)
    print('KF phase2 leftover fillers', len(FQ), 'loads', len(LQ), 'kv done at', sc.bqend - P1, file=sys.stderr)
    assert not sc.BQ and sc.bqend - P1 < 176
    while FQ: sc.fill(2, 8, flush=True)
    a('s_barrier')
    for n in range(10):
        if n not in wdone: dmaW(n, 0, CW0 if n < 8 else CW)
    if side & 1:
        kp_ = opt.get('kvq', 0)
        LQ[kp_:kp_] = [(0, [], x, opt.get('cK', 40)) for x in kv_loads(40, 16)]
    G = gelu_pure(T, C2, 72)
    G[opt.get('fcp', 230):opt.get('fcp', 230)] = [fcheck]
    G[opt.get('fpp', 140):opt.get('fpp', 140)] = [fpoll]
    for ft in range(9):
        for r in range(8): G.append('v_accvgpr_write_b32 a%d, v%d' % (GEL + 8 * ft + r, T + 8 * ft + r))
    G += ['v_lshlrev_b32 v50, 16, v50', 'v_lshlrev_b32 v51, 16, v51']
    for r in range(4): G.append('v_accvgpr_write_b32 a%d, v50' % (252 + r))
    for r in range(4): G.append('v_accvgpr_write_b32 a%d, v51' % (68 + r))
    sc.pure(G)
    if side & 1:
        sc.wait('KV')
        kst = kv_store(3, 40, 64, 's2')
        sc.pure(kv_compute(16, 64, pk=True) + kst)
    for i in range(4): a('v_mov_b32 v%d, v%d' % (4 + i, 46 + i))
    a('v_add_u32 v2, 4096, v1')
    a('v_add_u32 v3, 8192, v1')
    rest = list(LQ); del LQ[:]
    def retarget(x):
        t = x[2][0]
        for i in range(4): t = t.replace('dwordx4 v%d, s[40:43]' % (46 + i), 'dwordx4 v%d, s[40:43]' % (4 + i))
        t = t.replace(', v58, s[48', ', v2, s[48').replace(', v59, s[48', ', v3, s[48')
        return (0, x[1], (t, x[2][1]), x[3])
    rest = [retarget(x) for x in rest]
    print('KF loads left at stage 2 start', len(rest), file=sys.stderr)
    WV = 4; ZV = [1, 2, 3]
    a('v_and_b32 v8, 15, v0')
    a('v_lshrrev_b32 v11, 1, v8')
    a('v_xor_b32 v11, v11, v10')
    a('v_lshlrev_b32 v8, 7, v8')
    a('v_lshl_add_u32 v8, v11, 4, v8')
    a('v_add_u32 v12, s82, v8')
    if DBG['on']:
        stamp(a, 15, 7)
        a('s_lshl_b32 s96, s2, 3')
        a('s_add_u32 s96, s96, s3')
        a('s_lshl_b32 s96, s96, 6')
        a('s_add_u32 s96, s96, 0x%x' % (STAMP + 1 * 256 * 8 * 64))
        a('v_lshlrev_b32 v8, 2, v0')
        a('s_mov_b64 exec, 0xffff')
        sc.emit(('buffer_store_dword v15, v8, s[48:51], s96 offen', 'DB'))
        a('s_mov_b64 exec, -1')
        stamp(a, 15, 0)
    NO = 40; WR = 16; NW = 4
    ownV = {}
    def acc(tt, ft, late=False):
        if tt < 2:
            return vr(ownV[(tt, ft)], 4) if late else ar((tt * 9 + ft) * 4, 4)
        return vr(NO + ((tt - 2) * 9 + ft) * 4, 4)
    groups = []
    for k in range(14): groups += [(k, tt) for tt in range(8)]
    groups += [(14, 0), (14, 1)]
    for tt in range(2, 8): groups += [(14, tt), (15, tt)]
    groups += [(15, 0), (15, 1)]
    sc.pos = 0
    gend = {g: 9 * (i + 1) for i, g in enumerate(groups)}
    stepend = {k: max(gend[(k, tt)] for tt in range(8)) for k in range(16)}
    CZ = opt.get('cZ', 60)
    ev = []
    for k in range(3, 16):
        e0 = stepend[k - 3]
        for ft in range(9): ev.append((72 * (k - 2) + 8 * ft, ldZ(k, ft, e0, CZ)))
    wsp_ = opt.get('wsp', 42)
    for n in range(10, 32):
        kp, p = divmod(n - 10, 4)
        e0 = gend[(2 * kp + 1, 2 * p + 1)] - 9 + 1
        m = len(LQ); dmaW(n, e0, CZ); l = LQ[m:]; del LQ[m:]
        for i, x in enumerate(l): ev.append((wsp_ * (n - 10) + 82 + (wsp_ // 4) * i, x))
    ev.sort(key=lambda x: x[0])
    LQ += rest + [(max(x[1][0], x[0] - opt.get('wslack', 1000)),) + x[1][1:] for x in ev]
    sc.free = sc.t
    wst = {'n': 0, 'key': None}
    def rdW():
        n = wst['n']
        if n >= len(groups): return
        k, tt = groups[n]
        sn = 4 * (k >> 1) + (tt >> 1)
        sc.wait('W%d' % sn)
        off = (sn % 10) * 16384 + (tt & 1) * 2048
        key = (off // 65536, k & 1)
        if key != wst['key']:
            if k & 1:
                a('v_xor_b32 v13, 64, v12')
                if key[0]: a('v_add_u32 v13, %d, v13' % (65536 * key[0]))
            else:
                a('v_add_u32 v13, %d, v12' % (65536 * key[0]))
            wst['key'] = key
        a('ds_read_b128 %s, v13 offset:%d' % (vr(WR + 4 * (n % NW), 4), off % 65536))
        lg.append('R%d' % n)
        wst['n'] = n + 1
    lg = []
    WL = 3
    for _ in range(WL): rdW()
    c = Cap()
    c('s_lshr_b32 s56, s22, 1')
    c('s_mul_i32 s56, s56, 72')
    c('s_lshr_b32 s57, s23, 1')
    c('s_mul_i32 s57, s57, 9')
    c('s_add_u32 s56, s56, s57')
    c('s_lshl_b32 s56, s56, 12')
    c('s_and_b32 s57, s22, 1')
    c('s_lshl_b32 s57, s57, 11')
    c('s_add_u32 s56, s56, s57')
    c('s_add_u32 s56, s56, 0x%x' % H_F)
    c('s_and_b32 s57, s23, 1')
    c('s_lshl_b32 s58, s57, 10')
    c('s_add_u32 s58, s58, s56')
    c('s_add_u32 s58, s58, %d' % (8 * 4096))
    c('s_lshl_b32 s57, s57, 14')
    c('s_add_u32 s56, s56, s57')
    FQ += [(20, x) for x in c.l]
    last = [(28 + p) % 10 for p in range(4)]
    freeS = [s_ for s_ in range(10) if s_ not in last]
    c = Cap()
    c('s_lshl_b32 s60, s3, 8')
    c('s_add_u32 s60, s60, s2')
    c('s_mul_hi_u32 s61, s60, 0x1C71C71D')
    c('s_mul_i32 s62, s61, 9')
    c('s_sub_u32 s62, s60, s62')
    c('s_mul_hi_u32 s63, s61, 0x1C71C71D')
    c('s_mul_i32 s64, s63, 9')
    c('s_sub_u32 s64, s61, s64')
    c('s_mul_i32 s65, s63, 288')
    c('s_lshr_b32 s66, s64, 2')
    c('s_mul_i32 s66, s66, 144')
    c('s_and_b32 s67, s64, 3')
    c('s_lshl_b32 s67, s67, 5')
    c('s_add_u32 s66, s66, s67')
    c('s_cmp_eq_u32 s64, 8')
    c('s_cselect_b32 s66, 128, s66')
    c('s_cselect_b32 s67, 128, 0')
    c('s_add_u32 s65, s65, s66')
    c('s_add_u32 s66, s65, s67')
    c('s_lshl_b32 s67, s62, 7')
    c('s_add_u32 s68, s82, %d' % (freeS[0] * 16384))
    c('s_cmp_ge_u32 s60, 648')
    c('s_cselect_b32 s46, 0, s46')
    c('s_cselect_b32 s69, 0x40000000, 0')
    FQ.append((100, ('BLOCK', c.l)))
    c = Cap()
    wout_store_addr2(c)
    FQ += [(110, x) for x in c.l]
    for j in range(4):
        LQ.append((stepend[13], ['s_add_u32 s70, s%d, %d' % (65 if j < 2 else 66, 8 * j), 's_mul_i32 s70, s70, 1152', 's_add_u32 m0, s68, %d' % (1024 * j), 's_add_u32 s70, s70, s67'],
                   ('buffer_load_dwordx4 v36, s[44:47], s70 offen lds', 'WO'), 60))
    LQ.append((stepend[13], [], ('buffer_load_dword v39, v38, s[36:39], 0 offen', 'TCH'), 60))
    outS = freeS[1:] + [last[1], last[2]]
    def outoff(x): return outS[x // 4] * 16384 + (x % 4) * 1024
    e13 = stepend[13]
    FQ.append((e13, 'v_add_u32 v8, s82, v1'))
    FQ.append((e13, 'v_add_u32 v9, 65536, v8'))
    FQ.append((e13, 'v_add_u32 v11, 131072, v8'))
    segreg = [8, 9, 11]
    freeY = []; Xregs = []
    own_list = [(j, ft) for j in range(2) for ft in range(9)]
    def base(tt, ft): return NO + ((tt - 2) * 9 + ft) * 4
    def dsw(X, off):
        def f():
            a('ds_write_b128 v%d, %s offset:%d' % (segreg[off // 65536], vr(X, 4), off % 65536)); lg.append('w')
        return f
    wr_order = {}
    def packwr(X, Y, p, slot, e):
        for r in range(2): FQ.append((e, 'v_cvt_pk_bf16_f32 v%d, v%d, v%d' % (X + r, X + 2 * r, X + 2 * r + 1)))
        for r in range(2): FQ.append((e, 'v_cvt_pk_bf16_f32 v%d, v%d, v%d' % (X + 2 + r, Y + 2 * r, Y + 2 * r + 1)))
        x = len(Xregs); wr_order[(p, slot)] = x
        FQ.append((e, ('BLOCK', [dsw(X, outoff(x))])))
        Xregs.append(X)
        if own_list:
            o = own_list.pop(0); ownV[o] = Y
            for r in range(4): FQ.append((e, 'v_accvgpr_read_b32 v%d, a%d' % (Y + r, (o[0] * 9 + o[1]) * 4 + r)))
        else:
            freeY.append(Y)
    for tt in range(2, 8):
        p = tt // 2; j = tt & 1
        g0 = gend[(15, tt)] - 9
        for i in range(4): packwr(base(tt, 2 * i), base(tt, 2 * i + 1), p, 2 * i + j, g0 + 2 * i + 2 + 7)
        if j == 1: packwr(base(tt - 1, 8), base(tt, 8), p, 8, g0 + 9 + 7)
    for n, (k, tt) in enumerate(groups):
        if sc.pos == 72: stamp(a, 15, 1)
        if sc.pos == 72 * 14: stamp(a, 15, 2)
        late = (k == 15 and tt < 2)
        if late:
            while any(isinstance(x[1], str) and 'accvgpr_read' in x[1] for x in FQ): sc.fill(2, 8, flush=True)
        sc.wait('Z%d' % k)
        idx_ = lg.index('R%d' % n)
        a('s_waitcnt lgkmcnt(%d)' % min(15, len(lg) - 1 - idx_))
        del lg[:idx_ + 1]
        for ft in range(9):
            cc = acc(tt, ft, late)
            cin = cc if k else ('0' if tt >= 2 else ar(252 if tt == 0 else 68, 4))
            a('v_mfma_f32_16x16x32_bf16 %s, %s, %s, %s' % (cc, ar(Zbuf(k, ft), 4), vr(WR + 4 * (n % NW), 4), cin))
            sc.pos += 1
            if ft == 1: rdW()
            else: sc.fill(2, 16)
    assert not LQ
    if FQ: a('s_nop 3')
    while FQ: sc.fill(2, 8, flush=True)
    stamp(a, 15, 3)
    for x in ['v_bfe_u32 v24, v0, 2, 2', 'v_cmp_eq_u32 vcc, v24, v10', 'v_and_b32 v24, 1, v0',
        'v_lshlrev_b32 v24, 4, v24', 'v_mov_b32 v25, 0x3f80', 'v_lshlrev_b32 v24, v24, v25', 'v_cndmask_b32 v24, 0, v24, vcc',
        'v_and_b32 v25, 2, v0', 'v_cmp_eq_u32 vcc, 0, v25', 'v_mov_b32 v16, 0', 'v_mov_b32 v17, 0', 'v_mov_b32 v20, 0', 'v_mov_b32 v21, 0',
        'v_cndmask_b32 v18, 0, v24, vcc', 'v_cndmask_b32 v19, v24, v21, vcc']: a(x)
    RB = {}
    pool = [2, 3, 4, 5, 6, 7, 12, 13, 14]
    for p in range(1, 4):
        a('s_sub_u32 s59, s3, %d' % p)
        a('s_and_b32 s59, s59, 3')
        a('s_lshl_b32 s59, s59, 12')
        segs = sorted({outoff(wr_order[(p, sl)]) // 65536 for sl in range(9)})
        for sg in segs:
            r = pool.pop(0); RB[(p, sg)] = r
            if sg: a('s_add_u32 s57, s59, %d' % (sg * 65536))
            a('v_add_u32 v%d, s%d, v1' % (r, 57 if sg else 59))
    a('s_waitcnt lgkmcnt(0)')
    a('s_barrier')
    stamp(a, 15, 4)
    rd = []; R = {}; n = 0
    for sl in range(9):
        for p in range(3):
            R[(sl, p)] = Xregs[n]
            off = outoff(wr_order[(p + 1, sl)])
            rd.append('ds_read_b128 %s, v%d offset:%d' % (vr(Xregs[n], 4), RB[(p + 1, off // 65536)], off % 65536)); n += 1
    def tiles(sl):
        if sl < 8: return (sl & 1, 2 * (sl >> 1)), (sl & 1, 2 * (sl >> 1) + 1)
        return (0, 8), (1, 8)
    for x in rd[:12]: a(x)
    nissued = 12
    Gq = freeY[:6]
    def unpack(sl):
        l = []
        for n_, (j, ft) in enumerate(tiles(sl)):
            g = Gq[(2 * sl + n_) % 6]
            for r in range(4): l.append('v_accvgpr_read_b32 v%d, a%d' % (g + r, GEL + 8 * ft + 4 * j + r))
        return l
    def finish(sl):
        l = []
        o = [24, 28, freeY[6], freeY[7]][sl % 4]
        for n_, t in enumerate(tiles(sl)):
            g = Gq[(2 * sl + n_) % 6]; cc = ownV[t]
            for r in range(4): l.append('v_mul_f32 v%d, v%d, v%d' % (cc + r, cc + r, g + r))
        for n_, t in enumerate(tiles(sl)):
            cc = ownV[t]
            for r in range(2): l.append('v_cvt_pk_bf16_f32 v%d, v%d, v%d' % (o + 2 * n_ + r, cc + 2 * r, cc + 2 * r + 1))
        if sl < 8:
            l.append('buffer_store_dwordx4 %s, v1, s[48:51], s56 offen offset:%d sc1' % (vr(o, 4), (sl & 1) * 1024))
            if sl & 1: l.append('s_add_u32 s56, s56, 4096')
        else:
            l.append('buffer_store_dwordx4 %s, v1, s[48:51], s58 offen sc1' % vr(o, 4))
        return l
    for x in unpack(0) + unpack(1): a(x)
    for sl in range(9):
        fl = (unpack(sl + 1) if 1 <= sl < 8 else [])
        fin = finish(sl - 1) if sl >= 1 else []
        if sl == 8: fin = ['s_nop 3'] + fin
        tX, tY = tiles(sl)
        cnt = 0
        for p in range(3):
            a('s_waitcnt lgkmcnt(%d)' % (nissued - (3 * sl + p) - 1))
            for (t, Sreg) in ((tX, 18), (tY, 16)):
                cc = vr(ownV[t], 4)
                a('v_mfma_f32_16x16x32_bf16 %s, %s, %s, %s' % (cc, vr(Sreg, 4), vr(R[(sl, p)], 4), cc))
                cnt += 1
                for _ in range(4):
                    if fl: a(fl.pop(0))
                    elif cnt >= 3 and fin: a(fin.pop(0))
            if nissued < 27:
                a(rd[nissued]); nissued += 1
        for x in fl + fin: a(x)
    a('s_waitcnt vmcnt(9)')
    for nt in range(4):
        a('ds_read_b64_tr_b16 v[%d:%d], v37 offset:%d' % (Xregs[nt], Xregs[nt] + 1, 32 * nt))
        a('ds_read_b64_tr_b16 v[%d:%d], v37 offset:%d' % (Xregs[nt] + 2, Xregs[nt] + 3, 2048 + 32 * nt))
    for x in finish(8): a(x)
    for nt in range(4):
        a('s_waitcnt lgkmcnt(%d)' % (6 - 2 * nt))
        a('buffer_store_dwordx4 %s, v%d, s[48:51], s71 offen sc1' % (vr(Xregs[nt], 4), 32 + nt))
    stamp(a, 15, 5)
    stamp_flush(a, 15, 2, 14, 6)
    a.label('KF_end')
    a('s_endpgm')
    return kernel_desc(name, 512, 256), '; @launch kernel=k1_kernel grid=(256,1,1) block=(256,1,1) lds=163840'

HSLOT = 16640
UB = 4 * HSLOT
XP = 83968
YP = XP + 4 * 3072
K3_LDS = YP + 80 * 128
def gen_k3(a, opt={}):
    name = 'k3_kernel'
    kernel_begin(a, name)
    a('s_cmp_ge_u32 s2, 256')
    a('s_cbranch_scc1 K3_end')
    a('s_load_dwordx2 s[48:49], s[0:1], 104')
    a('s_load_dwordx2 s[52:53], s[0:1], 0')
    a('s_load_dwordx2 s[56:57], s[0:1], 88')
    a('s_load_dwordx4 s[4:7], s[0:1], 32')
    stamp(a, 15, 0)
    wave_lane(a, 3)
    a('v_lshlrev_b32 v1, 4, v0')
    a('s_and_b32 s20, s2, 7')
    a('s_lshr_b32 s21, s2, 3')
    a('s_lshr_b32 s22, s20, 1')
    a('s_lshl_b32 s22, s22, 3')
    a('s_and_b32 s23, s21, 7')
    a('s_add_u32 s22, s22, s23')
    a('s_and_b32 s23, s20, 1')
    a('s_lshl_b32 s23, s23, 2')
    a('s_lshr_b32 s24, s21, 3')
    a('s_add_u32 s23, s23, s24')
    a('s_mul_i32 s25, s22, 72')
    a('s_mul_i32 s26, s3, 18')
    a('s_add_u32 s25, s25, s26')
    a('s_lshl_b32 s25, s25, 12')
    a('s_add_u32 s25, s25, 0x%x' % H_F)
    a('s_lshl_b32 s26, s23, 2')
    a('s_add_u32 s26, s26, s3')
    a('s_mul_i32 s26, s26, %d' % (81 * 1024))
    a('s_add_u32 s26, s26, 0x%x' % WOUT_F)
    a('v_add_u32 v2, 4096, v1')
    a('v_add_u32 v3, 8192, v1')
    for p in range(4):
        a('s_xor_b32 s27, s3, %d' % p)
        a('s_lshl_b32 s27, s27, 10')
        a('v_add_u32 v%d, s27, v1' % (4 + p))
    for r, v in ((50, WS_END), (51, 0x20000), (54, S * D * 2), (55, 0x20000), (58, S * D * 2), (59, 0x20000)):
        a('s_mov_b32 s%d, 0x%x' % (r, v))
    a('s_mul_i32 s40, s3, %d' % HSLOT)
    a('v_and_b32 v8, 15, v0')
    a('v_lshrrev_b32 v9, 4, v0')
    a('s_cmp_ge_u32 s2, 144')
    a('s_waitcnt lgkmcnt(0)')
    if WS_BASE:
        a('s_add_u32 s48, s48, 0x%x' % WS_BASE)
        a('s_addc_u32 s49, s49, 0')
        a('s_cmp_ge_u32 s2, 144')
    a('s_cbranch_scc1 K3_noconv')
    SETS = [('a', 96), ('a', 164), ('v', 52), ('v', 120), ('v', 188)]
    def reg(pr_, i):
        t, b = SETS[pr_ % 5]
        return (ar if t == 'a' else vr)(b + 4 * i, 4)
    def loads(pr_):
        l = []
        order = [('w', 0), ('w', 1), ('w', 2), ('w', 3), ('w', 8), ('h', 0), ('h', 1), ('h', 2), ('h', 3),
                 ('w', 4), ('w', 5), ('w', 6), ('w', 7), ('h', 4), ('h', 5), ('h', 6), ('h', 7)]
        for n, (k, i) in enumerate(order):
            tag = 'P%d_%d' % (pr_, 0 if n < 9 else 1)
            pre = []
            if n == 0: pre = ['s_add_u32 s28, s26, %d' % (pr_ * 9216)]
            if k == 'h' and i % 4 == 0: pre = ['s_add_u32 s29, s25, %d' % (pr_ * 8192 + (i // 4) * 4096)]
            if k == 'w': l.append((pre, ('buffer_load_dwordx4 %s, v%d, s[48:51], s28 offen offset:%d' % (reg(pr_, i), 1 + i // 4, (i % 4) * 1024), tag)))
            else:        l.append((pre, ('buffer_load_dwordx4 %s, v%d, s[48:51], s29 offen' % (reg(pr_, 9 + i), 4 + i % 4), tag)))
        return l
    def acc(dt, tt): return ar((dt * 4 + tt) * 4, 4)
    def setup_epi(c):
        c('s_lshl_b32 s30, s22, 6')
        c('s_lshr_b32 s31, s3, 1')
        c('s_lshl_b32 s32, s31, 5')
        c('s_add_u32 s30, s30, s32')
        c('s_and_b32 s33, s3, 1')
        c('s_lshl_b32 s32, s33, 2')
        c('s_add_u32 s30, s30, s32')
        c('s_mul_i32 s34, s30, 1152')
        c('s_mul_i32 s32, s23, 144')
        c('s_add_u32 s34, s34, s32')
        c('s_lshl_b32 s35, s30, 3')
        c('s_add_u32 s35, s35, 0x%x' % XSTAT)
        c('s_mul_i32 s36, s3, 3072')
        c('s_add_u32 s36, s36, %d' % XP)
        for i in range(3):
            c('v_add_u32 v10, %d, v0' % (64 * i))
            c('v_mul_u32_u24 v11, 7282, v10')
            c('v_lshrrev_b32 v11, 16, v11')
            c('v_mul_u32_u24 v12, 9, v11')
            c('v_sub_u32 v10, v10, v12')
            c('v_lshrrev_b32 v12, 2, v11')
            c('v_lshlrev_b32 v12, 2, v12')
            c('v_add_u32 v11, v11, v12')
            c('v_mul_u32_u24 v11, 1152, v11')
            c('v_lshl_add_u32 v%d, v10, 4, v11' % (16 + i))
        c('v_lshrrev_b32 v10, 4, v0')
        c('v_lshlrev_b32 v10, 28, v10')
        c('v_or_b32 v18, v18, v10')
        c('v_lshrrev_b32 v10, 2, v8')
        c('v_lshlrev_b32 v10, 2, v10')
        c('v_add_lshl_u32 v19, v10, v8, 3')
        c('v_mul_u32_u24 v20, 144, v8')
        c('v_add_u32 v20, s36, v20')
        c('v_lshl_add_u32 v21, v9, 3, v20')
        c('v_lshl_add_u32 v20, v9, 4, v20')
        c('v_min_u32 v22, 35, v0')
        c('v_lshlrev_b32 v22, 3, v22')
        c('s_mul_i32 s37, s23, 288')
        c('s_add_u32 s37, s37, 0x%x' % YFLAG)
        c('v_lshrrev_b32 v23, 3, v0')
        c('v_lshlrev_b32 v23, 12, v23')
        c('v_and_b32 v10, 7, v0')
        c('v_lshl_add_u32 v23, v10, 4, v23')
        c('s_mul_i32 s38, s23, %d' % (72 * 4096))
        c('s_lshl_b32 s32, s22, 7')
        c('s_add_u32 s38, s38, s32')
        c('s_add_u32 s38, s38, 0x%x' % YT)
        c('s_add_u32 s41, s38, %d' % (8 * 32768))
        c('s_lshl_b32 s32, s3, 15')
        c('s_add_u32 s38, s38, s32')
        c('s_add_u32 s39, s38, %d' % (4 * 32768))
        c('s_lshl_b32 s32, s3, 10')
        c('s_add_u32 s32, s32, %d' % YP)
        c('v_add_u32 v24, s32, v1')
        c('v_bfe_u32 v10, v0, 2, 2')
        c('v_lshl_add_u32 v11, v9, 3, v10')
        c('v_lshl_add_u32 v12, v9, 2, v10')
        c('v_and_b32 v10, 1, v0')
        c('v_lshlrev_b32 v10, 6, v10')
        c('v_bfe_u32 v13, v0, 1, 1')
        c('v_lshl_add_u32 v10, v13, 3, v10')
        c('s_lshl_b32 s32, s33, 5')
        c('s_lshl_b32 s31, s31, 4')
        c('s_add_u32 s32, s32, s31')
        c('s_add_u32 s32, s32, %d' % YP)
        c('v_add_u32 v10, s32, v10')
        c('v_lshl_add_u32 v25, v11, 7, v10')
        c('v_lshl_add_u32 v26, v12, 7, v10')
        c('s_mov_b32 s94, 200000')
    def gemm(sc, lab, extra):
        LQ = sc.LQ; FQ = sc.FQ
        p0 = sc.pos
        for pr_ in range(5, 9):
            for n, (pre, ld) in enumerate(loads(pr_)):
                LQ.append((p0 + 40 * (pr_ - 5) + (20 if (n < 9 and n != 4) else 40), pre, ld, 0))
        FQ += extra
        xl = []
        for i in range(3):
            xl += ['s_add_u32 m0, s36, %d' % (1024 * i), 's_nop 0', ('buffer_load_dwordx4 v%d, s[52:55], s34 offen lds' % (16 + i), 'X')]
        xl.append(('buffer_load_dwordx2 v[28:29], v19, s[48:51], s35 offen', 'X'))
        fpoll = ('buffer_load_dwordx2 v[30:31], v22, s[48:51], s37 offen sc1', 'FP')
        def fcheck():
            sc.vm.wait(a, 'FP')
            a('s_branch K3_fchk%s' % lab)
            a.label('K3_fpoll%s' % lab)
            a(fpoll[0])
            a('s_waitcnt vmcnt(0)')
            a.label('K3_fchk%s' % lab)
            a('v_and_b32 v30, v30, v31')
            a('v_cmp_ne_u32 vcc, 1, v30')
            a('s_sub_u32 s94, s94, 1')
            a('s_cmp_eq_u32 s94, 0')
            a('s_cbranch_scc1 K3_fdone%s' % lab)
            a('s_cbranch_vccnz K3_fpoll%s' % lab)
            a.label('K3_fdone%s' % lab)
            for i, so in enumerate((38, 39, 41)):
                sc.emit(('buffer_load_dwordx4 %s, v23, s[48:51], s%d offen sc1' % (vr(32 + 4 * i, 4), so), 'Y'))
        for pr_ in range(9):
            if pr_ == 1: stamp(a, 15, 3)
            if pr_ == 6:
                assert not LQ and not FQ
                for x in xl: sc.emit(x)
            if pr_ == 7: sc.emit(fpoll)
            if pr_ == 8: fcheck()
            for par in range(2):
                sc.wait('P%d_%d' % (pr_, par))
                if 2 * pr_ + par in (8, 17):
                    hb = SETS[pr_ % 5][1] + 36 + 16 * par
                    assert SETS[pr_ % 5][0] == 'v'
                    l1 = 'K3_sw%s%d' % (lab, pr_)
                    a('s_bitcmp1_b32 s3, 0')
                    a('s_cbranch_scc1 %sa' % l1)
                    for gg in range(2):
                        a('v_swap_b32 v%d, v%d' % (hb + 8 * gg + 2, hb + 8 * gg + 4))
                        a('v_swap_b32 v%d, v%d' % (hb + 8 * gg + 3, hb + 8 * gg + 5))
                    a('s_branch %sb' % l1)
                    a.label(l1 + 'a')
                    for gg in range(2):
                        a('v_swap_b32 v%d, v%d' % (hb + 8 * gg + 0, hb + 8 * gg + 6))
                        a('v_swap_b32 v%d, v%d' % (hb + 8 * gg + 1, hb + 8 * gg + 7))
                    a.label(l1 + 'b')
                    a('s_nop 1')
                for tt in (1, 2, 3, 0):
                    for dt in range(5):
                        wf = reg(pr_, 4 * par + dt) if dt < 4 else reg(pr_, 8)
                        cc = acc(dt if dt < 4 else 4 + par, tt)
                        init = (pr_ == 0 and (par == 0 or dt == 4))
                        a('v_mfma_f32_16x16x32_bf16 %s, %s, %s, %s' % (cc, wf, reg(pr_, 9 + 4 * par + tt), '0' if init else cc))
                        sc.pos += 1
                        sc.fill(2, 16)
    sc = Sched(a); LQ = sc.LQ; FQ = sc.FQ
    srd(a, 60, 4, D * S * 2)
    a('s_cmp_ge_u32 s2, 72')
    a('s_cselect_b32 s42, 1, 0')
    a('s_cselect_b32 s43, 72, 0')
    a('s_sub_u32 s43, s2, s43')
    a('s_lshl_b32 s43, s43, 3')
    a('s_add_u32 s42, s42, s43')
    a('s_lshl_b32 s43, s3, 1')
    a('s_add_u32 s42, s42, s43')
    a('s_lshl_b32 s43, s42, 12')
    HT = 188
    for j in range(4):
        sc.emit(('buffer_load_dwordx4 %s, v1, s[60:63], s43 offen offset:%d' % (vr(HT + 8 * j, 4), 1024 * j), 'H%d' % j))
        sc.emit(('buffer_load_dwordx4 %s, v1, s[60:63], s43 offen offset:%d' % (vr(HT + 8 * j + 4, 4), 1024 * j + 8), 'H%d' % j))
    a('v_and_b32 v10, 3, v0')
    a('v_xor_b32 v10, v10, v9')
    a('v_lshrrev_b32 v11, 2, v0')
    a('v_lshlrev_b32 v11, 6, v11')
    a('v_lshl_add_u32 v10, v10, 4, v11')
    a('s_lshl_b32 s44, s3, 12')
    a('s_add_u32 m0, s44, %d' % (UB + 64))
    a('s_lshl_b32 s45, s2, 14')
    a('s_add_u32 s45, s45, s44')
    a('s_add_u32 s45, s45, 0x%x' % KVB)
    for j in range(4): sc.emit(('buffer_load_dwordx4 v10, s[48:51], s45 offen offset:%d lds' % (1024 * j), 'U'))
    srd(a, 64, 6, D * 2)
    a('s_lshl_b32 s46, s42, 1')
    a('v_mov_b32 v10, 0')
    sc.emit(('buffer_load_ushort v27, v10, s[64:67], s46 offen', 'U'))
    CL = opt.get('c3', 80)
    for pr_ in range(5):
        for pre, ld in loads(pr_): LQ.append((0 if pr_ < 4 else 20, pre, ld, CL))
    for _ in range(4): sc.pump(); sc.t += CL
    for r in range(4): a('v_mov_b32 v%d, 0' % (32 + r))
    a('v_bfe_u32 v10, v0, 1, 2')
    a('v_mul_u32_u24 v10, 4160, v10')
    a('v_and_b32 v11, 1, v0')
    a('v_lshl_add_u32 v10, v11, 4, v10')
    a('v_add_u32 v10, s40, v10')
    a('v_add_u32 v11, %d, v1' % UB)
    a('s_mov_b64 exec, 0xff')
    a('ds_write_b128 v10, v[32:35]')
    a('s_mov_b64 exec, 0xf')
    a('ds_write_b128 v11, v[32:35]')
    a('s_mov_b64 exec, -1')
    a('v_add_u32 v36, s40, v1')
    a('v_add_u32 v10, 1, v8')
    a('v_and_b32 v11, 3, v10')
    a('v_mul_u32_u24 v11, 4158, v11')
    a('v_lshl_add_u32 v11, v10, 1, v11')
    a('v_lshl_add_u32 v11, v9, 4, v11')
    a('v_add_u32 v37, s40, v11')
    a('v_lshlrev_b32 v38, 1, v8')
    a('v_sub_u32 v38, v38, v9')
    a('v_add_u32 v38, 1, v38')
    a('s_mov_b32 s47, %d' % (UB + 64))
    BT = 220
    for j in range(4):
        sc.vm.wait(a, 'H%d' % j)
        d = [HT + 8 * j + i for i in (0, 1, 2, 3, 6, 7)]
        o = BT + 12 * (j & 1)
        a('ds_write_b128 v36, %s offset:%d' % (vr(d[0], 4), 32 + 1024 * j))
        for i in range(4): a('v_alignbit_b32 v%d, v%d, v%d, 16' % (o + i, d[i + 1], d[i]))
        a('ds_write_b128 v36, %s offset:%d' % (vr(o, 4), 4160 + 32 + 1024 * j))
        for i in range(4): a('v_mov_b32 v%d, v%d' % (o + 4 + i, d[i + 1]))
        a('ds_write_b128 v36, %s offset:%d' % (vr(o + 4, 4), 2 * 4160 + 32 + 1024 * j))
        for i in range(4): a('v_alignbit_b32 v%d, v%d, v%d, 16' % (o + 8 + i, d[i + 2], d[i + 1]))
        a('ds_write_b128 v36, %s offset:%d' % (vr(o + 8, 4), 3 * 4160 + 32 + 1024 * j))
        if j == 0:
            a('v_lshlrev_b32 v32, 16, v%d' % d[0])
            a('v_mov_b32 v33, v%d' % o)
            a('s_mov_b64 exec, 1')
            a('ds_write_b32 v36, v32 offset:%d' % (4160 + 28))
            a('ds_write_b32 v36, v%d offset:%d' % (d[0], 2 * 4160 + 28))
            a('ds_write_b64 v36, v[32:33] offset:%d' % (3 * 4160 + 24))
            a('s_mov_b64 exec, -1')
        if j & 1: a('s_waitcnt lgkmcnt(0)')
        sc.t += 200; sc.pump()
    sc.vm.wait(a, 'U')
    a('s_barrier')
    stamp(a, 15, 1)
    FA = 32; FB = 64; SP = 232
    def Areg(x): return FA + 4 * x
    def Breg(b, i): return (SP + 4 * b) if (b < 3 and i & 1) else FB + 4 * b
    lg = []
    def addr(i):
        k = 40 + 2 * (i & 1)
        return ['v_add_u32 v10, %d, v38' % ((-4 * i) & 0xffffffff), 'v_bfe_u32 v11, v10, 2, 2', 'v_xor_b32 v11, s3, v11', 'v_lshlrev_b32 v11, 4, v11',
                'v_add_u32 v11, s47, v11', 'v_max_i32 v12, -1, v10', 'v_lshl_add_u32 v%d, v10, 6, v11' % k, 'v_lshl_add_u32 v%d, v12, 6, v11' % (k + 1)]
    def rdA(x, i):
        def f():
            a('ds_read_b64 %s, v37 offset:%d' % (ar(Areg(x), 2), 512 * x + 64 * i))
            a('ds_read_b64 %s, v37 offset:%d' % (ar(Areg(x) + 2, 2), 512 * x + 64 * i + 8))
            lg.extend(['x', 'A%d_%d' % (x, i)])
        return f
    def rdBc(b, i):
        def f():
            k = 40 + 2 * (i & 1)
            if b == 0: a('ds_read_b128 %s, v%d' % (ar(Breg(b, i), 4), k + 1))
            else:      a('ds_read_b128 %s, v%d offset:%d' % (ar(Breg(b, i), 4), k, 2048 * b))
            lg.append('B%d_%d' % (b, i))
        return f
    def need(tag):
        if tag in lg:
            n = lg.index(tag)
            a('s_waitcnt lgkmcnt(%d)' % min(15, len(lg) - 1 - n))
            del lg[:n + 1]
    for x in addr(0): a(x)
    rdA(0, 0)()
    for b in range(7, -1, -1): rdBc(b, 0)()
    for x in range(1, 8): rdA(x, 0)()
    c = Cap(); setup_epi(c)
    epi = list(c.l)
    for i in range(8):
        q_ = []
        if i < 7: q_ = [x for x in addr(i + 1)] + [rdBc(2, i + 1), rdBc(1, i + 1), rdBc(0, i + 1)]
        for aa in range(8):
            for bb in range(7 - aa, -1, -1):
                need('A%d_%d' % (aa, i)); need('B%d_%d' % (bb, i))
                cr = ar(4 * (aa + bb), 4)
                a('v_mfma_f32_16x16x32_bf16 %s, %s, %s, %s' % (cr, ar(Areg(aa), 4), ar(Breg(bb, i), 4), '0' if (i == 0 and aa == 0) else cr))
                sc.pos += 1; sc.t += 17
                n = 2 - sc.pump()
                while q_ and n > 0:
                    x = q_.pop(0); sc.emit(x); n -= (2 if callable(x) else 1)
                if n == 2 and i == 7:
                    for _ in range(3):
                        if epi: a(epi.pop(0))
            if i < 7:
                q_.append(rdA(aa, i + 1))
                if 7 - aa >= 3: q_.append(rdBc(7 - aa, i + 1))
        for x in q_: sc.emit(x)
    stamp(a, 15, 2)
    a('v_lshrrev_b32 v44, 1, v9')
    a('v_lshl_add_u32 v44, v8, 1, v44')
    a('v_bfe_u32 v45, v44, 2, 2')
    a('v_xor_b32 v45, s3, v45')
    a('v_lshlrev_b32 v45, 4, v45')
    a('v_lshl_add_u32 v44, v44, 6, v45')
    a('v_and_b32 v45, 1, v9')
    a('v_lshlrev_b32 v45, 3, v45')
    a('v_sub_u32 v44, v44, v45')
    a('v_add_u32 v44, %d, v44' % (UB + 64 + 8))
    for t in range(8): a('ds_read_b64 %s, v44 offset:%d' % (ar(32 + 2 * t, 2), 2048 * t))
    a('v_lshrrev_b32 v45, 2, v8')
    a('v_lshlrev_b32 v45, 7, v45')
    a('v_lshl_add_u32 v45, v9, 5, v45')
    a('v_and_b32 v46, 3, v8')
    a('v_lshl_add_u32 v45, v46, 3, v45')
    a('s_add_u32 s43, s43, 0x%x' % YT)
    a('v_lshlrev_b32 v27, 16, v27')
    for x in epi: a(x)
    a('s_waitcnt lgkmcnt(0)')
    while LQ: sc.t += 100; sc.pump()
    for t in range(8):
        o = 32 + 10 * 0
        for r in range(4): a('v_accvgpr_read_b32 v%d, a%d' % (32 + r, 4 * t + r))
        a('v_accvgpr_read_b32 v37, a%d' % (33 + 2 * t))
        a('v_accvgpr_read_b32 v39, a%d' % (32 + 2 * t))
        a('v_and_b32 v36, 0xffff0000, v37')
        a('v_lshlrev_b32 v37, 16, v37')
        a('v_and_b32 v38, 0xffff0000, v39')
        a('v_lshlrev_b32 v39, 16, v39')
        for r in range(4): a('v_fmac_f32 v%d, v%d, v27' % (32 + r, 36 + r))
        k = 40 + 2 * (t & 1)
        a('v_cvt_pk_bf16_f32 v%d, v32, v33' % k)
        a('v_cvt_pk_bf16_f32 v%d, v34, v35' % (k + 1))
        sc.emit(('buffer_store_dwordx2 %s, v45, s[48:51], s43 offen offset:%d sc1' % (vr(k, 2), 512 * t), 'YS'))
    def publish():
        sc.vm.wait(a, 'YS')
        a('s_lshl_b32 s46, s42, 2')
        a('s_add_u32 s46, s46, 0x%x' % YFLAG)
        a('v_mov_b32 v10, 1')
        a('s_mov_b64 exec, 1')
        sc.emit(('buffer_store_dword v10, v1, s[48:51], s46 offen sc1', 'FL'))
        a('s_mov_b64 exec, -1')
    gemm(sc, 'c', [(sc.pos + opt.get('ypub', 70), ('BLOCK', [publish]))])
    a('s_branch K3_epi')
    a.label('K3_noconv')
    sc = Sched(a)
    n = 0
    for pr_ in range(5):
        for pre, ld in loads(pr_):
            if n < 12:
                for x in pre: a(x)
                sc.emit(ld)
            else: sc.LQ.append((0, pre, ld, 0))
            n += 1
    setup_epi(a)
    while len(sc.LQ) > 51: sc.pump()
    stamp(a, 15, 1); stamp(a, 15, 2)
    gemm(sc, 'n', [])
    a.label('K3_epi')
    stamp(a, 15, 4)
    a('v_add_u32 v10, s40, v1')
    a('s_mov_b32 s8, -1')
    a('s_mov_b32 s9, 0')
    a('s_mov_b32 s10, 0')
    a('s_mov_b32 s11, -1')
    for tt in (1, 2, 3):
        for dt in range(4): a('ds_write_b128 v10, %s offset:%d' % (acc(dt, tt), ((tt - 1) * 4 + dt) * 1024))
    a('s_mov_b64 exec, s[8:9]')
    for tt in (1, 2, 3, 0): a('ds_write_b128 v10, %s offset:%d' % (acc(4, tt), (12 + tt) * 1024))
    a('s_mov_b64 exec, s[10:11]')
    for tt in (1, 2, 3, 0): a('ds_write_b128 v10, %s offset:%d' % (acc(5, tt), (12 + tt) * 1024))
    a('s_mov_b64 exec, -1')
    O = 52
    for dt in range(4):
        for r in range(4): a('v_accvgpr_read_b32 v%d, a%d' % (O + 4 * dt + r, dt * 16 + r))
    for p in range(4):
        a('s_xor_b32 s12, s3, %d' % p)
        a('s_mul_i32 s12, s12, %d' % HSLOT)
        a('v_add_u32 v%d, s12, v1' % (4 + p))
        a('v_xor_b32 v11, 512, v1')
        a('v_add_u32 v%d, s12, v11' % (44 + p))
    a('s_waitcnt vmcnt(0)')
    a('ds_write_b128 v24, v[32:35]')
    a('ds_write_b128 v24, v[36:39] offset:4096')
    a('v_add_u32 v11, %d, v1' % (YP + 8192))
    a('ds_write_b128 v11, v[40:43]')
    X = 72
    a('ds_read_b128 %s, v20' % vr(X, 4))
    a('ds_read_b128 %s, v20 offset:64' % vr(X + 4, 4))
    a('ds_read_b64 %s, v21 offset:128' % vr(X + 8, 2))
    a('s_waitcnt lgkmcnt(0)')
    a('s_barrier')
    R = 84
    for p in range(1, 4):
        for dt in range(4): a('ds_read_b128 %s, v%d offset:%d' % (vr(R + 16 * (p - 1) + 4 * dt, 4), 4 + p, ((p - 1) * 4 + dt) * 1024))
    XF = 180; XN = 200; Yr = 164
    a('v_mov_b32 v30, v28')
    a('v_mov_b32 v31, v28')
    a('v_mov_b32 v28, v29')
    for i in range(10):
        a('v_lshlrev_b32 v%d, 16, v%d' % (XF + 2 * i, X + i))
        a('v_and_b32 v%d, 0xffff0000, v%d' % (XF + 2 * i + 1, X + i))
    a('s_waitcnt lgkmcnt(4)')
    for p in range(4):
        a('ds_read_b128 %s, v%d offset:%d' % (vr(132 + 8 * p, 4), 4 + p, (12 + p) * 1024))
        a('ds_read_b128 %s, v%d offset:%d' % (vr(136 + 8 * p, 4), 44 + p, (12 + p) * 1024))
    for i in range(10): a('v_pk_add_f32 %s, %s, v[30:31] neg_lo:[0,1] neg_hi:[0,1]' % (pr(XN + 2 * i), pr(XF + 2 * i)))
    a('s_waitcnt lgkmcnt(8)')
    for dt in range(4): a('ds_read_b64_tr_b16 %s, v25 offset:%d' % (vr(Yr + 2 * dt, 2), (32 * (dt >> 1) + 4 * (dt & 1)) * 128))
    a('ds_read_b64_tr_b16 %s, v26 offset:%d' % (vr(Yr + 8, 2), 64 * 128))
    for i in range(10): a('v_pk_mul_f32 %s, %s, v[28:29]' % (pr(XN + 2 * i), pr(XN + 2 * i)))
    for i in range(8): a('v_pk_add_f32 %s, %s, %s' % (pr(O + 2 * i), pr(O + 2 * i), pr(XF + 2 * i)))
    for i in range(8): a('v_pk_add_f32 %s, %s, %s' % (pr(R + 2 * i), pr(R + 2 * i), pr(R + 16 + 2 * i)))
    for i in range(8): a('v_pk_add_f32 %s, %s, %s' % (pr(O + 2 * i), pr(O + 2 * i), pr(R + 32 + 2 * i)))
    for i in range(8): a('v_pk_add_f32 %s, %s, %s' % (pr(O + 2 * i), pr(O + 2 * i), pr(R + 2 * i)))
    a('s_waitcnt lgkmcnt(5)')
    for i in range(8): a('v_pk_add_f32 %s, %s, %s' % (pr(132 + 2 * i), pr(132 + 2 * i), pr(148 + 2 * i)))
    for i in range(4): a('v_pk_add_f32 %s, %s, %s' % (pr(132 + 2 * i), pr(132 + 2 * i), pr(140 + 2 * i)))
    for i in range(2): a('v_pk_add_f32 %s, %s, %s' % (pr(132 + 2 * i), pr(132 + 2 * i), pr(136 + 2 * i)))
    for i in range(2): a('v_pk_add_f32 %s, %s, %s' % (pr(O + 16 + 2 * i), pr(132 + 2 * i), pr(XF + 16 + 2 * i)))
    a('s_waitcnt lgkmcnt(0)')
    for i in range(10):
        a('v_lshlrev_b32 v%d, 16, v%d' % (XF + 2 * i, Yr + i))
        a('v_and_b32 v%d, 0xffff0000, v%d' % (XF + 2 * i + 1, Yr + i))
    for i in range(10): a('v_pk_fma_f32 %s, %s, %s, %s' % (pr(O + 2 * i), pr(XN + 2 * i), pr(XF + 2 * i), pr(O + 2 * i)))
    for i in range(10): a('v_cvt_pk_bf16_f32 v%d, v%d, v%d' % (X + i, O + 2 * i, O + 2 * i + 1))
    a('ds_write_b128 v20, %s' % vr(X, 4))
    a('ds_write_b128 v20, %s offset:64' % vr(X + 4, 4))
    a('s_mov_b64 exec, s[8:9]')
    a('ds_write_b64 v21, %s offset:128' % vr(X + 8, 2))
    a('s_mov_b64 exec, -1')
    a('v_add_u32 v10, s36, v1')
    for i in range(3): a('ds_read_b128 %s, v10 offset:%d' % (vr(R + 4 * i, 4), 1024 * i))
    for i in range(3):
        a('s_waitcnt lgkmcnt(%d)' % (2 - i))
        a('buffer_store_dwordx4 %s, v%d, s[56:59], s34 offen%s' % (vr(R + 4 * i, 4), 16 + i, ' sc1' if opt.get('osc', 0) else ''))
    stamp(a, 15, 5)
    stamp_flush(a, 15, 3, 14, 6)
    a.label('K3_end')
    a('s_endpgm')
    return kernel_desc(name, 512, 256), '; @launch kernel=k3_kernel grid=(256,1,1) block=(256,1,1) lds=%d' % K3_LDS

def gen_empty(n):
    def f(a):
        name = 'k%d_kernel' % n
        kernel_begin(a, name)
        a('s_endpgm')
        return kernel_desc(name, 64, 64), '; @launch kernel=%s grid=(256,1,1) block=(256,1,1) lds=0' % name
    return f
KERNELS = {'k0': gen_k0, 'k1': gen_k1, 'k2': gen_k2, 'k3': gen_k3, 'kf': gen_kf, 'e1': gen_empty(7), 'e2': gen_empty(8), 'e3': gen_empty(9)}

def build(names):
    a = Asm()
    descs = []; hdr = []
    for n in names:
        d, h = KERNELS[n](a, OPT) if n in ('k0', 'k1', 'k2', 'k3', 'kf') else KERNELS[n](a)
        descs.append(d); hdr.append(h)
    if SC1['on']:
        a.lines = [l + ' ' + SC1['on'] if ('buffer_store_dwordx4' in l and 'sc1' not in l) else l for l in a.lines]
    txt = build_file(hdr, a.text(), descs)
    errs = hazard.check(a.text())
    for e in errs: print('HAZARD', e, file=sys.stderr)
    return txt

if __name__ == '__main__':
    out = sys.argv[1]
    names = sys.argv[2].split(',')
    if len(sys.argv) > 3 and 'dbg' in sys.argv[3]: DBG['on'] = True
    if len(sys.argv) > 3 and 'sc1' in sys.argv[3]: SC1['on'] = 'sc1'
    if len(sys.argv) > 3 and 'sc01' in sys.argv[3]: SC1['on'] = 'sc0 sc1'
    if len(sys.argv) > 3 and 'nt' in sys.argv[3]: SC1['on'] = 'nt'
    for kv in sys.argv[4:]:
        k, v = kv.split('=')
        OPT[k] = float(v) if '.' in v else int(v)
    open(out, 'w').write(build(names))
```

```python
import sys
from asmlib import *
import hazard

S = 2048; D = 576; FH = 2304
XN_F   = 0x0000000
XSTAT  = 0x0240000
KVB    = 0x0280000
YT     = 0x0500000
PSTAT  = 0x0780000
YFLAG  = 0x07F0000
ZFLAG  = 0x07F1000
WIN_F  = 0x0800000
WOUT_F = 0x0E00000
WSP_F  = 0x1100000
Z2_F   = 0x1900000
Z1_P   = 0x2200000
H_F    = 0x2B00000
WS_END = 0x3500000
import os
WS_BASE = int(os.environ.get('WSB', '0')) << 20
STAMP  = 0x3400000
DBG = {'on': False}
OPT = {}
SC1 = {'on': ''}
def stamp(a, v, i):
    if not DBG['on']: return
    a('s_memrealtime s[98:99]')
    a('s_memtime s[100:101]')
    a('s_waitcnt lgkmcnt(0)')
    a('v_writelane_b32 v%d, s98, %d' % (v, i))
    a('v_writelane_b32 v%d, s100, %d' % (v, 8 + i))
def stamp_flush(a, v, k, vtmp, last):
    if not DBG['on']: return
    a('s_waitcnt vmcnt(0)')
    stamp(a, v, last)
    a('s_lshl_b32 s96, s2, 3')
    a('s_add_u32 s96, s96, s3')
    a('s_lshl_b32 s96, s96, 6')
    a('s_add_u32 s96, s96, 0x%x' % (STAMP + k * 256 * 8 * 64))
    a('v_lshlrev_b32 v%d, 2, v0' % vtmp)
    a('s_mov_b64 exec, 0xffff')
    a('buffer_store_dword v%d, v%d, s[48:51], s96 offen' % (v, vtmp))

def f2u(x):
    import struct
    return struct.unpack('<I', struct.pack('<f', x))[0]

def wave_lane(a, sw, keep_tid=None):
    if keep_tid is not None:
        a('v_mov_b32 v%d, v0' % keep_tid)
    a('v_lshrrev_b32 v1, 6, v0')
    a('v_and_b32 v0, 63, v0')
    a('v_readfirstlane_b32 s%d, v1' % sw)

def wave_reduce(a, regs_, sdst):
    assert len(regs_) >= 1
    pad = max(0, 3 - len(regs_))
    def nop():
        if pad == 2: a('s_nop 1')
        elif pad == 1: a('s_nop 0')
    a('s_nop 1')
    for sh in (8, 4, 2, 1):
        for r in regs_:
            a('v_add_f32 v%d, v%d, v%d row_ror:%d' % (r, r, r, sh))
        nop()
    for r in regs_:
        a('v_add_f32 v%d, v%d, v%d row_bcast:15 row_mask:0xa' % (r, r, r))
    nop()
    for r in regs_:
        a('v_add_f32 v%d, v%d, v%d row_bcast:31 row_mask:0xc' % (r, r, r))
    a('s_nop 0')
    for r, s in zip(regs_, sdst):
        a('v_readlane_b32 s%d, v%d, 63' % (s, r))

def round_bf16(a, r):
    a('v_cvt_pk_bf16_f32 v%d, v%d, v%d' % (r, r, r))
    a('v_and_b32 v%d, 0xffff0000, v%d' % (r, r))

def tr_block_dma(a, srdn, s_r0, s_r1, pitch, s_col, s_lds, vtmp):
    for j in range(4):
        a('s_add_u32 s85, s%d, %d' % (s_r0 if j < 2 else s_r1, 8 * j))
        a('s_mul_i32 s85, s85, %d' % pitch)
        a('s_add_u32 m0, s%d, %d' % (s_lds, 1024 * j))
        a('s_add_u32 s85, s85, s%d' % s_col)
        a('buffer_load_dwordx4 v%d, s[%d:%d], s85 offen lds' % (vtmp, srdn, srdn + 3))

def kv_addr(vp, t, schunk, lim=None):
    l = ['s_mul_i32 s68, %s, %d' % (schunk, 8 * 1152), 'v_lshlrev_b32 v%d, 2, v%d' % (t, vp)]
    if lim:
        l += ['v_cmp_gt_u32 vcc, %d, v%d' % (lim, vp), 'v_mov_b32 v%d, 0x7ffffff0' % (t + 1), 'v_lshlrev_b32 v%d, 4, v%d' % (t + 5, vp),
              'v_cndmask_b32 v%d, v%d, v%d, vcc' % (t, t + 1, t)]
    else:
        l += ['v_lshlrev_b32 v%d, 4, v%d' % (t + 5, vp)]
    l += ['v_add_u32 v%d, s68, v%d' % (t, t), 'v_add_u32 v%d, %d, v%d' % (t + 1, 4 * 1152, t)]
    for r in range(3): l.append('v_subrev_u32 v%d, %d, v%d' % (t + 2 + r, (3 - r) * 1152, t))
    return l
def kv_loads(t, d, tag='KV'):
    l = []
    for r in range(3): l.append(('buffer_load_dword v%d, v%d, s[24:27], 0 offen' % (d + r, t + 2 + r), tag))
    for r in range(8): l.append(('buffer_load_dword v%d, v%d, s[24:27], 0 offen offset:%d' % (d + 3 + r, t if r < 4 else t + 1, (r % 4) * 1152), tag))
    for r in range(8): l.append(('buffer_load_dword v%d, v%d, s[28:31], 0 offen offset:%d' % (d + 12 + r, t if r < 4 else t + 1, (r % 4) * 1152), tag))
    l.append(('buffer_load_dwordx4 v[%d:%d], v%d, s[32:35], 0 offen' % (d + 20, d + 23, t + 5), tag))
    return l
def kv_compute(d, w, pk=False):
    l = []
    K = w + 8; O = w + 20
    for c in range(2):
        for t in range(2):
            l.append('v_lshlrev_b32 v%d, 16, v%d' % (w + 4 + 2 * t, d + 20 + 2 * c + t))
            l.append('v_and_b32 v%d, 0xffff0000, v%d' % (w + 5 + 2 * t, d + 20 + 2 * c + t))
        un = (lambda dst, src: 'v_lshlrev_b32 v%d, 16, v%d' % (dst, src)) if c == 0 else (lambda dst, src: 'v_and_b32 v%d, 0xffff0000, v%d' % (dst, src))
        for r in range(11): l.append(un(K + r, d + r))
        for r in range(8): l.append('v_mul_f32 v%d, v%d, v%d' % (O + r, K + r, w + 4 + 3))
        for j in (2, 1, 0):
            for r in range(8): l.append('v_fmac_f32 v%d, v%d, v%d' % (O + r, K + 3 + r - j, w + 4 + j))
        for r in range(8): l.append(un(K + r, d + 12 + r))
        if pk:
            for r in range(4): l.append('v_pk_mul_f32 v[%d:%d], v[%d:%d], v[%d:%d]' % (O + 2 * r, O + 1 + 2 * r, O + 2 * r, O + 1 + 2 * r, K + 2 * r, K + 1 + 2 * r))
        else:
            for r in range(8): l.append('v_mul_f32 v%d, v%d, v%d' % (O + r, O + r, K + r))
        for e in range(4): l.append('v_cvt_pk_bf16_f32 v%d, v%d, v%d' % (w + 28 + 4 * c + e, O + 7 - 2 * e, O + 6 - 2 * e))
    return l
def kv_store(vp, t, w, schunk, lim=None, tag='KS'):
    l = ['v_lshrrev_b32 v%d, 2, v%d' % (t, vp), 'v_lshlrev_b32 v%d, 14, v%d' % (t, t), 'v_and_b32 v%d, 3, v%d' % (t + 1, vp),
         'v_lshl_add_u32 v%d, v%d, 4, v%d' % (t, t + 1, t), 's_lshl_b32 s68, %s, 6' % schunk, 's_add_u32 s68, s68, 0x%x' % KVB,
         's_add_u32 s69, s68, %d' % (72 * 16384)]
    if lim:
        l += ['v_cmp_gt_u32 vcc, %d, v%d' % (lim, vp), 'v_mov_b32 v%d, 0x7ffffff0' % (t + 1), 's_nop 0', 'v_cndmask_b32 v%d, v%d, v%d, vcc' % (t, t + 1, t)]
    l.append(('buffer_store_dwordx4 v[%d:%d], v%d, s[48:51], s68 offen sc1' % (w + 28, w + 31, t), tag))
    l.append(('buffer_store_dwordx4 v[%d:%d], v%d, s[48:51], s69 offen sc1' % (w + 32, w + 35, t), tag))
    return l

def gen_k0(a, opt={}):
    name = 'k0_kernel'
    kernel_begin(a, name)
    a('s_cmp_ge_u32 s2, 256')
    a('s_cbranch_scc1 K0_end')
    a('s_load_dwordx4 s[4:7], s[0:1], 0')
    a('s_load_dwordx8 s[8:15], s[0:1], 16')
    a('s_load_dwordx2 s[16:17], s[0:1], 56')
    a('s_load_dwordx2 s[18:19], s[0:1], 104')
    a('s_load_dwordx4 s[56:59], s[0:1], 64')
    stamp(a, 127, 0)
    wave_lane(a, 3)
    a('v_lshlrev_b32 v3, 4, v0')
    a('s_lshr_b32 s60, s2, 2')
    a('s_lshl_b32 s61, s60, 5')
    a('s_and_b32 s62, s2, 1')
    a('s_lshl_b32 s63, s62, 4')
    a('s_add_u32 s61, s61, s63')
    a('s_lshr_b32 s63, s3, 2')
    a('s_lshl_b32 s63, s63, 3')
    a('s_add_u32 s61, s61, s63')
    a('s_bfe_u32 s64, s2, 0x10001')
    a('s_lshl_b32 s63, s64, 2')
    a('s_add_u32 s61, s61, s63')
    a('s_and_b32 s63, s3, 3')
    a('s_add_u32 s61, s61, s63')
    a('s_mul_i32 s65, s61, 1152')
    a('v_mov_b32 v61, 0x7ffffff0')
    a('v_cmp_gt_u32 vcc, 8, v0')
    a('v_add_u32 v66, 1024, v3')
    a('v_add_u32 v2, 256, v0')
    a('v_cndmask_b32 v66, v61, v66, vcc')
    a('v_lshrrev_b32 v71, 3, v0')
    a('v_mul_u32_u24 v71, 9216, v71')
    a('v_and_b32 v72, 7, v0')
    a('v_lshl_add_u32 v71, v72, 4, v71')
    a('s_mov_b32 s22, %d' % (S * D * 2))
    a('s_mov_b32 s23, 0x00020000')
    a('s_waitcnt lgkmcnt(0)')
    a('s_mov_b32 s20, s4')
    a('s_mov_b32 s21, s5')
    a('buffer_load_dwordx4 v[4:7], v3, s[20:23], s65 offen')
    a('buffer_load_dwordx4 v[8:11], v66, s[20:23], s65 offen')
    srd(a, 48, 18, WS_END, off=WS_BASE)
    a('s_barrier')
    a('s_cmp_ge_u32 s3, 2')
    a('s_cbranch_scc1 K0_blkld')
    a('s_cmp_eq_u32 s3, 1')
    a('s_cbranch_scc1 K0_w1')
    srd(a, 24, 6, S * D * 2)
    srd(a, 28, 8, S * D * 2)
    srd(a, 32, 10, D * 8)
    for x in kv_addr(2, 60, 's2', 288) + kv_loads(60, 12): a(x[0] if isinstance(x, tuple) else x)
    a('s_waitcnt vmcnt(20)')
    a('s_branch K0_ln')
    a.label('K0_w1')
    a('s_waitcnt vmcnt(0)')
    if opt.get('k0t', 0):
        a('s_cmp_lg_u32 s3, 1')
        a('s_cbranch_scc1 K0_ln')
        srd(a, 36, 56, S * S * 2)
        a('v_lshlrev_b32 v73, 7, v0')
        a('s_lshl_b32 s91, s2, 15')
        for i in range(4):
            a('buffer_load_dword v%d, v73, s[36:39], s91 offen' % (40 + i))
            a('s_add_u32 s91, s91, 8192')
    a('s_branch K0_ln')
    a.label('K0_blkld')
    srd(a, 52, 16, D * 4608 * 2)
    a('s_sub_u32 s66, s3, 2')
    a('s_lshl_b32 s84, s66, 12')
    a('s_lshl_b32 s66, s66, 8')
    a('s_add_u32 s66, s66, s2')
    a('s_cmp_ge_u32 s66, 1296')
    a('s_cbranch_scc1 K0_w1')
    a('s_mul_hi_u32 s72, s66, 0x038E38E4')
    a('s_mul_i32 s73, s72, 72')
    a('s_sub_u32 s73, s66, s73')
    a('s_lshl_b32 s76, s72, 5')
    a('s_lshl_b32 s77, s73, 7')
    tr_block_dma(a, 52, 76, 76, 9216, 77, 84, 71)
    a('s_waitcnt vmcnt(4)')
    a.label('K0_ln')
    stamp(a, 127, 1)
    for i in range(8):
        a('v_lshlrev_b32 v%d, 16, v%d' % (84 + 2 * i, 4 + i))
        a('v_and_b32 v%d, 0xffff0000, v%d' % (85 + 2 * i, 4 + i))
    a('v_pk_add_f32 v[100:101], v[84:85], v[86:87]')
    a('v_pk_add_f32 v[102:103], v[88:89], v[90:91]')
    a('v_pk_add_f32 v[104:105], v[92:93], v[94:95]')
    a('v_pk_add_f32 v[106:107], v[96:97], v[98:99]')
    a('v_pk_add_f32 v[100:101], v[100:101], v[102:103]')
    a('v_pk_add_f32 v[104:105], v[104:105], v[106:107]')
    a('v_pk_add_f32 v[100:101], v[100:101], v[104:105]')
    a('v_add_f32 v100, v100, v101')
    wave_reduce(a, [100], [87])
    a('v_mov_b32 v102, 0x%x' % f2u(1.0 / 576))
    a('v_cmp_gt_u32 vcc, 8, v0')
    a('v_mul_f32 v102, s87, v102')
    a('v_mov_b32 v103, v102')
    for i in range(8):
        a('v_pk_add_f32 v[%d:%d], v[%d:%d], v[102:103] neg_lo:[0,1] neg_hi:[0,1]' % (108 + 2 * i, 109 + 2 * i, 84 + 2 * i, 85 + 2 * i))
    a('v_pk_mul_f32 v[100:101], v[108:109], v[108:109]')
    a('v_pk_mul_f32 v[104:105], v[116:117], v[116:117]')
    for i in range(1, 4):
        a('v_pk_fma_f32 v[100:101], v[%d:%d], v[%d:%d], v[100:101]' % (108 + 2 * i, 109 + 2 * i, 108 + 2 * i, 109 + 2 * i))
        a('v_pk_fma_f32 v[104:105], v[%d:%d], v[%d:%d], v[104:105]' % (116 + 2 * i, 117 + 2 * i, 116 + 2 * i, 117 + 2 * i))
    a('v_add_f32 v100, v100, v101')
    a('v_add_f32 v104, v104, v105')
    a('v_cndmask_b32 v104, 0, v104, vcc')
    a('v_add_f32 v100, v100, v104')
    wave_reduce(a, [100], [88])
    a('v_mov_b32 v105, 0x%x' % f2u(1.0 / 576))
    round_bf16(a, 102)
    a('v_mul_f32 v105, s88, v105')
    a('v_mov_b32 v103, v102')
    round_bf16(a, 105)
    a('v_add_f32 v105, 0x%x, v105' % f2u(1e-5))
    round_bf16(a, 105)
    a('v_sqrt_f32 v105, v105')
    for i in range(8):
        a('v_pk_add_f32 v[%d:%d], v[%d:%d], v[102:103] neg_lo:[0,1] neg_hi:[0,1]' % (84 + 2 * i, 85 + 2 * i, 84 + 2 * i, 85 + 2 * i))
    round_bf16(a, 105)
    a('v_rcp_f32 v105, v105')
    for i in range(8):
        a('v_cvt_pk_bf16_f32 v%d, v%d, v%d' % (4 + i, 84 + 2 * i, 85 + 2 * i))
    a('v_mov_b32 v104, v105')
    a('v_mov_b32 v103, v105')
    for i in range(8):
        a('v_lshlrev_b32 v%d, 16, v%d' % (84 + 2 * i, 4 + i))
        a('v_and_b32 v%d, 0xffff0000, v%d' % (85 + 2 * i, 4 + i))
    for i in range(8):
        a('v_pk_mul_f32 v[%d:%d], v[%d:%d], v[104:105]' % (84 + 2 * i, 85 + 2 * i, 84 + 2 * i, 85 + 2 * i))
    for i in range(8):
        a('v_cvt_pk_bf16_f32 v%d, v%d, v%d' % (4 + i, 84 + 2 * i, 85 + 2 * i))
    XL = 24576
    a('s_lshl_b32 s89, s3, 4')
    a('s_add_u32 s89, s89, %d' % XL)
    a('v_lshlrev_b32 v106, 7, v0')
    a('v_add_u32 v106, s89, v106')
    a('ds_write_b128 v106, v[4:7]')
    a('s_mov_b64 exec, 0xff')
    a('ds_write_b128 v106, v[8:11] offset:8192')
    a('s_mov_b64 exec, 1')
    a('s_lshl_b32 s89, s61, 3')
    a('s_add_u32 s89, s89, 0x%x' % XSTAT)
    a('buffer_store_dwordx2 v[102:103], v3, s[48:51], s89 offen sc1')
    a('s_mov_b64 exec, -1')
    a('s_lshl_b32 s89, s3, 10')
    a('s_add_u32 s89, s89, %d' % XL)
    a('v_add_u32 v104, s89, v3')
    a('v_lshrrev_b32 v105, 5, v0')
    a('v_lshlrev_b32 v105, 11, v105')
    a('v_bfe_u32 v106, v0, 3, 2')
    a('v_lshl_add_u32 v105, v106, 8, v105')
    a('v_and_b32 v106, 7, v0')
    a('v_lshl_add_u32 v105, v106, 4, v105')
    a('s_mul_i32 s89, s60, %d' % (18 * 2048))
    a('s_lshl_b32 s90, s64, 10')
    a('s_add_u32 s89, s89, s90')
    a('s_lshl_b32 s90, s62, 7')
    a('s_add_u32 s89, s89, s90')
    a('s_lshl_b32 s90, s3, 12')
    a('s_add_u32 s90, s90, s89')
    a('s_add_u32 s89, s89, %d' % (8 * 4096))
    a('s_waitcnt lgkmcnt(0)')
    stamp(a, 127, 2)
    a('s_barrier')
    a('ds_read_b128 v[4:7], v104')
    a('ds_read_b128 v[8:11], v3 offset:%d' % (XL + 8192))
    a('s_waitcnt lgkmcnt(1)')
    a('buffer_store_dwordx4 v[4:7], v105, s[48:51], s90 offen sc1')
    stamp(a, 127, 3)
    a('s_cmp_ge_u32 s3, 2')
    a('s_cbranch_scc1 K0_blk')
    a('s_cmp_eq_u32 s3, 1')
    a('s_cbranch_scc1 K0_misc')
    a('s_waitcnt vmcnt(2)')
    for x in kv_compute(12, 84, pk=True) + kv_store(2, 60, 84, 's2', 288): a(x[0] if isinstance(x, tuple) else x)
    a('s_branch K0_fin')
    a.label('K0_misc')
    a('s_waitcnt lgkmcnt(0)')
    a('buffer_store_dwordx4 v[8:11], v105, s[48:51], s89 offen sc1')
    for r in range(4):
        a('v_mov_b32 v%d, -1' % (76 + r))
    a('s_lshl_b32 s86, s2, 10')
    a('s_add_u32 s86, s86, 0x%x' % PSTAT)
    a('buffer_store_dwordx4 v[76:79], v3, s[48:51], s86 offen sc1')
    a('s_cmp_ge_u32 s2, 8')
    a('s_cbranch_scc1 K0_fin')
    srd(a, 40, 58, S * 2)
    srd(a, 44, 14, D * 2)
    a('v_lshlrev_b32 v73, 7, v0')
    a('buffer_load_dword v75, v73, s[40:43], 0 offen')
    a('buffer_load_dword v74, v73, s[44:47], 0 offen')
    for r in range(4):
        a('v_mov_b32 v%d, 0' % (80 + r))
    a('s_lshl_b32 s86, s2, 10')
    a('s_add_u32 s86, s86, 0x%x' % YFLAG)
    a('buffer_store_dwordx4 v[80:83], v3, s[48:51], s86 offen sc1')
    a('s_branch K0_fin')
    a.label('K0_blk')
    a('s_cmp_ge_u32 s66, 1296')
    a('s_cbranch_scc1 K0_fin')
    a('v_lshrrev_b32 v68, 4, v0')
    a('v_lshlrev_b32 v71, 10, v68')
    a('v_bfe_u32 v72, v0, 2, 2')
    a('v_lshl_add_u32 v71, v72, 7, v71')
    a('v_and_b32 v72, 3, v0')
    a('v_lshl_add_u32 v71, v72, 3, v71')
    a('v_add_u32 v71, s84, v71')
    a('s_waitcnt vmcnt(2)')
    for nt in range(4):
        b = 12 + 4 * nt
        a('ds_read_b64_tr_b16 v[%d:%d], v71 offset:%d' % (b, b + 1, 32 * nt))
        a('ds_read_b64_tr_b16 v[%d:%d], v71 offset:%d' % (b + 2, b + 3, 512 + 32 * nt))
    a('s_cmp_ge_u32 s73, 36')
    a('s_cselect_b32 s90, 144, 0')
    a('s_cselect_b32 s93, 9, 1')
    a('s_cselect_b32 s94, 1, 18')
    a('s_cselect_b32 s95, 0, 162')
    a('s_mul_i32 s93, s93, s72')
    a('s_add_u32 s95, s95, s93')
    a('s_lshl_b32 s89, s73, 2')
    a('s_sub_u32 s89, s89, s90')
    for nt in range(4):
        a('s_mul_hi_u32 s91, s89, 0x1C71C71D')
        a('s_mul_i32 s92, s91, 9')
        a('s_sub_u32 s92, s89, s92')
        a('s_mul_i32 s91, s91, 324')
        a('s_mul_i32 s92, s92, s94')
        a('s_add_u32 s91, s91, s92')
        a('s_add_u32 s91, s91, s95')
        a('s_lshl_b32 s91, s91, 10')
        a('s_add_u32 s91, s91, 0x%x' % WIN_F)
        b = 12 + 4 * nt
        a('s_waitcnt lgkmcnt(%d)' % (6 - 2 * nt))
        a('buffer_store_dwordx4 v[%d:%d], v3, s[48:51], s91 offen sc1' % (b, b + 3))
        a('s_add_u32 s89, s89, 1')
    a.label('K0_fin')
    stamp(a, 127, 4)
    stamp_flush(a, 127, 0, 126, 5)
    if opt.get('k0e', 0):
        a('s_mov_b64 exec, -1')
        a('s_cmp_ge_u32 s3, 4')
        a('s_cbranch_scc1 K0_end')
        srd(a, 36, 56, S * S * 2)
        a('v_lshlrev_b32 v73, 7, v0')
        a('s_lshl_b32 s91, s2, 2')
        a('s_add_u32 s91, s91, s3')
        a('s_lshl_b32 s91, s91, 13')
        a('buffer_load_dword v40, v73, s[36:39], s91 offen')
    a.label('K0_end')
    a('s_endpgm')
    return kernel_desc(name, 128, 128), '; @launch kernel=k0_kernel grid=(256,1,1) block=(512,1,1) lds=%d' % (24576 + 9216)

class VM:
    def __init__(self): self.q = []
    def issue(self, tag, n=1): self.q += [tag] * n
    def need(self, tag):
        last = max(i for i, t in enumerate(self.q) if t == tag)
        return len(self.q) - 1 - last
    def wait(self, a, tag):
        if tag not in self.q: return
        n = self.need(tag)
        n = min(n, 63)
        a('s_waitcnt vmcnt(%d)' % n)
        self.q = self.q[len(self.q) - n:]

K1C = -2.0 * 0.7978845608028654 * 1.4426950408889634
K2C = K1C * 0.044715

def gelu_ops(xs, tmps, vk2):
    ops = []
    for x, t in zip(xs, tmps): ops.append('v_mul_f32 v%d, v%d, v%d' % (t, x, x))
    for x, t in zip(xs, tmps): ops.append('v_fmaak_f32 v%d, v%d, v%d, 0x%x' % (t, vk2, t, f2u(K1C)))
    for x, t in zip(xs, tmps): ops.append('v_mul_f32 v%d, v%d, v%d' % (t, x, t))
    for x, t in zip(xs, tmps): ops.append('v_exp_f32 v%d, v%d' % (t, t))
    for x, t in zip(xs, tmps): ops.append('v_add_f32 v%d, 1.0, v%d' % (t, t))
    for x, t in zip(xs, tmps): ops.append('v_rcp_f32 v%d, v%d' % (t, t))
    for x, t in zip(xs, tmps): ops.append('v_mul_f32 v%d, v%d, v%d' % (x, x, t))
    return ops

K1_LDS = 163840
def cost(x):
    t = x[0] if isinstance(x, tuple) else x
    if t.startswith(('v_exp', 'v_rcp', 'v_sqrt', 'v_rsq')): return 2
    if t.startswith('s_'): return 0 if not t.startswith('s_nop') else 1
    return 1

def wg_map_16x16(a):
    a('s_and_b32 s20, s2, 7')
    a('s_lshr_b32 s21, s2, 3')
    a('s_and_b32 s22, s20, 1')
    a('s_lshl_b32 s22, s22, 3')
    a('s_and_b32 s23, s21, 7')
    a('s_add_u32 s22, s22, s23')
    a('s_lshr_b32 s23, s20, 1')
    a('s_lshl_b32 s23, s23, 2')
    a('s_lshr_b32 s24, s21, 3')
    a('s_add_u32 s23, s23, s24')

class Cap:
    def __init__(self): self.l = []
    def __call__(self, x): self.l.append(x)

def gen_k1(a, opt={}):
    name = 'k1_kernel'
    kernel_begin(a, name)
    a('s_cmp_ge_u32 s2, 256')
    a('s_cbranch_scc1 K1_end')
    a('s_load_dwordx2 s[48:49], s[0:1], 104')
    a('s_load_dwordx8 s[4:11], s[0:1], 8')
    a('s_load_dwordx2 s[12:13], s[0:1], 64')
    a('s_load_dwordx2 s[14:15], s[0:1], 80')
    stamp(a, 15, 0)
    wave_lane(a, 3)
    a('v_lshlrev_b32 v1, 4, v0')
    wg_map_16x16(a)
    a('s_lshl_b32 s22, s22, 2')
    a('s_add_u32 s22, s22, s3')
    a('s_mul_i32 s60, s22, %d' % (36 * 1024))
    a('s_mul_i32 s61, s23, %d' % (324 * 1024))
    a('s_mul_i32 s62, s3, 3072')
    a('s_add_u32 s61, s61, s62')
    a('s_add_u32 s61, s61, 0x%x' % WIN_F)
    a('s_mov_b32 s50, 0x%x' % WS_END)
    a('s_mov_b32 s51, 0x00020000')
    a('v_mov_b32 v2, v1')
    a('s_waitcnt lgkmcnt(0)')
    vm = VM()
    C2 = 184; T = 112; C1 = 96; BR = 64; NB = 8
    def A(ks, j): return ar((ks * 2 + j) * 4, 4)
    def emit(x):
        if isinstance(x, tuple):
            a(x[0]); vm.issue(x[1])
        else: a(x)
    def dmaB(u):
        out = []
        for i in range(3):
            pre = ['s_add_u32 m0, s62, %d' % ((12 * u % 144) * 1024), 's_add_u32 s63, s61, %d' % (12 * u * 1024)] if i == 0 else []
            out.append((pre, ('buffer_load_dwordx4 v1, s[48:51], s63 offen offset:%d lds' % (1024 * i), 'B%d' % u)))
        return out
    def ldA(ks):
        out = []
        for j in range(2):
            pre = ['s_add_u32 s64, s60, %d' % (ks * 2048)] if (j == 0 and ks % 2 == 0) else []
            out.append((pre, ('buffer_load_dwordx4 %s, v1, s[48:51], s64 offen offset:%d' % (A(ks, j), (ks % 2) * 2048 + j * 1024), 'A%d' % ks)))
        return out
    LOOK = NB - 1
    P1 = 324
    bars = list(range(14)) + [14, 18, 22, 25]
    def bar_cover(u):
        nxt = [b for b in bars if b > u]
        return list(range(u, nxt[0] if nxt else 27))
    def barpos(u): return max(0, 2 * (12 * u - LOOK + 1))
    def need_unit(u): return barpos(max(b for b in bars if b <= u))
    def war_ok(u):
        if u < 12: return 0
        b = min(b for b in bars if b >= u - 12 + 2)
        return barpos(b) + 1
    LEAD = opt.get('lead1', 64)
    ev = []
    for u in range(14): ev.append((need_unit(u), 0, u))
    for ks in range(18): ev.append((18 * ks, 1, ks))
    ev.sort()
    LQ = []
    for need, kind, n in ev:
        for pre, ld in (dmaB(n) if kind == 0 else ldA(n)):
            LQ.append((max(need - LEAD, war_ok(n) if kind == 0 else 0), pre, ld, 0))
    CB = opt.get('cB', 80); CS = opt.get('cS', 70)
    def addB(us):
        for u in us:
            for pre, ld in dmaB(u): LQ.append((war_ok(u), pre, ld, CB))
    for _ in range(opt.get('pro', 10)):
        e, pre, ld, c_ = LQ.pop(0)
        for x in pre: a(x)
        emit(ld)
    c = Cap()
    c('s_mul_i32 s70, s22, 144')
    c('s_mul_i32 s71, s23, 9')
    c('s_add_u32 s70, s70, s71')
    c('s_lshl_b32 s70, s70, 10')
    c('s_add_u32 s71, s70, 0x%x' % Z2_F)
    c('s_add_u32 s70, s70, 0x%x' % Z1_P)
    c('s_lshl_b32 s72, s22, 12')
    c('s_add_u32 s72, s72, 0x%x' % PSTAT)
    c('s_lshl_b32 s73, s23, 8')
    c('s_add_u32 s73, s73, s72')
    srd(c, 24, 4, S * D * 2)
    srd(c, 28, 6, S * D * 2)
    srd(c, 32, 8, D * 8)
    srd(c, 36, 10, D * S * 2)
    srd(c, 40, 12, S * S * 2)
    srd(c, 44, 14, FH * D * 2)
    c('s_mov_b32 s74, 0x11111111')
    c('s_mov_b32 s75, 0x11111111')
    for r in range(2):
        c('v_mov_b32 v%d, 0x%x' % (4 + r, f2u(K2C)))
        c('v_mov_b32 v%d, 0x%x' % (6 + r, f2u(K1C)))
        c('v_mov_b32 v%d, 1.0' % (12 + r))
    c('v_mov_b32 v11, 0x%x' % f2u(1.0 / FH))
    c('s_lshl_b32 s65, s3, 6')
    c('v_add_u32 v3, s65, v0')
    for x in kv_addr(3, 40, 's2'): c(x)
    c('v_lshrrev_b32 v10, 4, v0')
    c('v_bfe_u32 v54, v0, 2, 2')
    c('v_lshlrev_b32 v54, 8, v54')
    c('v_lshl_add_u32 v54, v10, 6, v54')
    c('v_and_b32 v8, 3, v0')
    c('v_lshl_add_u32 v54, v8, 4, v54')
    c('v_lshrrev_b32 v55, 2, v1')
    c('v_lshlrev_b32 v56, 7, v0')
    c('s_lshl_b32 s93, s3, 8')
    c('s_add_u32 s93, s93, s2')
    c('s_lshl_b32 s76, s93, 13')
    c('v_add_u32 v56, s76, v56')
    c('v_subrev_u32 v53, %d, v56' % (324 * 8192))
    c('s_mov_b32 s94, 200000')
    FQ = [(4, x) for x in c.l]
    side = opt.get('side', 7)
    PL = 48 + 16
    addB(range(14, 24))
    clk = {'t': 0.0, 'free': 0.0}
    pos = [0]
    def pump():
        if LQ and LQ[0][0] <= pos[0] and (LQ[0][3] == 0 or clk['t'] >= clk['free']):
            e, pre, ld, c_ = LQ.pop(0)
            for x in pre: a(x)
            emit(ld)
            clk['free'] = max(clk['free'], clk['t'] - 100) + c_
            return 1
        return 0
    def force(tag):
        while tag in [l[2][1] for l in LQ]:
            e, pre, ld, c_ = LQ.pop(0)
            assert e <= pos[0]
            print('forced', ld[1], 'at', pos[0], file=sys.stderr)
            for x in pre: a(x)
            emit(ld)
    state = {'seg': 0, 'nrd': 0}
    def rdB(n):
        u = n // 12
        if n % 12 == 0 and u in bars:
            for uu in bar_cover(u): force('B%d' % uu)
            vm.wait(a, 'B%d' % bar_cover(u)[-1])
            a('s_barrier')
        off = (n % 144) * 1024
        seg = off // 65536
        if seg != state['seg']:
            a('v_add_u32 v2, %d, v1' % (seg * 65536))
            state['seg'] = seg
        a('ds_read_b128 %s, v2 offset:%d' % (vr(BR + (n % NB) * 4, 4), off % 65536))
        state['nrd'] = n + 1
    def useB(n):
        a('s_waitcnt lgkmcnt(%d)' % (state['nrd'] - 1 - n))
        return vr(BR + (n % NB) * 4, 4)
    for n in range(LOOK): rdB(n)
    def fill(slots):
        clk['t'] += 17 if pos[0] > P1 else 20
        slots -= pump()
        ns = 0
        while FQ and FQ[0][0] <= pos[0] and slots > 0:
            x = FQ[0][1]
            if isinstance(x, tuple) and x[0] == 'WAIT':
                if x[1] in [l[2][1] for l in LQ]: break
                FQ.pop(0); vm.wait(a, x[1]); continue
            if isinstance(x, tuple) and x[0] == 'BLOCK':
                FQ.pop(0)
                for y in x[1]:
                    if callable(y): y()
                    else: emit(y)
                slots -= 2
                continue
            if isinstance(x, tuple):
                if clk['t'] < clk['free'] and pos[0] < 10000: break
                clk['free'] = max(clk['free'], clk['t'] - 100) + CS
            if cost(x) > slots and slots < 2: break
            FQ.pop(0); emit(x); slots -= cost(x)
            if cost(x) == 0:
                ns += 1
                if ns % 2 == 0: slots -= 1
    for ks in range(18):
        if ks == 1: stamp(a, 15, 1)
        force('A%d' % ks)
        vm.wait(a, 'A%d' % ks)
        for jt in range(9):
            n = ks * 9 + jt
            b = useB(n)
            for j in range(2):
                cc = vr(C2 + jt * 8 + j * 4, 4)
                a('v_mfma_f32_16x16x32_bf16 %s, %s, %s, %s' % (cc, A(ks, j), b, cc if ks else '0'))
                pos[0] += 1
                fill(2 if j == 0 else 1)
            if n + LOOK < 168: rdB(n + LOOK)
    assert not FQ
    stamp(a, 15, 2)
    def pr(r): return 'v[%d:%d]' % (r, r + 1)
    pairs = [(C2 + 8 * jt + 2 * i, T + 8 * jt + 2 * i, i, jt) for jt in range(9) for i in range(4)]
    G = []
    for x, t, i, jt in pairs: G.append('v_pk_mul_f32 %s, %s, %s' % (pr(t), pr(x), pr(x)))
    for x, t, i, jt in pairs: G.append('v_pk_fma_f32 %s, %s, v[4:5], v[6:7]' % (pr(t), pr(t)))
    for x, t, i, jt in pairs: G.append('v_pk_mul_f32 %s, %s, %s' % (pr(t), pr(x), pr(t)))
    for r in range(72): G.append('v_exp_f32 v%d, v%d' % (T + r, T + r))
    for x, t, i, jt in pairs: G.append('v_pk_add_f32 %s, %s, v[12:13]' % (pr(t), pr(t)))
    for r in range(72): G.append('v_rcp_f32 v%d, v%d' % (T + r, T + r))
    for x, t, i, jt in pairs: G.append('v_pk_mul_f32 %s, %s, %s' % (pr(x), pr(x), pr(t)))
    SU = T; SQ = T + 8
    for x, t, i, jt in pairs:
        if jt == 0:
            G.append('v_pk_mul_f32 %s, %s, %s' % (pr(SQ + 2 * i), pr(x), pr(x)))
        else:
            G.append('v_pk_add_f32 %s, %s, %s' % (pr(SU + 2 * i), pr(SU + 2 * i) if jt > 1 else pr(x - 8), pr(x)))
            G.append('v_pk_fma_f32 %s, %s, %s, %s' % (pr(SQ + 2 * i), pr(x), pr(x), pr(SQ + 2 * i)))
    kvpos = opt.get('kvpos', -1)
    if side & 1 and kvpos < 0:
        k0 = [n for n, l in enumerate(LQ) if l[2][1] == 'B%d' % (-kvpos + 17)]
        k0 = k0[0] if k0 else 0
        LQ[k0:k0] = [(0, [], x, opt.get('cK', 40)) for x in kv_loads(40, 16)]
    for x in G:
        a(x)
        clk['t'] += 4.4 * cost(x)
        pump()
    TT = T + 16; U = T + 24
    a('s_nop 0')
    for e in range(8): a('v_add_f32 v%d, v%d, v%d row_ror:8 bank_mask:0x3' % (TT + e, SU + e, SU + e))
    for e in range(8): a('v_add_f32 v%d, v%d, v%d row_ror:8 bank_mask:0xc' % (TT + e, SQ + e, SQ + e))
    for i in range(4): a('v_add_f32 v%d, v%d, v%d row_half_mirror bank_mask:0x5' % (U + i, TT + 2 * i, TT + 2 * i))
    for i in range(4): a('v_add_f32 v%d, v%d, v%d row_half_mirror bank_mask:0xa' % (U + i, TT + 2 * i + 1, TT + 2 * i + 1))
    for i in range(4): a('v_add_f32 v%d, v%d, v%d quad_perm:[1,0,3,2]' % (U + i, U + i, U + i))
    for i in range(4): a('v_add_f32 v%d, v%d, v%d quad_perm:[2,3,0,1]' % (U + i, U + i, U + i))
    a('s_mov_b64 exec, s[74:75]')
    emit(('buffer_store_dwordx4 %s, v55, s[48:51], s73 offen sc1' % vr(U, 4), 'ST'))
    a('s_mov_b64 exec, -1')
    stamp(a, 15, 3)
    rdB(168)
    addB(range(24, 27))
    W = T + 32; PL = T; SC = T + 16; BI = 48
    polls = [('buffer_load_dwordx4 %s, v54, s[48:51], s72 offen offset:%d sc1' % (vr(PL + 4 * i, 4), i * 1024), 'PL') for i in range(4)]
    pp = P1 + opt.get('pollpos', 70)
    for x in polls: LQ.append((pp, [], x, 20))
    tp = P1 + opt.get('tchpos', 80)
    if side & 1 and kvpos >= 0:
        for x in kv_loads(40, 16): LQ.append((P1 + kvpos, [], x, opt.get('cK', 40)))
    if side & 2: LQ.append((tp, [], ('buffer_load_dword v57, v56, s[40:43], 0 offen', 'TCH'), 300))
    if side & 4:
        LQ.append((tp, [], ('buffer_load_dword v58, v56, s[44:47], 0 offen', 'TCH'), 300))
        LQ.append((tp, [], ('buffer_load_dword v59, v53, s[36:39], 0 offen', 'TCH'), 300))
    kvf = [(0, ('WAIT', 'KV'))] + [(0, x) for x in kv_compute(16, W) + kv_store(3, 40, W, 's2')]
    if side & 1 and kvpos < 0: FQ += [(P1 + opt.get('kvc', 10), x[1]) for x in kvf]
    def check():
        vm.wait(a, 'PL')
        a('s_branch K1_chk')
        a.label('K1_poll')
        for x in polls: a(x[0])
        a('s_waitcnt vmcnt(0)')
        a.label('K1_chk')
        a('v_max3_u32 v8, v%d, v%d, v%d' % (PL, PL + 1, PL + 2))
        a('v_max3_u32 v9, v%d, v%d, v%d' % (PL + 3, PL + 4, PL + 5))
        for i in range(6, 14, 4):
            a('v_max3_u32 v8, v8, v%d, v%d' % (PL + i, PL + i + 1))
            a('v_max3_u32 v9, v9, v%d, v%d' % (PL + i + 2, PL + i + 3))
        a('v_max3_u32 v8, v8, v%d, v%d' % (PL + 14, PL + 15))
        a('v_max_u32 v8, v8, v9')
        a('v_cmp_eq_u32 vcc, -1, v8')
        a('s_sub_u32 s94, s94, 1')
        a('s_cmp_eq_u32 s94, 0')
        a('s_cbranch_scc1 K1_polldone')
        a('s_cbranch_vccnz K1_poll')
        a.label('K1_polldone')
        stamp(a, 15, 4)
    cp = P1 + opt.get('chkpos', 125)
    FQ.append((cp, ('WAIT', 'PL')))
    FQ.append((cp, ('BLOCK', [check])))
    c = Cap()
    for r in range(4): c('v_add_f32 v%d, v%d, v%d' % (PL + r, PL + r, PL + 4 + r))
    for r in range(4): c('v_add_f32 v%d, v%d, v%d' % (PL + 8 + r, PL + 8 + r, PL + 12 + r))
    for r in range(4): c('v_add_f32 v%d, v%d, v%d' % (PL + r, PL + r, PL + 8 + r))
    for sh in (4, 8):
        for r in range(4): c('v_add_f32 v%d, v%d, v%d row_ror:%d' % (PL + r, PL + r, PL + r, sh))
    M = PL + 4; Vv = PL + 8
    for r in range(4): c('v_mul_f32 v%d, v%d, v11 quad_perm:[0,1,0,1]' % (M + r, PL + r))
    for r in range(4): c('v_mul_f32 v%d, v%d, v11 quad_perm:[2,3,2,3]' % (Vv + r, PL + r))
    for r in range(4): c('v_fma_f32 v%d, -v%d, v%d, v%d' % (Vv + r, M + r, M + r, Vv + r))
    for r in range(4): c('v_max_f32 v%d, 0, v%d' % (Vv + r, Vv + r))
    def round2(r):
        c('v_cvt_pk_bf16_f32 v%d, v%d, v%d' % (r + 1, r, r + 1))
        c('v_lshlrev_b32 v%d, 16, v%d' % (r, r + 1))
        c('v_and_b32 v%d, 0xffff0000, v%d' % (r + 1, r + 1))
    round2(Vv); round2(Vv + 2)
    for r in range(4): c('v_add_f32 v%d, 0x%x, v%d' % (Vv + r, f2u(1e-5), Vv + r))
    round2(Vv); round2(Vv + 2)
    for r in range(4): c('v_sqrt_f32 v%d, v%d' % (Vv + r, Vv + r))
    round2(M); round2(M + 2)
    round2(Vv); round2(Vv + 2)
    for r in range(4): c('v_rcp_f32 v%d, v%d' % (Vv + r, Vv + r))
    c('s_nop 0')
    for r in range(4): c('v_mul_f32 v%d, -v%d, v%d' % (M + r, M + r, Vv + r))
    BI = T + 68 if False else 60
    SC = T + 12; BI = T + 20
    for e in range(8):
        p = e & 1
        c('v_mov_b32 v%d, v%d quad_perm:[%d,%d,%d,%d]' % (SC + e, Vv + (e >> 1), p, p, p, p))
    for e in range(8):
        p = e & 1
        c('v_mov_b32 v%d, v%d quad_perm:[%d,%d,%d,%d]' % (BI + e, M + (e >> 1), p, p, p, p))
    for jt in range(9):
        b = C2 + jt * 8
        for e in range(8): c('v_fma_f32 v%d, v%d, v%d, v%d' % (b + e, b + e, SC + e, BI + e))
        for i in range(4): c('v_cvt_pk_bf16_f32 v%d, v%d, v%d' % (b + i, b + 2 * i, b + 2 * i + 1))
        if jt in (4, 8): c('s_add_u32 s71, s71, 4096')
        c(('buffer_store_dwordx4 %s, v1, s[48:51], s71 offen offset:%d sc1' % (vr(b, 4), (jt % 4) * 1024), 'Z2'))
    FQ += [(0, x) for x in c.l]
    if side & 1 and kvpos >= 0: FQ += kvf
    pend = []
    for jt in range(9):
        cb_ = C1 + (jt & 1) * 8
        for ks in range(18):
            n = 162 + jt * 18 + ks
            b = useB(n)
            for j in range(2):
                cc = vr(cb_ + j * 4, 4)
                a('v_mfma_f32_16x16x32_bf16 %s, %s, %s, %s' % (cc, b, A(ks, j), cc if ks else '0'))
                pos[0] += 1
                if ks >= 4 and pend:
                    clk['t'] += 17
                    emit(pend.pop(0))
                    if pend and j == 0: emit(pend.pop(0))
                    if not pend: clk['free'] = max(clk['free'], clk['t'] - 100) + CS
                else:
                    fill(2 if j == 0 else opt.get('s2', 1))
            if n + LOOK < 324: rdB(n + LOOK)
        pend = ['v_cvt_pk_bf16_f32 v%d, v%d, v%d' % (cb_ + i, cb_ + 2 * i, cb_ + 2 * i + 1) for i in range(4)]
        if jt in (4, 8): pend.append('s_add_u32 s70, s70, 4096')
        pend.append(('buffer_store_dwordx4 %s, v1, s[48:51], s70 offen offset:%d sc1' % (vr(cb_, 4), (jt % 4) * 1024), 'Z1'))
    print('K1 leftover loads', len(LQ), 'fillers', len(FQ), file=sys.stderr)
    stamp(a, 15, 5)
    pos[0] = 10000
    a('s_nop 7')
    for x in pend: emit(x)
    while FQ or LQ: fill(2)
    stamp(a, 15, 6)
    stamp_flush(a, 15, 1, 4, 7)
    a.label('K1_end')
    a('s_endpgm')
    return kernel_desc(name, 512, 256), '; @launch kernel=k1_kernel grid=(256,1,1) block=(256,1,1) lds=%d' % 147456

def wout_store_addr2(c):
    c('s_lshr_b32 s71, s63, 1')
    c('s_mul_i32 s72, s71, 18')
    c('s_sub_u32 s72, s61, s72')
    c('s_lshr_b32 s73, s72, 1')
    c('s_mul_i32 s73, s73, 9')
    c('s_mul_i32 s71, s71, 81')
    c('s_add_u32 s71, s71, s73')
    c('s_lshl_b32 s71, s71, 10')
    c('s_add_u32 s71, s71, 0x%x' % WOUT_F)
    c('s_and_b32 s72, s72, 1')
    c('s_lshl_b32 s73, s72, 12')
    c('s_lshl_b32 s74, s72, 7')
    c('s_add_u32 s74, s74, 8192')
    c('s_lshl_b32 s72, s62, 4')
    c('v_bfe_u32 v38, v0, 2, 2')
    c('v_lshlrev_b32 v37, 9, v10')
    c('v_lshl_add_u32 v37, v38, 7, v37')
    c('v_add_u32 v38, s72, v38')
    c('v_and_b32 v39, 3, v0')
    c('v_lshl_add_u32 v37, v39, 3, v37')
    c('v_add_u32 v37, s68, v37')
    c('v_lshlrev_b32 v39, 4, v39')
    c('v_lshl_add_u32 v39, v10, 8, v39')
    c('v_add_u32 v39, s69, v39')
    c('s_mov_b32 s75, %d' % (4 * 81 * 1024))
    for nt in range(4):
        c('v_add_u32 v8, %d, v38' % (4 * nt))
        c('v_mul_u32_u24 v9, 57, v8')
        c('v_lshrrev_b32 v9, 10, v9')
        c('v_mul_u32_u24 v11, 18, v9')
        c('v_sub_u32 v11, v8, v11')
        c('v_mul_lo_u32 v9, v9, s75')
        c('v_lshrrev_b32 v8, 3, v11')
        c('v_lshlrev_b32 v8, 11, v8')
        c('v_and_b32 v14, 1, v11')
        c('v_lshl_add_u32 v8, v14, 10, v8')
        c('v_lshl_add_u32 v14, v14, 6, s74')
        c('v_cmp_le_u32 vcc, 16, v11')
        c('v_bfe_u32 v11, v11, 1, 2')
        c('v_lshl_add_u32 v8, v11, 6, v8')
        c('v_add_u32 v8, s73, v8')
        c('v_cndmask_b32 v8, v8, v14, vcc')
        c('v_add3_u32 v%d, v8, v9, v39' % (32 + nt))
    c('v_lshrrev_b32 v36, 3, v0')
    c('v_mul_u32_u24 v36, 1152, v36')
    c('v_and_b32 v8, 7, v0')
    c('v_lshl_add_u32 v36, v8, 4, v36')
    c('s_sub_u32 s72, s60, 700')
    c('s_lshl_b32 s72, s72, 13')
    c('v_lshlrev_b32 v38, 7, v0')
    c('v_add_u32 v38, s72, v38')

def wout_store_addr(a, vd, vt, vq):
    a('s_lshr_b32 s92, s86, 1')
    a('s_mul_i32 s95, s92, 18')
    a('s_sub_u32 s95, s82, s95')
    a('s_lshr_b32 s96, s95, 1')
    a('s_mul_i32 s96, s96, 9')
    a('s_mul_i32 s92, s92, 81')
    a('s_add_u32 s92, s92, s96')
    a('s_lshl_b32 s92, s92, 10')
    a('s_add_u32 s92, s92, 0x%x' % WOUT_F)
    a('s_cmp_ge_u32 s81, 648')
    a('s_cselect_b32 s92, 0x%x, s92' % WS_END)
    a('s_and_b32 s95, s95, 1')
    a('s_lshl_b32 s96, s95, 12')
    a('s_lshl_b32 s97, s95, 7')
    a('s_add_u32 s97, s97, 8192')
    a('s_lshl_b32 s95, s83, 4')
    a('v_bfe_u32 v%d, v0, 2, 2' % vt)
    a('v_add_u32 v%d, s95, v%d' % (vt, vt))
    a('v_and_b32 v%d, 3, v0' % (vt + 1))
    a('v_lshlrev_b32 v%d, 4, v%d' % (vt + 1, vt + 1))
    a('v_lshl_add_u32 v%d, v%d, 8, v%d' % (vt + 1, vq, vt + 1))
    a('s_mov_b32 s95, %d' % (4 * 81 * 1024))
    for nt in range(4):
        a('v_add_u32 v11, %d, v%d' % (4 * nt, vt))
        a('v_mul_u32_u24 v12, 57, v11')
        a('v_lshrrev_b32 v12, 10, v12')
        a('v_mul_u32_u24 v13, 18, v12')
        a('v_sub_u32 v13, v11, v13')
        a('v_mul_lo_u32 v12, v12, s95')
        a('v_lshrrev_b32 v11, 3, v13')
        a('v_lshlrev_b32 v11, 11, v11')
        a('v_and_b32 v14, 1, v13')
        a('v_lshl_add_u32 v11, v14, 10, v11')
        a('v_lshl_add_u32 v14, v14, 6, s97')
        a('v_cmp_le_u32 vcc, 16, v13')
        a('v_bfe_u32 v13, v13, 1, 2')
        a('v_lshl_add_u32 v11, v13, 6, v11')
        a('v_add_u32 v11, s96, v11')
        a('v_cndmask_b32 v11, v11, v14, vcc')
        a('v_add3_u32 v%d, v11, v12, v%d' % (vd + nt, vt + 1))

K2_LDS = 4 * 27 * 1024
def gen_k2(a, opt={}):
    name = 'k2_kernel'
    kernel_begin(a, name)
    a('s_cmp_ge_u32 s2, 256')
    a('s_cbranch_scc1 K2_end')
    a('s_load_dwordx2 s[18:19], s[0:1], 104')
    a('s_load_dwordx2 s[4:5], s[0:1], 72')
    stamp(a, 15, 0)
    wave_lane(a, 3)
    a('v_lshlrev_b32 v1, 4, v0')
    a('s_and_b32 s20, s2, 7')
    a('s_lshr_b32 s21, s2, 3')
    a('s_and_b32 s22, s20, 1')
    a('s_lshl_b32 s22, s22, 3')
    a('s_and_b32 s23, s21, 7')
    a('s_add_u32 s22, s22, s23')
    a('s_lshr_b32 s23, s20, 1')
    a('s_lshl_b32 s23, s23, 2')
    a('s_lshr_b32 s24, s21, 3')
    a('s_add_u32 s23, s23, s24')
    a('s_lshl_b32 s25, s22, 19')
    a('s_lshl_b32 s26, s3, 17')
    a('s_add_u32 s25, s25, s26')
    a('s_add_u32 s25, s25, 0x%x' % WSP_F)
    a('s_mul_i32 s26, s3, %d' % (16 * 144 * 1024))
    a('s_mul_i32 s27, s23, 9216')
    a('s_add_u32 s26, s26, s27')
    a('s_add_u32 s26, s26, 0x%x' % Z2_F)
    for p in range(4):
        a('s_add_u32 s28, s3, %d' % p)
        a('s_and_b32 s28, s28, 3')
        a('s_lshl_b32 s28, s28, 11')
        a('v_add_u32 v%d, s28, v1' % (4 + p))
    a('v_add_u32 v2, 4096, v1')
    a('v_add_u32 v3, 8192, v1')
    a('s_lshl_b32 s29, s22, 2')
    a('s_add_u32 s29, s29, s3')
    rot = opt.get('rot', 0)
    a('s_and_b32 s40, s21, 7')
    a('s_lshr_b32 s41, s21, 3')
    a('s_add_u32 s40, s40, s41')
    a('s_and_b32 s40, s40, %d' % rot)
    a('s_mul_i32 s41, s3, %d' % opt.get('wph', 0))
    a('v_bfe_u32 v10, v0, 2, 2')
    a('v_lshlrev_b32 v10, 3, v10')
    a('v_and_b32 v11, 3, v0')
    a('v_add_u32 v10, v10, v11')
    a('v_lshlrev_b32 v10, 1, v10')
    a('s_lshl_b32 s33, s29, 6')
    a('s_waitcnt lgkmcnt(0)')
    srd(a, 48, 18, WS_END, off=WS_BASE)
    srd(a, 52, 4, S * 2)
    vm = VM()
    def emit(x):
        if isinstance(x, tuple):
            a(x[0]); vm.issue(x[1])
        else: a(x)
    NO = 40
    GEL = 72; WB = 108; ZB = 140; XB = 248
    ownV = {}
    def acc(tt, ft, late=False):
        if tt < 2:
            return vr(ownV[(tt, ft)], 4) if late else ar((tt * 9 + ft) * 4, 4)
        return vr(NO + ((tt - 2) * 9 + ft) * 4, 4)
    def Wbuf(k, tt):
        if k < 15: return WB + 4 * tt
        if tt in (2, 3): return XB + 4 * (tt - 2)
        return ZB + 36 * (13 % 3) + 4 * {4: 0, 5: 1, 6: 2, 7: 3, 0: 4, 1: 5}[tt]
    def Zbuf(k, ft): return ZB + 36 * (k % 3) + 4 * ft
    def setoff(kind, k):
        l = ['s_add_u32 s42, s41, %d' % k, 's_and_b32 s42, s42, 15', 's_xor_b32 s42, s42, s40']
        if kind == 'W':
            l += ['s_lshl_b32 s42, s42, 13', 's_add_u32 s%d, s42, s25' % (44 + (k & 1))]
        else:
            l += ['s_mul_i32 s42, s42, %d' % (144 * 1024), 's_add_u32 s46, s42, s26']
        return l
    def ldW(k, tt): return ('buffer_load_dwordx4 %s, v%d, s[48:51], s%d offen offset:%d' % (ar(Wbuf(k, tt), 4), 4 + tt // 2, 44 + (k & 1), (tt & 1) * 1024), 'W%d_%d' % (k, tt))
    def ldZ(k, ft): return ('buffer_load_dwordx4 %s, v%d, s[48:51], s46 offen offset:%d' % (ar(Zbuf(k, ft), 4), 1 + ft // 4, (ft % 4) * 1024), 'Z%d' % k)
    groups = []
    for k in range(14):
        order = [2, 3, 4, 5, 6, 7]
        ins_ = max(0, 6 - k)
        order[ins_:ins_] = [0, 1]
        groups += [(k, tt) for tt in order]
    groups += [(14, 0), (14, 1)]
    for tt in range(2, 8): groups += [(14, tt), (15, tt)]
    groups += [(15, 0), (15, 1)]
    gend = {g: 9 * (i + 1) for i, g in enumerate(groups)}
    stepend = {k: max(gend[(k, tt)] for tt in range(8)) for k in range(16)}
    emit(('buffer_load_ushort v8, v10, s[52:55], s33 offen', 'b'))
    emit(('buffer_load_ushort v9, v10, s[52:55], s33 offen offset:8', 'b'))
    for x in setoff('Z', 0) + setoff('W', 0): a(x)
    emit(ldW(0, 2))
    for ft in range(9): emit(ldZ(0, ft))
    for tt in [3, 4, 5, 6, 7, 0, 1]: emit(ldW(0, tt))
    LQ = []
    def addZ(k, early):
        for ft in range(9): LQ.append((early, setoff('Z', k) if ft == 0 else [], ldZ(k, ft)))
    addZ(1, 0)
    z1pos = {}
    for k in range(14):
        zs = [(stepend[k - 1] if k else 0, setoff('Z', k + 2) if ft == 0 else [], ldZ(k + 2, ft)) for ft in range(9)]
        tts = [g[1] for g in groups if g[0] == k]
        ws_ = [(gend[(k, tt)], setoff('W', k + 1) if n == 0 else [], ldW(k + 1, tt)) for n, tt in enumerate(tts)]
        LQ.append(zs.pop(0))
        if 1 <= k <= 9:
            u = k - 1
            LQ.append((stepend[k - 1], [], ('buffer_load_dwordx4 %s, v%d, s[48:51], s32 offen offset:%d' % (vr(16 + 4 * (u & 1), 4), 1 + u // 4, (u % 4) * 1024), 'U%d' % u)))
        for n in range(8):
            LQ.append(zs.pop(0)); LQ.append(ws_.pop(0))
            if k == 13 and n == 3:
                LQ.append((0, setoff('W', 15), ldW(15, 2))); LQ.append((0, [], ldW(15, 3)))
    for tt in [4, 5, 6, 7, 0, 1]: LQ.append((stepend[13], [], ldW(15, tt)))
    a('s_mul_i32 s32, s29, %d' % (144 * 1024))
    a('s_add_u32 s32, s32, s27')
    a('s_add_u32 s32, s32, 0x%x' % Z1_P)
    a('v_mov_b32 v14, 0x%x' % f2u(K2C))
    a('s_lshr_b32 s36, s29, 1')
    a('s_mul_i32 s36, s36, 72')
    a('s_lshr_b32 s37, s23, 1')
    a('s_mul_i32 s37, s37, 9')
    a('s_add_u32 s36, s36, s37')
    a('s_lshl_b32 s36, s36, 12')
    a('s_and_b32 s37, s29, 1')
    a('s_lshl_b32 s37, s37, 11')
    a('s_add_u32 s36, s36, s37')
    a('s_add_u32 s36, s36, 0x%x' % H_F)
    a('s_and_b32 s37, s23, 1')
    a('s_lshl_b32 s38, s37, 10')
    a('s_add_u32 s38, s38, s36')
    a('s_add_u32 s38, s38, %d' % (8 * 4096))
    a('s_lshl_b32 s37, s37, 14')
    a('s_add_u32 s36, s36, s37')
    for p in range(1, 4):
        a('s_add_u32 s34, s3, %d' % p)
        a('s_and_b32 s34, s34, 3')
        a('s_mul_i32 s34, s34, %d' % (27 * 1024))
        a('s_add_u32 s34, s34, %d' % ((p - 1) * 9 * 1024))
        a('v_add_u32 v%d, s34, v1' % (10 + p))
    a('s_mul_i32 s35, s3, %d' % (27 * 1024))
    vm.wait(a, 'b')
    a('v_lshlrev_b32 v8, 16, v8')
    a('v_lshlrev_b32 v9, 16, v9')
    for j in range(2):
        for r in range(4): a('v_accvgpr_write_b32 a%d, v%d' % (GEL + 4 * j + r, 8 + j))
    a('v_add_u32 v10, s35, v1')
    FQ = []
    for u in range(9 if not opt.get('nogelu') else 0):
        e0 = stepend[u + 1]
        FQ.append((e0, ('WAIT', 'U%d' % u)))
        z = [24 + i for i in range(8)]
        src = 16 + 4 * (u & 1)
        for i in range(4):
            FQ.append((e0, 'v_lshlrev_b32 v%d, 16, v%d' % (z[2 * i], src + i)))
            FQ.append((e0, 'v_and_b32 v%d, 0xffff0000, v%d' % (z[2 * i + 1], src + i)))
        for x in gelu_ops(z, [32 + i for i in range(8)], 14): FQ.append((e0, x))
        for i in range(4): FQ.append((e0, 'v_cvt_pk_bf16_f32 v%d, v%d, v%d' % (32 + i, z[2 * i], z[2 * i + 1])))
        for i in range(4): FQ.append((e0, 'v_accvgpr_write_b32 a%d, v%d' % (GEL + 4 * u + i, 32 + i)))
    e0 = stepend[12]
    FQ += [(e0, x) for x in [
        'v_bfe_u32 v24, v0, 2, 2', 'v_lshrrev_b32 v25, 4, v0', 'v_cmp_eq_u32 vcc, v24, v25', 'v_and_b32 v24, 1, v0',
        'v_lshlrev_b32 v24, 4, v24', 'v_mov_b32 v25, 0x3f80', 'v_lshlrev_b32 v24, v24, v25', 'v_cndmask_b32 v24, 0, v24, vcc',
        'v_and_b32 v25, 2, v0', 'v_cmp_eq_u32 vcc, 0, v25', 'v_mov_b32 v16, 0', 'v_mov_b32 v17, 0', 'v_mov_b32 v20, 0', 'v_mov_b32 v21, 0',
        'v_cndmask_b32 v18, 0, v24, vcc', 'v_cndmask_b32 v19, v24, v21, vcc']]
    freeY = []; Xregs = []
    own_list = [(j, ft) for j in range(2) for ft in range(9)]
    def base(tt, ft): return NO + ((tt - 2) * 9 + ft) * 4
    def packwr(X, Y, p, slot, e):
        for r in range(2): FQ.append((e, 'v_cvt_pk_bf16_f32 v%d, v%d, v%d' % (X + r, X + 2 * r, X + 2 * r + 1)))
        for r in range(2): FQ.append((e, 'v_cvt_pk_bf16_f32 v%d, v%d, v%d' % (X + 2 + r, Y + 2 * r, Y + 2 * r + 1)))
        FQ.append((e, 'ds_write_b128 v%d, %s offset:%d' % (10 + p, vr(X, 4), slot * 1024)))
        Xregs.append(X)
        if own_list:
            o = own_list.pop(0); ownV[o] = Y
            for r in range(4): FQ.append((e, 'v_accvgpr_read_b32 v%d, a%d' % (Y + r, (o[0] * 9 + o[1]) * 4 + r)))
        else:
            freeY.append(Y)
    for tt in range(2, 8):
        p = tt // 2; j = tt & 1
        g0 = gend[(15, tt)] - 9
        for i in range(4):
            packwr(base(tt, 2 * i), base(tt, 2 * i + 1), p, 2 * i + j, g0 + 2 * i + 2 + 7)
        if j == 1:
            packwr(base(tt - 1, 8), base(tt, 8), p, 8, g0 + 9 + 7)
    pos = 0; credit = 0.0
    lrate = opt.get('lrate', 0.27)
    for (k, tt) in groups:
        if pos == 72: stamp(a, 15, 1)
        if pos == 72 * 14: stamp(a, 15, 2)
        late = (k == 15 and tt < 2)
        if late:
            while any('accvgpr_read' in (x[1] if isinstance(x[1], str) else '') for x in FQ):
                emit(FQ.pop(0)[1])
        vm.wait(a, 'Z%d' % k)
        assert ('W%d_%d' % (k, tt)) not in [l[2][1] for l in LQ], (k, tt)
        assert ('Z%d' % k) not in [l[2][1] for l in LQ], (k, tt)
        vm.wait(a, 'W%d_%d' % (k, tt))
        for ft in range(9):
            c = acc(tt, ft, late)
            cin = c if k else ('0' if tt >= 2 else ar(GEL + 4 * tt, 4))
            a('v_mfma_f32_16x16x32_bf16 %s, %s, %s, %s' % (c, ar(Zbuf(k, ft), 4), ar(Wbuf(k, tt), 4), cin))
            pos += 1
            slots = 2 if k >= 13 else opt.get('slots', 2)
            credit = min(credit + lrate * (2.0 if pos < 40 else 1.0), 2.0)
            if LQ and credit >= 1.0 and LQ[0][0] <= pos:
                e, pre, ld = LQ.pop(0)
                for x in pre: a(x)
                emit(ld); credit -= 1.0; slots -= 1
            while FQ and FQ[0][0] <= pos and slots > 0:
                x = FQ[0][1]
                if isinstance(x, tuple) and x[0] == 'WAIT':
                    FQ.pop(0); vm.wait(a, x[1]); continue
                if cost(x) > slots and slots < (2 if k >= 13 else opt.get('slots', 2)): break
                FQ.pop(0); emit(x); slots -= cost(x)
    assert not LQ
    if FQ: a('s_nop 3')
    for x in FQ: emit(x[1])
    stamp(a, 15, 3)
    a('s_waitcnt lgkmcnt(0)')
    a('s_barrier')
    stamp(a, 15, 4)
    rd = []
    slots_ = [0, 1, 2, 3, 4, 5, 6, 7, 8]
    n = 0
    R = {}
    for sl in slots_:
        for p in range(3):
            R[(sl, p)] = Xregs[n]
            rd.append('ds_read_b128 %s, v10 offset:%d' % (vr(Xregs[n], 4), (p * 9 + sl) * 1024)); n += 1
    def tiles(sl):
        if sl < 8: return (sl & 1, 2 * (sl >> 1)), (sl & 1, 2 * (sl >> 1) + 1)
        return (0, 8), (1, 8)
    for x in rd[:12]: a(x)
    nissued = 12
    G = [freeY[0], freeY[1], freeY[2], freeY[3], freeY[4], freeY[5]]
    def unpack(sl):
        l = []
        tX, tY = tiles(sl)
        for n_, (j, ft) in enumerate((tX, tY)):
            g = G[(2 * sl + n_) % 6]
            for r in range(2): l.append('v_accvgpr_read_b32 v%d, a%d' % (g + 2 * r + 1, GEL + 4 * ft + 2 * j + r))
            for r in range(2):
                l.append('v_lshlrev_b32 v%d, 16, v%d' % (g + 2 * r, g + 2 * r + 1))
                l.append('v_and_b32 v%d, 0xffff0000, v%d' % (g + 2 * r + 1, g + 2 * r + 1))
        return l
    def finish(sl):
        l = []
        tX, tY = tiles(sl)
        o = 24 + 4 * (sl % 4)
        for n_, t in enumerate((tX, tY)):
            g = G[(2 * sl + n_) % 6]; c = ownV[t]
            for r in range(4): l.append('v_mul_f32 v%d, v%d, v%d' % (c + r, c + r, g + r))
        for n_, t in enumerate((tX, tY)):
            c = ownV[t]
            for r in range(2): l.append('v_cvt_pk_bf16_f32 v%d, v%d, v%d' % (o + 2 * n_ + r, c + 2 * r, c + 2 * r + 1))
        if sl < 8:
            l.append('buffer_store_dwordx4 %s, v1, s[48:51], s36 offen offset:%d sc1' % (vr(o, 4), (sl & 1) * 1024))
            if sl & 1: l.append('s_add_u32 s36, s36, 4096')
        else:
            l.append('buffer_store_dwordx4 %s, v1, s[48:51], s38 offen sc1' % vr(o, 4))
        return l
    for x in unpack(0) + unpack(1): a(x)
    for sl in slots_:
        fill = []
        if sl >= 1: fill += ['s_nop 0'] * 0
        fl = (unpack(sl + 1) if 1 <= sl < 8 else [])
        fin = finish(sl - 1) if sl >= 1 else []
        tX, tY = tiles(sl)
        cnt = 0
        for p in range(3):
            a('s_waitcnt lgkmcnt(%d)' % (nissued - (3 * sl + p) - 1))
            for (t, Sreg) in ((tX, 18), (tY, 16)):
                c = vr(ownV[t], 4)
                a('v_mfma_f32_16x16x32_bf16 %s, %s, %s, %s' % (c, vr(Sreg, 4), vr(R[(sl, p)], 4), c))
                cnt += 1
                for _ in range(4):
                    if fl: a(fl.pop(0))
                    elif cnt >= 3 and fin: a(fin.pop(0))
            if nissued < 27:
                a(rd[nissued]); nissued += 1
        for x in fl + fin: a(x)
    a('s_nop 7')
    for x in finish(8): a(x)
    stamp(a, 15, 5)
    stamp_flush(a, 15, 2, 14, 6)
    a.label('K2_end')
    a('s_endpgm')
    return kernel_desc(name, 512, 256), '; @launch kernel=k2_kernel grid=(256,1,1) block=(256,1,1) lds=%d' % K2_LDS

def pr(r): return 'v[%d:%d]' % (r, r + 1)
def gelu_pure(X, T, n):
    P = [(X + 2 * i, T + 2 * i) for i in range(n // 2)]
    G = []
    for x, t in P: G.append('v_pk_mul_f32 %s, %s, %s' % (pr(t), pr(x), pr(x)))
    for x, t in P: G.append('v_pk_fma_f32 %s, %s, v[4:5], v[6:7]' % (pr(t), pr(t)))
    for x, t in P: G.append('v_pk_mul_f32 %s, %s, %s' % (pr(t), pr(x), pr(t)))
    for r in range(n): G.append('v_exp_f32 v%d, v%d' % (T + r, T + r))
    for x, t in P: G.append('v_pk_add_f32 %s, %s, v[12:13]' % (pr(t), pr(t)))
    for r in range(n): G.append('v_rcp_f32 v%d, v%d' % (T + r, T + r))
    for x, t in P: G.append('v_pk_mul_f32 %s, %s, %s' % (pr(x), pr(x), pr(t)))
    return G

class Sched:
    def __init__(self, a):
        self.a = a; self.vm = VM(); self.LQ = []; self.FQ = []; self.t = 0.0; self.free = 0.0; self.pos = 0; self.CS = 70; self.BQ = []
    def emit(self, x):
        if callable(x): x()
        elif isinstance(x, tuple):
            self.a(x[0]); self.vm.issue(x[1])
        else: self.a(x)
    def pending(self, tag): return tag in [l[2][1] for l in self.LQ]
    def pump(self):
        LQ = self.LQ
        if LQ and LQ[0][0] <= self.pos and (LQ[0][3] == 0 or self.t >= self.free):
            e, pre, ld, c_ = LQ.pop(0)
            for x in pre: self.a(x)
            self.emit(ld)
            self.free = max(self.free, self.t - 100) + c_
            return 1
        return 0
    def force(self, tag):
        while self.pending(tag):
            e, pre, ld, c_ = self.LQ.pop(0)
            assert e <= self.pos, (tag, e, self.pos, ld)
            print('forced', ld[1], 'at', self.pos, file=sys.stderr)
            for x in pre: self.a(x)
            self.emit(ld)
    def wait(self, tag):
        self.force(tag); self.vm.wait(self.a, tag)
    def fill(self, slots, dt=17, flush=False):
        self.t += dt
        slots -= self.pump()
        FQ = self.FQ; ns = 0
        while FQ and (FQ[0][0] <= self.pos or flush) and slots > 0:
            x = FQ[0][1]
            if isinstance(x, tuple) and x[0] == 'WAIT':
                if self.pending(x[1]): break
                FQ.pop(0); self.vm.wait(self.a, x[1]); continue
            if isinstance(x, tuple) and x[0] == 'BLOCK':
                FQ.pop(0)
                for y in x[1]: self.emit(y)
                slots -= 2
                continue
            if isinstance(x, tuple):
                if self.t < self.free and not flush: break
                self.free = max(self.free, self.t - 100) + self.CS
            if cost(x) > slots and slots < 2: break
            FQ.pop(0); self.emit(x); slots -= cost(x)
            if cost(x) == 0:
                ns += 1
                if ns % 2 == 0: slots -= 1
        self.back(slots)
    def back(self, slots):
        BQ = self.BQ
        while BQ and BQ[0][0] <= self.pos and slots > 0:
            x = BQ.pop(0)[1]
            if isinstance(x, tuple) and x[0] == 'WAIT': self.vm.wait(self.a, x[1])
            else:
                self.emit(x); slots -= 1
            if not BQ: self.bqend = self.pos
    def pure(self, l):
        for x in l:
            self.emit(x)
            if isinstance(x, str):
                self.t += 4.4 * max(cost(x), 0.5)
                if x.startswith('v_') and 'vcc' not in x: self.pump()

def gen_kf(a, opt={}):
    name = 'k1_kernel'
    kernel_begin(a, name)
    a('s_cmp_ge_u32 s2, 256')
    a('s_cbranch_scc1 KF_end')
    a('s_load_dwordx2 s[48:49], s[0:1], 104')
    a('s_load_dwordx8 s[4:11], s[0:1], 8')
    a('s_load_dwordx4 s[12:15], s[0:1], 64')
    a('s_load_dwordx2 s[16:17], s[0:1], 80')
    stamp(a, 15, 0)
    wave_lane(a, 3)
    a('v_lshlrev_b32 v1, 4, v0')
    wg_map_16x16(a)
    a('s_mov_b32 s19, s22')
    a('s_lshl_b32 s22, s22, 2')
    a('s_add_u32 s22, s22, s3')
    a('s_mul_i32 s60, s22, %d' % (36 * 1024))
    a('s_mul_i32 s61, s23, %d' % (324 * 1024))
    a('s_mul_i32 s62, s3, 3072')
    a('s_add_u32 s61, s61, s62')
    a('s_add_u32 s61, s61, 0x%x' % WIN_F)
    a('s_mov_b32 s50, 0x%x' % WS_END)
    a('s_mov_b32 s51, 0x00020000')
    a('v_add_u32 v2, %d, v1' % 131072)
    a('s_waitcnt lgkmcnt(0)')
    if WS_BASE:
        a('s_add_u32 s48, s48, 0x%x' % WS_BASE)
        a('s_addc_u32 s49, s49, 0')
    sc = Sched(a); vm = sc.vm; LQ = sc.LQ; FQ = sc.FQ
    C2 = 184; T = 112; BR = 64; NB = 8
    def A(ks, j): return ar((ks * 2 + j) * 4, 4)
    def slotB(u): return ((u - 1) % 13) * 12288
    def dmaB(u):
        out = []
        for i in range(3):
            pre = ['s_add_u32 m0, s62, %d' % slotB(u), 's_add_u32 s63, s61, %d' % (12 * u * 1024)] if i == 0 else []
            out.append((pre, ('buffer_load_dwordx4 v1, s[48:51], s63 offen offset:%d lds' % (1024 * i), 'B%d' % u)))
        return out
    def ldA(ks):
        out = []
        for j in range(2):
            pre = ['s_add_u32 s64, s60, %d' % (ks * 2048)] if (j == 0 and ks % 2 == 0) else []
            out.append((pre, ('buffer_load_dwordx4 %s, v1, s[48:51], s64 offen offset:%d' % (A(ks, j), (ks % 2) * 2048 + j * 1024), 'A%d' % ks)))
        return out
    LOOK = NB - 1
    P1 = 324
    bars = list(range(14)) + [14, 17, 19, 21, 23, 25]
    def bar_cover(u):
        if u == 25: return [25, 26]
        nxt = [b for b in bars if b > u]
        return list(range(u, nxt[0]))
    def barpos(u): return max(0, 2 * (12 * u - LOOK + 1))
    def war_ok(u):
        if u < 13: return 0
        if u >= 25: return P1 + 1
        return barpos(u - 13 + 2) + 1
    LEAD = opt.get('lead1', 64)
    ev = [(barpos(u), 0, u) for u in range(14)] + [(18 * ks, 1, ks) for ks in range(18)]
    ev.sort()
    for need, kind, n in ev:
        for pre, ld in (dmaB(n) if kind == 0 else ldA(n)):
            LQ.append((max(need - LEAD, war_ok(n) if kind == 0 else 0), pre, ld, 0))
    CB = opt.get('cB', 80)
    for _ in range(opt.get('pro', 10)):
        e, pre, ld, c_ = LQ.pop(0)
        for x in pre: a(x)
        sc.emit(ld)
    c = Cap()
    c('s_mul_i32 s71, s22, 144')
    c('s_mul_i32 s70, s23, 9')
    c('s_add_u32 s71, s71, s70')
    c('s_lshl_b32 s71, s71, 10')
    c('s_add_u32 s71, s71, 0x%x' % Z2_F)
    c('s_lshl_b32 s72, s22, 12')
    c('s_add_u32 s72, s72, 0x%x' % PSTAT)
    c('s_lshl_b32 s73, s23, 8')
    c('s_add_u32 s76, s73, 0x%x' % ZFLAG)
    c('s_add_u32 s73, s73, s72')
    c('s_lshl_b32 s77, s22, 2')
    c('s_add_u32 s77, s77, s76')
    c('s_lshl_b32 s78, s3, 6')
    c('s_add_u32 s76, s76, s78')
    srd(c, 24, 4, S * D * 2)
    srd(c, 28, 6, S * D * 2)
    srd(c, 32, 8, D * 8)
    srd(c, 36, 10, D * S * 2)
    srd(c, 40, 12, S * S * 2)
    srd(c, 44, 16, FH * D * 2)
    srd(c, 52, 14, S * 2)
    c('s_mov_b32 s74, 0x11111111')
    c('s_mov_b32 s75, 0x11111111')
    for r in range(2):
        c('v_mov_b32 v%d, 0x%x' % (4 + r, f2u(K2C)))
        c('v_mov_b32 v%d, 0x%x' % (6 + r, f2u(K1C)))
        c('v_mov_b32 v%d, 1.0' % (12 + r))
    c('v_mov_b32 v11, 0x%x' % f2u(1.0 / FH))
    c('v_add_u32 v3, s78, v0')
    for x in kv_addr(3, 40, 's2'): c(x)
    c('v_lshrrev_b32 v10, 4, v0')
    c('v_bfe_u32 v9, v0, 2, 2')
    c('v_lshlrev_b32 v54, 8, v9')
    c('v_lshl_add_u32 v54, v10, 6, v54')
    c('v_and_b32 v8, 3, v0')
    c('v_lshl_add_u32 v54, v8, 4, v54')
    c('v_lshrrev_b32 v55, 2, v1')
    c('v_lshl_add_u32 v52, v9, 3, v8')
    c('v_lshlrev_b32 v52, 1, v52')
    c('s_lshl_b32 s79, s22, 6')
    c('s_mov_b32 s94, 200000')
    c('v_lshrrev_b32 v8, 3, v0')
    c('v_lshrrev_b32 v9, 2, v8')
    c('v_lshlrev_b32 v9, 3, v9')
    c('v_and_b32 v8, 3, v8')
    c('v_add_u32 v8, v8, v9')
    c('v_lshlrev_b32 v8, 12, v8')
    c('v_and_b32 v9, 7, v0')
    c('v_xor_b32 v9, v9, v10')
    c('v_lshl_add_u32 v46, v9, 4, v8')
    c('v_xor_b32 v47, 64, v46')
    c('v_add_u32 v47, %d, v47' % (16 * 4096 - 1024))
    c('v_add_u32 v48, %d, v46' % (4 * 4096 - 2048))
    c('v_add_u32 v49, %d, v47' % (4 * 4096 - 2048))
    c('s_lshl_b32 s80, s19, 19')
    c('s_lshl_b32 s81, s3, 10')
    c('s_add_u32 s80, s80, s81')
    for p in range(4):
        c('s_add_u32 s81, s3, %d' % p)
        c('s_and_b32 s81, s81, 3')
        c('s_lshl_b32 s81, s81, 17')
        c('s_add_u32 s%d, s81, s80' % (84 + p))
    c('s_lshl_b32 s82, s3, 12')
    c('s_mul_i32 s83, s3, %d' % (16 * 144 * 1024))
    c('s_mul_i32 s81, s23, 9216')
    c('s_add_u32 s83, s83, s81')
    c('s_add_u32 s83, s83, 0x%x' % Z2_F)
    c('s_lshr_b32 s90, s23, 2')
    c('s_lshl_b32 s90, s90, %d' % (8 if opt.get('krot', 1) else 20))
    FQ += [(4, x) for x in c.l]
    tmode = opt.get('tmode', 2)
    nb1 = opt.get('nb1', 19) if tmode else 27
    for u in range(14, nb1):
        for pre, ld in dmaB(u): LQ.append((war_ok(u), pre, ld, CB))
    LQ.append((P1 - 40, [], ('buffer_load_ushort v50, v52, s[52:55], s79 offen', 'b'), 20))
    LQ.append((P1 - 40, [], ('buffer_load_ushort v51, v52, s[52:55], s79 offen offset:8', 'b'), 20))
    if tmode:
        kl = kv_loads(40, 16)
        for n_, x in enumerate(kl): LQ.append((0, [], x, opt.get('cK', 30) if n_ < 19 else opt.get('cT', 1500)))
        for u in range(nb1, 27):
            for pre, ld in dmaB(u): LQ.append((war_ok(u), pre, ld, CB))
    state = {'seg': 2, 'nrd': 0}
    def rdB(n):
        u = n // 12
        if n % 12 == 0 and u in bars:
            if bar_cover(u): sc.wait('B%d' % bar_cover(u)[-1])
            a('s_barrier')
        off = slotB(u) + (n % 12) * 1024
        seg = off // 65536
        if seg != state['seg']:
            a('v_add_u32 v2, %d, v1' % (seg * 65536))
            state['seg'] = seg
        a('ds_read_b128 %s, v2 offset:%d' % (vr(BR + (n % NB) * 4, 4), off % 65536))
        state['nrd'] = n + 1
    def useB(n):
        a('s_waitcnt lgkmcnt(%d)' % (state['nrd'] - 1 - n))
        return vr(BR + (n % NB) * 4, 4)
    for n in range(LOOK): rdB(n)
    for ks in range(18):
        if ks == 1: stamp(a, 15, 1)
        sc.wait('A%d' % ks)
        for jt in range(9):
            n = ks * 9 + jt
            b = useB(n)
            for j in range(2):
                cc = vr(C2 + jt * 8 + j * 4, 4)
                a('v_mfma_f32_16x16x32_bf16 %s, %s, %s, %s' % (cc, A(ks, j), b, cc if ks else '0'))
                sc.pos += 1
                sc.fill(2 if j == 0 else 1, 20)
            if n + LOOK < 168: rdB(n + LOOK)
    assert not FQ
    a('s_waitcnt lgkmcnt(0)')
    a('s_barrier')
    sc.pos += 1
    stamp(a, 15, 2)
    G = gelu_pure(C2, T, 72)
    SU = 96; SQ = 104
    for jt in range(9):
        for i in range(4):
            x = C2 + 8 * jt + 2 * i
            if jt == 0:
                G.append('v_pk_mul_f32 %s, %s, %s' % (pr(SQ + 2 * i), pr(x), pr(x)))
            else:
                G.append('v_pk_add_f32 %s, %s, %s' % (pr(SU + 2 * i), pr(SU + 2 * i) if jt > 1 else pr(x - 8), pr(x)))
                G.append('v_pk_fma_f32 %s, %s, %s, %s' % (pr(SQ + 2 * i), pr(x), pr(x), pr(SQ + 2 * i)))
    sc.pure(G)
    TT = T; U = 60
    assert not sc.pending('KV')
    a('s_nop 0')
    for e in range(8): a('v_add_f32 v%d, v%d, v%d row_ror:8 bank_mask:0x3' % (TT + e, SU + e, SU + e))
    for e in range(8): a('v_add_f32 v%d, v%d, v%d row_ror:8 bank_mask:0xc' % (TT + e, SQ + e, SQ + e))
    for i in range(4): a('v_add_f32 v%d, v%d, v%d row_half_mirror bank_mask:0x5' % (U + i, TT + 2 * i, TT + 2 * i))
    for i in range(4): a('v_add_f32 v%d, v%d, v%d row_half_mirror bank_mask:0xa' % (U + i, TT + 2 * i + 1, TT + 2 * i + 1))
    for i in range(4): a('v_add_f32 v%d, v%d, v%d quad_perm:[1,0,3,2]' % (U + i, U + i, U + i))
    for i in range(4): a('v_add_f32 v%d, v%d, v%d quad_perm:[2,3,0,1]' % (U + i, U + i, U + i))
    sc.force('b')
    a('s_mov_b64 exec, s[74:75]')
    sc.emit(('buffer_store_dwordx4 %s, v55, s[48:51], s73 offen sc1' % vr(U, 4), 'ST'))
    a('s_mov_b64 exec, -1')
    stamp(a, 15, 3)
    rdB(168)
    P1 = sc.pos
    PL = 96
    polls = [('buffer_load_dwordx4 %s, v54, s[48:51], s72 offen offset:%d sc1' % (vr(PL + 4 * i, 4), i * 1024), 'PL') for i in range(4)]
    if tmode:
        sc.BQ += [(P1 + opt.get('kvc', 4), x) for x in [('WAIT', 'KV')] + kv_compute(16, T + 36) + kv_store(3, 40, T + 36, 's2')]
    FQ.append((P1 + opt.get('pollpos', 40), ('BLOCK', polls)))
    side = opt.get('side', 0)
    tp = P1 + opt.get('tchpos', 75)
    if side & 2: LQ.append((tp, [], ('buffer_load_dword v57, v56, s[40:43], 0 offen', 'TCH'), opt.get('cT', 300)))
    def check():
        a('s_branch KF_chk')
        a.label('KF_poll')
        for x in polls: a(x[0])
        a('s_waitcnt vmcnt(0)')
        a.label('KF_chk')
        a('v_max3_u32 v8, v%d, v%d, v%d' % (PL, PL + 1, PL + 2))
        a('v_max3_u32 v9, v%d, v%d, v%d' % (PL + 3, PL + 4, PL + 5))
        for i in range(6, 14, 4):
            a('v_max3_u32 v8, v8, v%d, v%d' % (PL + i, PL + i + 1))
            a('v_max3_u32 v9, v9, v%d, v%d' % (PL + i + 2, PL + i + 3))
        a('v_max3_u32 v8, v8, v%d, v%d' % (PL + 14, PL + 15))
        a('v_max_u32 v8, v8, v9')
        a('v_cmp_eq_u32 vcc, -1, v8')
        a('s_sub_u32 s94, s94, 1')
        a('s_cmp_eq_u32 s94, 0')
        a('s_cbranch_scc1 KF_polldone')
        a('s_cbranch_vccnz KF_poll')
        a.label('KF_polldone')
        stamp(a, 15, 4)
    cp = P1 + opt.get('chkpos', 85)
    FQ.append((cp, ('WAIT', 'PL')))
    FQ.append((cp, ('BLOCK', [check])))
    c = Cap()
    for r in range(4): c('v_add_f32 v%d, v%d, v%d' % (PL + r, PL + r, PL + 4 + r))
    for r in range(4): c('v_add_f32 v%d, v%d, v%d' % (PL + 8 + r, PL + 8 + r, PL + 12 + r))
    for r in range(4): c('v_add_f32 v%d, v%d, v%d' % (PL + r, PL + r, PL + 8 + r))
    for sh in (4, 8):
        for r in range(4): c('v_add_f32 v%d, v%d, v%d row_ror:%d' % (PL + r, PL + r, PL + r, sh))
    M = 56; Vv = 60
    for r in range(4): c('v_mul_f32 v%d, v%d, v11 quad_perm:[0,1,0,1]' % (M + r, PL + r))
    for r in range(4): c('v_mul_f32 v%d, v%d, v11 quad_perm:[2,3,2,3]' % (Vv + r, PL + r))
    for r in range(4): c('v_fma_f32 v%d, -v%d, v%d, v%d' % (Vv + r, M + r, M + r, Vv + r))
    for r in range(4): c('v_max_f32 v%d, 0, v%d' % (Vv + r, Vv + r))
    def round2(r):
        c('v_cvt_pk_bf16_f32 v%d, v%d, v%d' % (r + 1, r, r + 1))
        c('v_lshlrev_b32 v%d, 16, v%d' % (r, r + 1))
        c('v_and_b32 v%d, 0xffff0000, v%d' % (r + 1, r + 1))
    round2(Vv); round2(Vv + 2)
    for r in range(4): c('v_add_f32 v%d, 0x%x, v%d' % (Vv + r, f2u(1e-5), Vv + r))
    round2(Vv); round2(Vv + 2)
    for r in range(4): c('v_sqrt_f32 v%d, v%d' % (Vv + r, Vv + r))
    round2(M); round2(M + 2)
    round2(Vv); round2(Vv + 2)
    for r in range(4): c('v_rcp_f32 v%d, v%d' % (Vv + r, Vv + r))
    c('s_nop 0')
    for r in range(4): c('v_mul_f32 v%d, -v%d, v%d' % (M + r, M + r, Vv + r))
    SC = PL; BI = PL + 8
    for e in range(8):
        p = e & 1
        c('v_mov_b32 v%d, v%d quad_perm:[%d,%d,%d,%d]' % (SC + e, Vv + (e >> 1), p, p, p, p))
    for e in range(8):
        p = e & 1
        c('v_mov_b32 v%d, v%d quad_perm:[%d,%d,%d,%d]' % (BI + e, M + (e >> 1), p, p, p, p))
    for jt in range(9):
        b = C2 + jt * 8
        for i in range(4): c('v_pk_fma_f32 %s, %s, %s, %s' % (pr(b + 2 * i), pr(b + 2 * i), pr(SC + 2 * i), pr(BI + 2 * i)))
        for i in range(4): c('v_cvt_pk_bf16_f32 v%d, v%d, v%d' % (b + i, b + 2 * i, b + 2 * i + 1))
        if jt in (4, 8): c('s_add_u32 s71, s71, 4096')
        c(('buffer_store_dwordx4 %s, v1, s[48:51], s71 offen offset:%d sc1' % (vr(b, 4), (jt % 4) * 1024), 'S2'))
    npure = opt.get('npure', 1)
    GEL = 72; ZB = 144
    BQ = 252 - 4
    CW = opt.get('cW', 85)
    def dmaW(n, early, cst):
        kp, p = divmod(n, 4)
        for i in range(4):
            pre = ['s_add_u32 s88, s90, %d' % (kp * 128), 's_and_b32 s88, s88, 1023', 's_add_u32 m0, s82, %d' % ((n % 10) * 16384), 's_add_u32 s88, s88, s%d' % (84 + p)] if i == 0 else []
            LQ.append((early, pre, ('buffer_load_dwordx4 v%d, s[40:43], s88 offen offset:%d lds' % (WV + i, 1024 * i), 'W%d' % n), cst))
    WV = 46; ZV = [1, 58, 59]
    def Zbuf(k, ft): return ZB + 36 * (k % 3) + 4 * ft
    def ldZ(k, ft, early, cst):
        pre = ['s_add_u32 s89, s90, %d' % (k * 64), 's_and_b32 s89, s89, 1023', 's_mul_i32 s89, s89, 2304', 's_add_u32 s89, s89, s83'] if ft == 0 else []
        return (early, pre, ('buffer_load_dwordx4 %s, v%d, s[48:51], s89 offen offset:%d sc1' % (ar(Zbuf(k, ft), 4), ZV[ft // 4], (ft % 4) * 1024), 'Z%d' % k), cst)
    def wfree(n):
        u = 14 + (16 * (n + 1) + 11) // 12 - 1
        ok = [b for b in bars if b >= u + 2]
        return barpos(ok[0]) + 3 if ok else 100000
    CW0 = opt.get('cW0', 150)
    def after_z2():
        for n in range(10):
            if wfree(n) < 100000: dmaW(n, wfree(n), CW0); wdone.append(n)
    wdone = []; marks0 = {}
    blocks = [[]]
    for x in c.l:
        blocks[-1].append(x)
        if isinstance(x, tuple): blocks.append([])
    blocks[opt.get('wstart', 0)].append(after_z2)
    for n_, bl in enumerate(blocks):
        FQ.append((cp + opt.get('stsp', 14) * min(n_, 8), ('BLOCK', bl)))
    marks = {}
    def publish():
        vm.wait(a, 'S2')
        a('v_mov_b32 v8, 1')
        a('s_mov_b64 exec, 1')
        sc.emit(('buffer_store_dword v8, v1, s[48:51], s77 offen sc1', 'FL'))
        a('s_mov_b64 exec, -1')
        stamp(a, 15, 5)
    fpoll = ('buffer_load_dword v14, v9, s[48:51], s76 offen sc1', 'FP')
    def fcheck():
        vm.wait(a, 'FP')
        a('s_branch KF_fchk')
        a.label('KF_fpoll')
        a(fpoll[0])
        a('s_waitcnt vmcnt(0)')
        a.label('KF_fchk')
        a('v_cmp_ne_u32 vcc, 1, v14')
        a('s_sub_u32 s94, s94, 1')
        a('s_cmp_eq_u32 s94, 0')
        a('s_cbranch_scc1 KF_fdone')
        a('s_cbranch_vccnz KF_fpoll')
        a.label('KF_fdone')
        LQ[0:0] = [ldZ(k, ft, 0, CW) for k in range(2) for ft in range(9)]
        LQ.extend([ldZ(2, ft, 0, CW) for ft in range(9)])
        stamp(a, 15, 6)
    FQ.append((cp + opt.get('pubd', 400), ('BLOCK', [publish])))
    FQ.append((0, ('BLOCK', ['v_and_b32 v9, 60, v55', 'v_add_u32 v58, 4096, v1', 'v_add_u32 v59, 8192, v1'])))
    for jt in range(9):
        cb_ = T + jt * 8
        for ks in range(18):
            n = 162 + jt * 18 + ks
            b = useB(n)
            for j in range(2):
                cc = vr(cb_ + j * 4, 4)
                a('v_mfma_f32_16x16x32_bf16 %s, %s, %s, %s' % (cc, b, A(ks, j), cc if ks else '0'))
                sc.pos += 1
                if j == 0: sc.fill(2, 34)
                elif ks % opt.get('kvj1', 2) == 0: sc.back(1)
            if n + LOOK < 324: rdB(n + LOOK)
    print('KF phase2 leftover fillers', len(FQ), 'loads', len(LQ), 'kv done at', sc.bqend - P1, file=sys.stderr)
    assert not sc.BQ and sc.bqend - P1 < 176
    while FQ: sc.fill(2, 8, flush=True)
    a('s_barrier')
    for n in range(10):
        if n not in wdone: dmaW(n, 0, CW0 if n < 8 else CW)
    if side & 1:
        kp_ = opt.get('kvq', 0)
        LQ[kp_:kp_] = [(0, [], x, opt.get('cK', 40)) for x in kv_loads(40, 16)]
    G = gelu_pure(T, C2, 72)
    G[opt.get('fcp', 230):opt.get('fcp', 230)] = [fcheck]
    G[opt.get('fpp', 140):opt.get('fpp', 140)] = [fpoll]
    for ft in range(9):
        for r in range(8): G.append('v_accvgpr_write_b32 a%d, v%d' % (GEL + 8 * ft + r, T + 8 * ft + r))
    G += ['v_lshlrev_b32 v50, 16, v50', 'v_lshlrev_b32 v51, 16, v51']
    for r in range(4): G.append('v_accvgpr_write_b32 a%d, v50' % (252 + r))
    for r in range(4): G.append('v_accvgpr_write_b32 a%d, v51' % (68 + r))
    sc.pure(G)
    if side & 1:
        sc.wait('KV')
        kst = kv_store(3, 40, 64, 's2')
        sc.pure(kv_compute(16, 64, pk=True) + kst)
    for i in range(4): a('v_mov_b32 v%d, v%d' % (4 + i, 46 + i))
    a('v_add_u32 v2, 4096, v1')
    a('v_add_u32 v3, 8192, v1')
    rest = list(LQ); del LQ[:]
    def retarget(x):
        t = x[2][0]
        for i in range(4): t = t.replace('dwordx4 v%d, s[40:43]' % (46 + i), 'dwordx4 v%d, s[40:43]' % (4 + i))
        t = t.replace(', v58, s[48', ', v2, s[48').replace(', v59, s[48', ', v3, s[48')
        return (0, x[1], (t, x[2][1]), x[3])
    rest = [retarget(x) for x in rest]
    print('KF loads left at stage 2 start', len(rest), file=sys.stderr)
    WV = 4; ZV = [1, 2, 3]
    a('v_and_b32 v8, 15, v0')
    a('v_lshrrev_b32 v11, 1, v8')
    a('v_xor_b32 v11, v11, v10')
    a('v_lshlrev_b32 v8, 7, v8')
    a('v_lshl_add_u32 v8, v11, 4, v8')
    a('v_add_u32 v12, s82, v8')
    if DBG['on']:
        stamp(a, 15, 7)
        a('s_lshl_b32 s96, s2, 3')
        a('s_add_u32 s96, s96, s3')
        a('s_lshl_b32 s96, s96, 6')
        a('s_add_u32 s96, s96, 0x%x' % (STAMP + 1 * 256 * 8 * 64))
        a('v_lshlrev_b32 v8, 2, v0')
        a('s_mov_b64 exec, 0xffff')
        sc.emit(('buffer_store_dword v15, v8, s[48:51], s96 offen', 'DB'))
        a('s_mov_b64 exec, -1')
        stamp(a, 15, 0)
    NO = 40; WR = 16; NW = 4
    ownV = {}
    def acc(tt, ft, late=False):
        if tt < 2:
            return vr(ownV[(tt, ft)], 4) if late else ar((tt * 9 + ft) * 4, 4)
        return vr(NO + ((tt - 2) * 9 + ft) * 4, 4)
    groups = []
    for k in range(14): groups += [(k, tt) for tt in range(8)]
    groups += [(14, 0), (14, 1)]
    for tt in range(2, 8): groups += [(14, tt), (15, tt)]
    groups += [(15, 0), (15, 1)]
    sc.pos = 0
    gend = {g: 9 * (i + 1) for i, g in enumerate(groups)}
    stepend = {k: max(gend[(k, tt)] for tt in range(8)) for k in range(16)}
    CZ = opt.get('cZ', 60)
    ev = []
    for k in range(3, 16):
        e0 = stepend[k - 3]
        for ft in range(9): ev.append((72 * (k - 2) + 8 * ft, ldZ(k, ft, e0, CZ)))
    wsp_ = opt.get('wsp', 42)
    for n in range(10, 32):
        kp, p = divmod(n - 10, 4)
        e0 = gend[(2 * kp + 1, 2 * p + 1)] - 9 + 1
        m = len(LQ); dmaW(n, e0, CZ); l = LQ[m:]; del LQ[m:]
        for i, x in enumerate(l): ev.append((wsp_ * (n - 10) + 82 + (wsp_ // 4) * i, x))
    ev.sort(key=lambda x: x[0])
    LQ += rest + [(max(x[1][0], x[0] - opt.get('wslack', 1000)),) + x[1][1:] for x in ev]
    sc.free = sc.t
    wst = {'n': 0, 'key': None}
    def rdW():
        n = wst['n']
        if n >= len(groups): return
        k, tt = groups[n]
        sn = 4 * (k >> 1) + (tt >> 1)
        sc.wait('W%d' % sn)
        off = (sn % 10) * 16384 + (tt & 1) * 2048
        key = (off // 65536, k & 1)
        if key != wst['key']:
            if k & 1:
                a('v_xor_b32 v13, 64, v12')
                if key[0]: a('v_add_u32 v13, %d, v13' % (65536 * key[0]))
            else:
                a('v_add_u32 v13, %d, v12' % (65536 * key[0]))
            wst['key'] = key
        a('ds_read_b128 %s, v13 offset:%d' % (vr(WR + 4 * (n % NW), 4), off % 65536))
        lg.append('R%d' % n)
        wst['n'] = n + 1
    lg = []
    WL = 3
    for _ in range(WL): rdW()
    c = Cap()
    c('s_lshr_b32 s56, s22, 1')
    c('s_mul_i32 s56, s56, 72')
    c('s_lshr_b32 s57, s23, 1')
    c('s_mul_i32 s57, s57, 9')
    c('s_add_u32 s56, s56, s57')
    c('s_lshl_b32 s56, s56, 12')
    c('s_and_b32 s57, s22, 1')
    c('s_lshl_b32 s57, s57, 11')
    c('s_add_u32 s56, s56, s57')
    c('s_add_u32 s56, s56, 0x%x' % H_F)
    c('s_and_b32 s57, s23, 1')
    c('s_lshl_b32 s58, s57, 10')
    c('s_add_u32 s58, s58, s56')
    c('s_add_u32 s58, s58, %d' % (8 * 4096))
    c('s_lshl_b32 s57, s57, 14')
    c('s_add_u32 s56, s56, s57')
    FQ += [(20, x) for x in c.l]
    last = [(28 + p) % 10 for p in range(4)]
    freeS = [s_ for s_ in range(10) if s_ not in last]
    c = Cap()
    c('s_lshl_b32 s60, s3, 8')
    c('s_add_u32 s60, s60, s2')
    c('s_mul_hi_u32 s61, s60, 0x1C71C71D')
    c('s_mul_i32 s62, s61, 9')
    c('s_sub_u32 s62, s60, s62')
    c('s_mul_hi_u32 s63, s61, 0x1C71C71D')
    c('s_mul_i32 s64, s63, 9')
    c('s_sub_u32 s64, s61, s64')
    c('s_mul_i32 s65, s63, 288')
    c('s_lshr_b32 s66, s64, 2')
    c('s_mul_i32 s66, s66, 144')
    c('s_and_b32 s67, s64, 3')
    c('s_lshl_b32 s67, s67, 5')
    c('s_add_u32 s66, s66, s67')
    c('s_cmp_eq_u32 s64, 8')
    c('s_cselect_b32 s66, 128, s66')
    c('s_cselect_b32 s67, 128, 0')
    c('s_add_u32 s65, s65, s66')
    c('s_add_u32 s66, s65, s67')
    c('s_lshl_b32 s67, s62, 7')
    c('s_add_u32 s68, s82, %d' % (freeS[0] * 16384))
    c('s_cmp_ge_u32 s60, 648')
    c('s_cselect_b32 s46, 0, s46')
    c('s_cselect_b32 s69, 0x40000000, 0')
    FQ.append((100, ('BLOCK', c.l)))
    c = Cap()
    wout_store_addr2(c)
    FQ += [(110, x) for x in c.l]
    for j in range(4):
        LQ.append((stepend[13], ['s_add_u32 s70, s%d, %d' % (65 if j < 2 else 66, 8 * j), 's_mul_i32 s70, s70, 1152', 's_add_u32 m0, s68, %d' % (1024 * j), 's_add_u32 s70, s70, s67'],
                   ('buffer_load_dwordx4 v36, s[44:47], s70 offen lds', 'WO'), 60))
    LQ.append((stepend[13], [], ('buffer_load_dword v39, v38, s[36:39], 0 offen', 'TCH'), 60))
    outS = freeS[1:] + [last[1], last[2]]
    def outoff(x): return outS[x // 4] * 16384 + (x % 4) * 1024
    e13 = stepend[13]
    FQ.append((e13, 'v_add_u32 v8, s82, v1'))
    FQ.append((e13, 'v_add_u32 v9, 65536, v8'))
    FQ.append((e13, 'v_add_u32 v11, 131072, v8'))
    segreg = [8, 9, 11]
    freeY = []; Xregs = []
    own_list = [(j, ft) for j in range(2) for ft in range(9)]
    def base(tt, ft): return NO + ((tt - 2) * 9 + ft) * 4
    def dsw(X, off):
        def f():
            a('ds_write_b128 v%d, %s offset:%d' % (segreg[off // 65536], vr(X, 4), off % 65536)); lg.append('w')
        return f
    wr_order = {}
    def packwr(X, Y, p, slot, e):
        for r in range(2): FQ.append((e, 'v_cvt_pk_bf16_f32 v%d, v%d, v%d' % (X + r, X + 2 * r, X + 2 * r + 1)))
        for r in range(2): FQ.append((e, 'v_cvt_pk_bf16_f32 v%d, v%d, v%d' % (X + 2 + r, Y + 2 * r, Y + 2 * r + 1)))
        x = len(Xregs); wr_order[(p, slot)] = x
        FQ.append((e, ('BLOCK', [dsw(X, outoff(x))])))
        Xregs.append(X)
        if own_list:
            o = own_list.pop(0); ownV[o] = Y
            for r in range(4): FQ.append((e, 'v_accvgpr_read_b32 v%d, a%d' % (Y + r, (o[0] * 9 + o[1]) * 4 + r)))
        else:
            freeY.append(Y)
    for tt in range(2, 8):
        p = tt // 2; j = tt & 1
        g0 = gend[(15, tt)] - 9
        for i in range(4): packwr(base(tt, 2 * i), base(tt, 2 * i + 1), p, 2 * i + j, g0 + 2 * i + 2 + 7)
        if j == 1: packwr(base(tt - 1, 8), base(tt, 8), p, 8, g0 + 9 + 7)
    for n, (k, tt) in enumerate(groups):
        if sc.pos == 72: stamp(a, 15, 1)
        if sc.pos == 72 * 14: stamp(a, 15, 2)
        late = (k == 15 and tt < 2)
        if late:
            while any(isinstance(x[1], str) and 'accvgpr_read' in x[1] for x in FQ): sc.fill(2, 8, flush=True)
        sc.wait('Z%d' % k)
        idx_ = lg.index('R%d' % n)
        a('s_waitcnt lgkmcnt(%d)' % min(15, len(lg) - 1 - idx_))
        del lg[:idx_ + 1]
        for ft in range(9):
            cc = acc(tt, ft, late)
            cin = cc if k else ('0' if tt >= 2 else ar(252 if tt == 0 else 68, 4))
            a('v_mfma_f32_16x16x32_bf16 %s, %s, %s, %s' % (cc, ar(Zbuf(k, ft), 4), vr(WR + 4 * (n % NW), 4), cin))
            sc.pos += 1
            if ft == 1: rdW()
            else: sc.fill(2, 16)
    assert not LQ
    if FQ: a('s_nop 3')
    while FQ: sc.fill(2, 8, flush=True)
    stamp(a, 15, 3)
    for x in ['v_bfe_u32 v24, v0, 2, 2', 'v_cmp_eq_u32 vcc, v24, v10', 'v_and_b32 v24, 1, v0',
        'v_lshlrev_b32 v24, 4, v24', 'v_mov_b32 v25, 0x3f80', 'v_lshlrev_b32 v24, v24, v25', 'v_cndmask_b32 v24, 0, v24, vcc',
        'v_and_b32 v25, 2, v0', 'v_cmp_eq_u32 vcc, 0, v25', 'v_mov_b32 v16, 0', 'v_mov_b32 v17, 0', 'v_mov_b32 v20, 0', 'v_mov_b32 v21, 0',
        'v_cndmask_b32 v18, 0, v24, vcc', 'v_cndmask_b32 v19, v24, v21, vcc']: a(x)
    RB = {}
    pool = [2, 3, 4, 5, 6, 7, 12, 13, 14]
    for p in range(1, 4):
        a('s_sub_u32 s59, s3, %d' % p)
        a('s_and_b32 s59, s59, 3')
        a('s_lshl_b32 s59, s59, 12')
        segs = sorted({outoff(wr_order[(p, sl)]) // 65536 for sl in range(9)})
        for sg in segs:
            r = pool.pop(0); RB[(p, sg)] = r
            if sg: a('s_add_u32 s57, s59, %d' % (sg * 65536))
            a('v_add_u32 v%d, s%d, v1' % (r, 57 if sg else 59))
    a('s_waitcnt lgkmcnt(0)')
    a('s_barrier')
    stamp(a, 15, 4)
    rd = []; R = {}; n = 0
    for sl in range(9):
        for p in range(3):
            R[(sl, p)] = Xregs[n]
            off = outoff(wr_order[(p + 1, sl)])
            rd.append('ds_read_b128 %s, v%d offset:%d' % (vr(Xregs[n], 4), RB[(p + 1, off // 65536)], off % 65536)); n += 1
    def tiles(sl):
        if sl < 8: return (sl & 1, 2 * (sl >> 1)), (sl & 1, 2 * (sl >> 1) + 1)
        return (0, 8), (1, 8)
    for x in rd[:12]: a(x)
    nissued = 12
    Gq = freeY[:6]
    def unpack(sl):
        l = []
        for n_, (j, ft) in enumerate(tiles(sl)):
            g = Gq[(2 * sl + n_) % 6]
            for r in range(4): l.append('v_accvgpr_read_b32 v%d, a%d' % (g + r, GEL + 8 * ft + 4 * j + r))
        return l
    def finish(sl):
        l = []
        o = [24, 28, freeY[6], freeY[7]][sl % 4]
        for n_, t in enumerate(tiles(sl)):
            g = Gq[(2 * sl + n_) % 6]; cc = ownV[t]
            for r in range(4): l.append('v_mul_f32 v%d, v%d, v%d' % (cc + r, cc + r, g + r))
        for n_, t in enumerate(tiles(sl)):
            cc = ownV[t]
            for r in range(2): l.append('v_cvt_pk_bf16_f32 v%d, v%d, v%d' % (o + 2 * n_ + r, cc + 2 * r, cc + 2 * r + 1))
        if sl < 8:
            l.append('buffer_store_dwordx4 %s, v1, s[48:51], s56 offen offset:%d sc1' % (vr(o, 4), (sl & 1) * 1024))
            if sl & 1: l.append('s_add_u32 s56, s56, 4096')
        else:
            l.append('buffer_store_dwordx4 %s, v1, s[48:51], s58 offen sc1' % vr(o, 4))
        return l
    for x in unpack(0) + unpack(1): a(x)
    for sl in range(9):
        fl = (unpack(sl + 1) if 1 <= sl < 8 else [])
        fin = finish(sl - 1) if sl >= 1 else []
        if sl == 8: fin = ['s_nop 3'] + fin
        tX, tY = tiles(sl)
        cnt = 0
        for p in range(3):
            a('s_waitcnt lgkmcnt(%d)' % (nissued - (3 * sl + p) - 1))
            for (t, Sreg) in ((tX, 18), (tY, 16)):
                cc = vr(ownV[t], 4)
                a('v_mfma_f32_16x16x32_bf16 %s, %s, %s, %s' % (cc, vr(Sreg, 4), vr(R[(sl, p)], 4), cc))
                cnt += 1
                for _ in range(4):
                    if fl: a(fl.pop(0))
                    elif cnt >= 3 and fin: a(fin.pop(0))
            if nissued < 27:
                a(rd[nissued]); nissued += 1
        for x in fl + fin: a(x)
    a('s_waitcnt vmcnt(9)')
    for nt in range(4):
        a('ds_read_b64_tr_b16 v[%d:%d], v37 offset:%d' % (Xregs[nt], Xregs[nt] + 1, 32 * nt))
        a('ds_read_b64_tr_b16 v[%d:%d], v37 offset:%d' % (Xregs[nt] + 2, Xregs[nt] + 3, 2048 + 32 * nt))
    for x in finish(8): a(x)
    for nt in range(4):
        a('s_waitcnt lgkmcnt(%d)' % (6 - 2 * nt))
        a('buffer_store_dwordx4 %s, v%d, s[48:51], s71 offen sc1' % (vr(Xregs[nt], 4), 32 + nt))
    stamp(a, 15, 5)
    stamp_flush(a, 15, 2, 14, 6)
    a.label('KF_end')
    a('s_endpgm')
    return kernel_desc(name, 512, 256), '; @launch kernel=k1_kernel grid=(256,1,1) block=(256,1,1) lds=163840'

HSLOT = 16640
UB = 4 * HSLOT
XP = 83968
YP = XP + 4 * 3072
K3_LDS = YP + 80 * 128
def gen_k3(a, opt={}):
    name = 'k3_kernel'
    kernel_begin(a, name)
    a('s_cmp_ge_u32 s2, 256')
    a('s_cbranch_scc1 K3_end')
    a('s_load_dwordx2 s[48:49], s[0:1], 104')
    a('s_load_dwordx2 s[52:53], s[0:1], 0')
    a('s_load_dwordx2 s[56:57], s[0:1], 88')
    a('s_load_dwordx4 s[4:7], s[0:1], 32')
    stamp(a, 15, 0)
    wave_lane(a, 3)
    a('v_lshlrev_b32 v1, 4, v0')
    a('s_and_b32 s20, s2, 7')
    a('s_lshr_b32 s21, s2, 3')
    a('s_lshr_b32 s22, s20, 1')
    a('s_lshl_b32 s22, s22, 3')
    a('s_and_b32 s23, s21, 7')
    a('s_add_u32 s22, s22, s23')
    a('s_and_b32 s23, s20, 1')
    a('s_lshl_b32 s23, s23, 2')
    a('s_lshr_b32 s24, s21, 3')
    a('s_add_u32 s23, s23, s24')
    a('s_mul_i32 s25, s22, 72')
    a('s_mul_i32 s26, s3, 18')
    a('s_add_u32 s25, s25, s26')
    a('s_lshl_b32 s25, s25, 12')
    a('s_add_u32 s25, s25, 0x%x' % H_F)
    a('s_lshl_b32 s26, s23, 2')
    a('s_add_u32 s26, s26, s3')
    a('s_mul_i32 s26, s26, %d' % (81 * 1024))
    a('s_add_u32 s26, s26, 0x%x' % WOUT_F)
    a('v_add_u32 v2, 4096, v1')
    a('v_add_u32 v3, 8192, v1')
    for p in range(4):
        a('s_xor_b32 s27, s3, %d' % p)
        a('s_lshl_b32 s27, s27, 10')
        a('v_add_u32 v%d, s27, v1' % (4 + p))
    for r, v in ((50, WS_END), (51, 0x20000), (54, S * D * 2), (55, 0x20000), (58, S * D * 2), (59, 0x20000)):
        a('s_mov_b32 s%d, 0x%x' % (r, v))
    a('s_mul_i32 s40, s3, %d' % HSLOT)
    a('v_and_b32 v8, 15, v0')
    a('v_lshrrev_b32 v9, 4, v0')
    a('s_cmp_ge_u32 s2, 144')
    a('s_waitcnt lgkmcnt(0)')
    if WS_BASE:
        a('s_add_u32 s48, s48, 0x%x' % WS_BASE)
        a('s_addc_u32 s49, s49, 0')
        a('s_cmp_ge_u32 s2, 144')
    a('s_cbranch_scc1 K3_noconv')
    SETS = [('a', 96), ('a', 164), ('v', 52), ('v', 120), ('v', 188)]
    def reg(pr_, i):
        t, b = SETS[pr_ % 5]
        return (ar if t == 'a' else vr)(b + 4 * i, 4)
    def loads(pr_):
        l = []
        order = [('w', 0), ('w', 1), ('w', 2), ('w', 3), ('w', 8), ('h', 0), ('h', 1), ('h', 2), ('h', 3),
                 ('w', 4), ('w', 5), ('w', 6), ('w', 7), ('h', 4), ('h', 5), ('h', 6), ('h', 7)]
        for n, (k, i) in enumerate(order):
            tag = 'P%d_%d' % (pr_, 0 if n < 9 else 1)
            pre = []
            if n == 0: pre = ['s_add_u32 s28, s26, %d' % (pr_ * 9216)]
            if k == 'h' and i % 4 == 0: pre = ['s_add_u32 s29, s25, %d' % (pr_ * 8192 + (i // 4) * 4096)]
            if k == 'w': l.append((pre, ('buffer_load_dwordx4 %s, v%d, s[48:51], s28 offen offset:%d' % (reg(pr_, i), 1 + i // 4, (i % 4) * 1024), tag)))
            else:        l.append((pre, ('buffer_load_dwordx4 %s, v%d, s[48:51], s29 offen' % (reg(pr_, 9 + i), 4 + i % 4), tag)))
        return l
    def acc(dt, tt): return ar((dt * 4 + tt) * 4, 4)
    def setup_epi(c):
        c('s_lshl_b32 s30, s22, 6')
        c('s_lshr_b32 s31, s3, 1')
        c('s_lshl_b32 s32, s31, 5')
        c('s_add_u32 s30, s30, s32')
        c('s_and_b32 s33, s3, 1')
        c('s_lshl_b32 s32, s33, 2')
        c('s_add_u32 s30, s30, s32')
        c('s_mul_i32 s34, s30, 1152')
        c('s_mul_i32 s32, s23, 144')
        c('s_add_u32 s34, s34, s32')
        c('s_lshl_b32 s35, s30, 3')
        c('s_add_u32 s35, s35, 0x%x' % XSTAT)
        c('s_mul_i32 s36, s3, 3072')
        c('s_add_u32 s36, s36, %d' % XP)
        for i in range(3):
            c('v_add_u32 v10, %d, v0' % (64 * i))
            c('v_mul_u32_u24 v11, 7282, v10')
            c('v_lshrrev_b32 v11, 16, v11')
            c('v_mul_u32_u24 v12, 9, v11')
            c('v_sub_u32 v10, v10, v12')
            c('v_lshrrev_b32 v12, 2, v11')
            c('v_lshlrev_b32 v12, 2, v12')
            c('v_add_u32 v11, v11, v12')
            c('v_mul_u32_u24 v11, 1152, v11')
            c('v_lshl_add_u32 v%d, v10, 4, v11' % (16 + i))
        c('v_lshrrev_b32 v10, 4, v0')
        c('v_lshlrev_b32 v10, 28, v10')
        c('v_or_b32 v18, v18, v10')
        c('v_lshrrev_b32 v10, 2, v8')
        c('v_lshlrev_b32 v10, 2, v10')
        c('v_add_lshl_u32 v19, v10, v8, 3')
        c('v_mul_u32_u24 v20, 144, v8')
        c('v_add_u32 v20, s36, v20')
        c('v_lshl_add_u32 v21, v9, 3, v20')
        c('v_lshl_add_u32 v20, v9, 4, v20')
        c('v_min_u32 v22, 35, v0')
        c('v_lshlrev_b32 v22, 3, v22')
        c('s_mul_i32 s37, s23, 288')
        c('s_add_u32 s37, s37, 0x%x' % YFLAG)
        c('v_lshrrev_b32 v23, 3, v0')
        c('v_lshlrev_b32 v23, 12, v23')
        c('v_and_b32 v10, 7, v0')
        c('v_lshl_add_u32 v23, v10, 4, v23')
        c('s_mul_i32 s38, s23, %d' % (72 * 4096))
        c('s_lshl_b32 s32, s22, 7')
        c('s_add_u32 s38, s38, s32')
        c('s_add_u32 s38, s38, 0x%x' % YT)
        c('s_add_u32 s41, s38, %d' % (8 * 32768))
        c('s_lshl_b32 s32, s3, 15')
        c('s_add_u32 s38, s38, s32')
        c('s_add_u32 s39, s38, %d' % (4 * 32768))
        c('s_lshl_b32 s32, s3, 10')
        c('s_add_u32 s32, s32, %d' % YP)
        c('v_add_u32 v24, s32, v1')
        c('v_bfe_u32 v10, v0, 2, 2')
        c('v_lshl_add_u32 v11, v9, 3, v10')
        c('v_lshl_add_u32 v12, v9, 2, v10')
        c('v_and_b32 v10, 1, v0')
        c('v_lshlrev_b32 v10, 6, v10')
        c('v_bfe_u32 v13, v0, 1, 1')
        c('v_lshl_add_u32 v10, v13, 3, v10')
        c('s_lshl_b32 s32, s33, 5')
        c('s_lshl_b32 s31, s31, 4')
        c('s_add_u32 s32, s32, s31')
        c('s_add_u32 s32, s32, %d' % YP)
        c('v_add_u32 v10, s32, v10')
        c('v_lshl_add_u32 v25, v11, 7, v10')
        c('v_lshl_add_u32 v26, v12, 7, v10')
        c('s_mov_b32 s94, 200000')
    def gemm(sc, lab, extra):
        LQ = sc.LQ; FQ = sc.FQ
        p0 = sc.pos
        for pr_ in range(5, 9):
            for n, (pre, ld) in enumerate(loads(pr_)):
                LQ.append((p0 + 40 * (pr_ - 5) + (20 if (n < 9 and n != 4) else 40), pre, ld, 0))
        FQ += extra
        xl = []
        for i in range(3):
            xl += ['s_add_u32 m0, s36, %d' % (1024 * i), 's_nop 0', ('buffer_load_dwordx4 v%d, s[52:55], s34 offen lds' % (16 + i), 'X')]
        xl.append(('buffer_load_dwordx2 v[28:29], v19, s[48:51], s35 offen', 'X'))
        fpoll = ('buffer_load_dwordx2 v[30:31], v22, s[48:51], s37 offen sc1', 'FP')
        def fcheck():
            sc.vm.wait(a, 'FP')
            a('s_branch K3_fchk%s' % lab)
            a.label('K3_fpoll%s' % lab)
            a(fpoll[0])
            a('s_waitcnt vmcnt(0)')
            a.label('K3_fchk%s' % lab)
            a('v_and_b32 v30, v30, v31')
            a('v_cmp_ne_u32 vcc, 1, v30')
            a('s_sub_u32 s94, s94, 1')
            a('s_cmp_eq_u32 s94, 0')
            a('s_cbranch_scc1 K3_fdone%s' % lab)
            a('s_cbranch_vccnz K3_fpoll%s' % lab)
            a.label('K3_fdone%s' % lab)
            for i, so in enumerate((38, 39, 41)):
                sc.emit(('buffer_load_dwordx4 %s, v23, s[48:51], s%d offen sc1' % (vr(32 + 4 * i, 4), so), 'Y'))
        for pr_ in range(9):
            if pr_ == 1: stamp(a, 15, 3)
            if pr_ == 6:
                assert not LQ and not FQ
                for x in xl: sc.emit(x)
            if pr_ == 7: sc.emit(fpoll)
            if pr_ == 8: fcheck()
            for par in range(2):
                sc.wait('P%d_%d' % (pr_, par))
                if 2 * pr_ + par in (8, 17):
                    hb = SETS[pr_ % 5][1] + 36 + 16 * par
                    assert SETS[pr_ % 5][0] == 'v'
                    l1 = 'K3_sw%s%d' % (lab, pr_)
                    a('s_bitcmp1_b32 s3, 0')
                    a('s_cbranch_scc1 %sa' % l1)
                    for gg in range(2):
                        a('v_swap_b32 v%d, v%d' % (hb + 8 * gg + 2, hb + 8 * gg + 4))
                        a('v_swap_b32 v%d, v%d' % (hb + 8 * gg + 3, hb + 8 * gg + 5))
                    a('s_branch %sb' % l1)
                    a.label(l1 + 'a')
                    for gg in range(2):
                        a('v_swap_b32 v%d, v%d' % (hb + 8 * gg + 0, hb + 8 * gg + 6))
                        a('v_swap_b32 v%d, v%d' % (hb + 8 * gg + 1, hb + 8 * gg + 7))
                    a.label(l1 + 'b')
                    a('s_nop 1')
                for tt in (1, 2, 3, 0):
                    for dt in range(5):
                        wf = reg(pr_, 4 * par + dt) if dt < 4 else reg(pr_, 8)
                        cc = acc(dt if dt < 4 else 4 + par, tt)
                        init = (pr_ == 0 and (par == 0 or dt == 4))
                        a('v_mfma_f32_16x16x32_bf16 %s, %s, %s, %s' % (cc, wf, reg(pr_, 9 + 4 * par + tt), '0' if init else cc))
                        sc.pos += 1
                        sc.fill(2, 16)
    sc = Sched(a); LQ = sc.LQ; FQ = sc.FQ
    srd(a, 60, 4, D * S * 2)
    a('s_cmp_ge_u32 s2, 72')
    a('s_cselect_b32 s42, 1, 0')
    a('s_cselect_b32 s43, 72, 0')
    a('s_sub_u32 s43, s2, s43')
    a('s_lshl_b32 s43, s43, 3')
    a('s_add_u32 s42, s42, s43')
    a('s_lshl_b32 s43, s3, 1')
    a('s_add_u32 s42, s42, s43')
    a('s_lshl_b32 s43, s42, 12')
    HT = 188
    for j in range(4):
        sc.emit(('buffer_load_dwordx4 %s, v1, s[60:63], s43 offen offset:%d' % (vr(HT + 8 * j, 4), 1024 * j), 'H%d' % j))
        sc.emit(('buffer_load_dwordx4 %s, v1, s[60:63], s43 offen offset:%d' % (vr(HT + 8 * j + 4, 4), 1024 * j + 8), 'H%d' % j))
    a('v_and_b32 v10, 3, v0')
    a('v_xor_b32 v10, v10, v9')
    a('v_lshrrev_b32 v11, 2, v0')
    a('v_lshlrev_b32 v11, 6, v11')
    a('v_lshl_add_u32 v10, v10, 4, v11')
    a('s_lshl_b32 s44, s3, 12')
    a('s_add_u32 m0, s44, %d' % (UB + 64))
    a('s_lshl_b32 s45, s2, 14')
    a('s_add_u32 s45, s45, s44')
    a('s_add_u32 s45, s45, 0x%x' % KVB)
    for j in range(4): sc.emit(('buffer_load_dwordx4 v10, s[48:51], s45 offen offset:%d lds' % (1024 * j), 'U'))
    srd(a, 64, 6, D * 2)
    a('s_lshl_b32 s46, s42, 1')
    a('v_mov_b32 v10, 0')
    sc.emit(('buffer_load_ushort v27, v10, s[64:67], s46 offen', 'U'))
    CL = opt.get('c3', 80)
    for pr_ in range(5):
        for pre, ld in loads(pr_): LQ.append((0 if pr_ < 4 else 20, pre, ld, CL))
    for _ in range(4): sc.pump(); sc.t += CL
    for r in range(4): a('v_mov_b32 v%d, 0' % (32 + r))
    a('v_bfe_u32 v10, v0, 1, 2')
    a('v_mul_u32_u24 v10, 4160, v10')
    a('v_and_b32 v11, 1, v0')
    a('v_lshl_add_u32 v10, v11, 4, v10')
    a('v_add_u32 v10, s40, v10')
    a('v_add_u32 v11, %d, v1' % UB)
    a('s_mov_b64 exec, 0xff')
    a('ds_write_b128 v10, v[32:35]')
    a('s_mov_b64 exec, 0xf')
    a('ds_write_b128 v11, v[32:35]')
    a('s_mov_b64 exec, -1')
    a('v_add_u32 v36, s40, v1')
    a('v_add_u32 v10, 1, v8')
    a('v_and_b32 v11, 3, v10')
    a('v_mul_u32_u24 v11, 4158, v11')
    a('v_lshl_add_u32 v11, v10, 1, v11')
    a('v_lshl_add_u32 v11, v9, 4, v11')
    a('v_add_u32 v37, s40, v11')
    a('v_lshlrev_b32 v38, 1, v8')
    a('v_sub_u32 v38, v38, v9')
    a('v_add_u32 v38, 1, v38')
    a('s_mov_b32 s47, %d' % (UB + 64))
    BT = 220
    for j in range(4):
        sc.vm.wait(a, 'H%d' % j)
        d = [HT + 8 * j + i for i in (0, 1, 2, 3, 6, 7)]
        o = BT + 12 * (j & 1)
        a('ds_write_b128 v36, %s offset:%d' % (vr(d[0], 4), 32 + 1024 * j))
        for i in range(4): a('v_alignbit_b32 v%d, v%d, v%d, 16' % (o + i, d[i + 1], d[i]))
        a('ds_write_b128 v36, %s offset:%d' % (vr(o, 4), 4160 + 32 + 1024 * j))
        for i in range(4): a('v_mov_b32 v%d, v%d' % (o + 4 + i, d[i + 1]))
        a('ds_write_b128 v36, %s offset:%d' % (vr(o + 4, 4), 2 * 4160 + 32 + 1024 * j))
        for i in range(4): a('v_alignbit_b32 v%d, v%d, v%d, 16' % (o + 8 + i, d[i + 2], d[i + 1]))
        a('ds_write_b128 v36, %s offset:%d' % (vr(o + 8, 4), 3 * 4160 + 32 + 1024 * j))
        if j == 0:
            a('v_lshlrev_b32 v32, 16, v%d' % d[0])
            a('v_mov_b32 v33, v%d' % o)
            a('s_mov_b64 exec, 1')
            a('ds_write_b32 v36, v32 offset:%d' % (4160 + 28))
            a('ds_write_b32 v36, v%d offset:%d' % (d[0], 2 * 4160 + 28))
            a('ds_write_b64 v36, v[32:33] offset:%d' % (3 * 4160 + 24))
            a('s_mov_b64 exec, -1')
        if j & 1: a('s_waitcnt lgkmcnt(0)')
        sc.t += 200; sc.pump()
    sc.vm.wait(a, 'U')
    a('s_barrier')
    stamp(a, 15, 1)
    FA = 32; FB = 64; SP = 232
    def Areg(x): return FA + 4 * x
    def Breg(b, i): return (SP + 4 * b) if (b < 3 and i & 1) else FB + 4 * b
    lg = []
    def addr(i):
        k = 40 + 2 * (i & 1)
        return ['v_add_u32 v10, %d, v38' % ((-4 * i) & 0xffffffff), 'v_bfe_u32 v11, v10, 2, 2', 'v_xor_b32 v11, s3, v11', 'v_lshlrev_b32 v11, 4, v11',
                'v_add_u32 v11, s47, v11', 'v_max_i32 v12, -1, v10', 'v_lshl_add_u32 v%d, v10, 6, v11' % k, 'v_lshl_add_u32 v%d, v12, 6, v11' % (k + 1)]
    def rdA(x, i):
        def f():
            a('ds_read_b64 %s, v37 offset:%d' % (ar(Areg(x), 2), 512 * x + 64 * i))
            a('ds_read_b64 %s, v37 offset:%d' % (ar(Areg(x) + 2, 2), 512 * x + 64 * i + 8))
            lg.extend(['x', 'A%d_%d' % (x, i)])
        return f
    def rdBc(b, i):
        def f():
            k = 40 + 2 * (i & 1)
            if b == 0: a('ds_read_b128 %s, v%d' % (ar(Breg(b, i), 4), k + 1))
            else:      a('ds_read_b128 %s, v%d offset:%d' % (ar(Breg(b, i), 4), k, 2048 * b))
            lg.append('B%d_%d' % (b, i))
        return f
    def need(tag):
        if tag in lg:
            n = lg.index(tag)
            a('s_waitcnt lgkmcnt(%d)' % min(15, len(lg) - 1 - n))
            del lg[:n + 1]
    for x in addr(0): a(x)
    rdA(0, 0)()
    for b in range(7, -1, -1): rdBc(b, 0)()
    for x in range(1, 8): rdA(x, 0)()
    c = Cap(); setup_epi(c)
    epi = list(c.l)
    for i in range(8):
        q_ = []
        if i < 7: q_ = [x for x in addr(i + 1)] + [rdBc(2, i + 1), rdBc(1, i + 1), rdBc(0, i + 1)]
        for aa in range(8):
            for bb in range(7 - aa, -1, -1):
                need('A%d_%d' % (aa, i)); need('B%d_%d' % (bb, i))
                cr = ar(4 * (aa + bb), 4)
                a('v_mfma_f32_16x16x32_bf16 %s, %s, %s, %s' % (cr, ar(Areg(aa), 4), ar(Breg(bb, i), 4), '0' if (i == 0 and aa == 0) else cr))
                sc.pos += 1; sc.t += 17
                n = 2 - sc.pump()
                while q_ and n > 0:
                    x = q_.pop(0); sc.emit(x); n -= (2 if callable(x) else 1)
                if n == 2 and i == 7:
                    for _ in range(3):
                        if epi: a(epi.pop(0))
            if i < 7:
                q_.append(rdA(aa, i + 1))
                if 7 - aa >= 3: q_.append(rdBc(7 - aa, i + 1))
        for x in q_: sc.emit(x)
    stamp(a, 15, 2)
    a('v_lshrrev_b32 v44, 1, v9')
    a('v_lshl_add_u32 v44, v8, 1, v44')
    a('v_bfe_u32 v45, v44, 2, 2')
    a('v_xor_b32 v45, s3, v45')
    a('v_lshlrev_b32 v45, 4, v45')
    a('v_lshl_add_u32 v44, v44, 6, v45')
    a('v_and_b32 v45, 1, v9')
    a('v_lshlrev_b32 v45, 3, v45')
    a('v_sub_u32 v44, v44, v45')
    a('v_add_u32 v44, %d, v44' % (UB + 64 + 8))
    for t in range(8): a('ds_read_b64 %s, v44 offset:%d' % (ar(32 + 2 * t, 2), 2048 * t))
    a('v_lshrrev_b32 v45, 2, v8')
    a('v_lshlrev_b32 v45, 7, v45')
    a('v_lshl_add_u32 v45, v9, 5, v45')
    a('v_and_b32 v46, 3, v8')
    a('v_lshl_add_u32 v45, v46, 3, v45')
    a('s_add_u32 s43, s43, 0x%x' % YT)
    a('v_lshlrev_b32 v27, 16, v27')
    for x in epi: a(x)
    a('s_waitcnt lgkmcnt(0)')
    while LQ: sc.t += 100; sc.pump()
    for t in range(8):
        o = 32 + 10 * 0
        for r in range(4): a('v_accvgpr_read_b32 v%d, a%d' % (32 + r, 4 * t + r))
        a('v_accvgpr_read_b32 v37, a%d' % (33 + 2 * t))
        a('v_accvgpr_read_b32 v39, a%d' % (32 + 2 * t))
        a('v_and_b32 v36, 0xffff0000, v37')
        a('v_lshlrev_b32 v37, 16, v37')
        a('v_and_b32 v38, 0xffff0000, v39')
        a('v_lshlrev_b32 v39, 16, v39')
        for r in range(4): a('v_fmac_f32 v%d, v%d, v27' % (32 + r, 36 + r))
        k = 40 + 2 * (t & 1)
        a('v_cvt_pk_bf16_f32 v%d, v32, v33' % k)
        a('v_cvt_pk_bf16_f32 v%d, v34, v35' % (k + 1))
        sc.emit(('buffer_store_dwordx2 %s, v45, s[48:51], s43 offen offset:%d sc1' % (vr(k, 2), 512 * t), 'YS'))
    def publish():
        sc.vm.wait(a, 'YS')
        a('s_lshl_b32 s46, s42, 2')
        a('s_add_u32 s46, s46, 0x%x' % YFLAG)
        a('v_mov_b32 v10, 1')
        a('s_mov_b64 exec, 1')
        sc.emit(('buffer_store_dword v10, v1, s[48:51], s46 offen sc1', 'FL'))
        a('s_mov_b64 exec, -1')
    gemm(sc, 'c', [(sc.pos + opt.get('ypub', 70), ('BLOCK', [publish]))])
    a('s_branch K3_epi')
    a.label('K3_noconv')
    sc = Sched(a)
    n = 0
    for pr_ in range(5):
        for pre, ld in loads(pr_):
            if n < 12:
                for x in pre: a(x)
                sc.emit(ld)
            else: sc.LQ.append((0, pre, ld, 0))
            n += 1
    setup_epi(a)
    while len(sc.LQ) > 51: sc.pump()
    stamp(a, 15, 1); stamp(a, 15, 2)
    gemm(sc, 'n', [])
    a.label('K3_epi')
    stamp(a, 15, 4)
    a('v_add_u32 v10, s40, v1')
    a('s_mov_b32 s8, -1')
    a('s_mov_b32 s9, 0')
    a('s_mov_b32 s10, 0')
    a('s_mov_b32 s11, -1')
    for tt in (1, 2, 3):
        for dt in range(4): a('ds_write_b128 v10, %s offset:%d' % (acc(dt, tt), ((tt - 1) * 4 + dt) * 1024))
    a('s_mov_b64 exec, s[8:9]')
    for tt in (1, 2, 3, 0): a('ds_write_b128 v10, %s offset:%d' % (acc(4, tt), (12 + tt) * 1024))
    a('s_mov_b64 exec, s[10:11]')
    for tt in (1, 2, 3, 0): a('ds_write_b128 v10, %s offset:%d' % (acc(5, tt), (12 + tt) * 1024))
    a('s_mov_b64 exec, -1')
    O = 52
    for dt in range(4):
        for r in range(4): a('v_accvgpr_read_b32 v%d, a%d' % (O + 4 * dt + r, dt * 16 + r))
    for p in range(4):
        a('s_xor_b32 s12, s3, %d' % p)
        a('s_mul_i32 s12, s12, %d' % HSLOT)
        a('v_add_u32 v%d, s12, v1' % (4 + p))
        a('v_xor_b32 v11, 512, v1')
        a('v_add_u32 v%d, s12, v11' % (44 + p))
    a('s_waitcnt vmcnt(0)')
    a('ds_write_b128 v24, v[32:35]')
    a('ds_write_b128 v24, v[36:39] offset:4096')
    a('v_add_u32 v11, %d, v1' % (YP + 8192))
    a('ds_write_b128 v11, v[40:43]')
    X = 72
    a('ds_read_b128 %s, v20' % vr(X, 4))
    a('ds_read_b128 %s, v20 offset:64' % vr(X + 4, 4))
    a('ds_read_b64 %s, v21 offset:128' % vr(X + 8, 2))
    a('s_waitcnt lgkmcnt(0)')
    a('s_barrier')
    R = 84
    for p in range(1, 4):
        for dt in range(4): a('ds_read_b128 %s, v%d offset:%d' % (vr(R + 16 * (p - 1) + 4 * dt, 4), 4 + p, ((p - 1) * 4 + dt) * 1024))
    XF = 180; XN = 200; Yr = 164
    a('v_mov_b32 v30, v28')
    a('v_mov_b32 v31, v28')
    a('v_mov_b32 v28, v29')
    for i in range(10):
        a('v_lshlrev_b32 v%d, 16, v%d' % (XF + 2 * i, X + i))
        a('v_and_b32 v%d, 0xffff0000, v%d' % (XF + 2 * i + 1, X + i))
    a('s_waitcnt lgkmcnt(4)')
    for p in range(4):
        a('ds_read_b128 %s, v%d offset:%d' % (vr(132 + 8 * p, 4), 4 + p, (12 + p) * 1024))
        a('ds_read_b128 %s, v%d offset:%d' % (vr(136 + 8 * p, 4), 44 + p, (12 + p) * 1024))
    for i in range(10): a('v_pk_add_f32 %s, %s, v[30:31] neg_lo:[0,1] neg_hi:[0,1]' % (pr(XN + 2 * i), pr(XF + 2 * i)))
    a('s_waitcnt lgkmcnt(8)')
    for dt in range(4): a('ds_read_b64_tr_b16 %s, v25 offset:%d' % (vr(Yr + 2 * dt, 2), (32 * (dt >> 1) + 4 * (dt & 1)) * 128))
    a('ds_read_b64_tr_b16 %s, v26 offset:%d' % (vr(Yr + 8, 2), 64 * 128))
    for i in range(10): a('v_pk_mul_f32 %s, %s, v[28:29]' % (pr(XN + 2 * i), pr(XN + 2 * i)))
    for i in range(8): a('v_pk_add_f32 %s, %s, %s' % (pr(O + 2 * i), pr(O + 2 * i), pr(XF + 2 * i)))
    for i in range(8): a('v_pk_add_f32 %s, %s, %s' % (pr(R + 2 * i), pr(R + 2 * i), pr(R + 16 + 2 * i)))
    for i in range(8): a('v_pk_add_f32 %s, %s, %s' % (pr(O + 2 * i), pr(O + 2 * i), pr(R + 32 + 2 * i)))
    for i in range(8): a('v_pk_add_f32 %s, %s, %s' % (pr(O + 2 * i), pr(O + 2 * i), pr(R + 2 * i)))
    a('s_waitcnt lgkmcnt(5)')
    for i in range(8): a('v_pk_add_f32 %s, %s, %s' % (pr(132 + 2 * i), pr(132 + 2 * i), pr(148 + 2 * i)))
    for i in range(4): a('v_pk_add_f32 %s, %s, %s' % (pr(132 + 2 * i), pr(132 + 2 * i), pr(140 + 2 * i)))
    for i in range(2): a('v_pk_add_f32 %s, %s, %s' % (pr(132 + 2 * i), pr(132 + 2 * i), pr(136 + 2 * i)))
    for i in range(2): a('v_pk_add_f32 %s, %s, %s' % (pr(O + 16 + 2 * i), pr(132 + 2 * i), pr(XF + 16 + 2 * i)))
    a('s_waitcnt lgkmcnt(0)')
    for i in range(10):
        a('v_lshlrev_b32 v%d, 16, v%d' % (XF + 2 * i, Yr + i))
        a('v_and_b32 v%d, 0xffff0000, v%d' % (XF + 2 * i + 1, Yr + i))
    for i in range(10): a('v_pk_fma_f32 %s, %s, %s, %s' % (pr(O + 2 * i), pr(XN + 2 * i), pr(XF + 2 * i), pr(O + 2 * i)))
    for i in range(10): a('v_cvt_pk_bf16_f32 v%d, v%d, v%d' % (X + i, O + 2 * i, O + 2 * i + 1))
    a('ds_write_b128 v20, %s' % vr(X, 4))
    a('ds_write_b128 v20, %s offset:64' % vr(X + 4, 4))
    a('s_mov_b64 exec, s[8:9]')
    a('ds_write_b64 v21, %s offset:128' % vr(X + 8, 2))
    a('s_mov_b64 exec, -1')
    a('v_add_u32 v10, s36, v1')
    for i in range(3): a('ds_read_b128 %s, v10 offset:%d' % (vr(R + 4 * i, 4), 1024 * i))
    for i in range(3):
        a('s_waitcnt lgkmcnt(%d)' % (2 - i))
        a('buffer_store_dwordx4 %s, v%d, s[56:59], s34 offen%s' % (vr(R + 4 * i, 4), 16 + i, ' sc1' if opt.get('osc', 0) else ''))
    stamp(a, 15, 5)
    stamp_flush(a, 15, 3, 14, 6)
    if DBG['on'] and opt.get('hdbg'):
        wg = opt.get('hdbg') - 1
        a('s_cmp_lg_u32 s2, %d' % wg)
        a('s_cbranch_scc1 K3_end')
        a('s_cmp_lg_u32 s3, 0')
        a('s_cbranch_scc1 K3_end')
        a('s_load_dwordx2 s[8:9], s[0:1], 96')
        a('s_waitcnt vmcnt(0) lgkmcnt(0)')
        a('s_sub_u32 s8, s8, 0')
        a('s_subb_u32 s9, s9, 0')
        a('s_mov_b32 s10, 256')
        a('s_mov_b32 s11, 0x00020000')
        sel = [(0, 0), (0, 5), (1, 0), (1, 1), (1, 2), (1, 3), (1, 5), (1, 7), (2, 2), (2, 3), (2, 6), (3, 0), (3, 1), (3, 2), (3, 4), (3, 6)]
        for i, (k, j) in enumerate(sel):
            a('s_mov_b32 s12, 0x%x' % (STAMP + k * 256 * 8 * 64 + wg * 512 + j * 4))
            a('v_writelane_b32 v20, s12, %d' % i)
        a('buffer_load_dword v21, v20, s[48:51], 0 offen sc1')
        a('s_waitcnt vmcnt(0)')
        a('v_readlane_b32 s12, v21, 0')
        a('s_nop 1')
        a('v_subrev_u32 v21, s12, v21')
        a('buffer_store_dword v21, v14, s[8:11], 0 offen')
    a.label('K3_end')
    a('s_endpgm')
    return kernel_desc(name, 512, 256), '; @launch kernel=k3_kernel grid=(256,1,1) block=(256,1,1) lds=%d' % K3_LDS

def gen_empty(n):
    def f(a):
        name = 'k%d_kernel' % n
        kernel_begin(a, name)
        a('s_endpgm')
        return kernel_desc(name, 64, 64), '; @launch kernel=%s grid=(256,1,1) block=(256,1,1) lds=0' % name
    return f
KERNELS = {'k0': gen_k0, 'k1': gen_k1, 'k2': gen_k2, 'k3': gen_k3, 'kf': gen_kf, 'e1': gen_empty(7), 'e2': gen_empty(8), 'e3': gen_empty(9)}

def build(names):
    a = Asm()
    descs = []; hdr = []
    for n in names:
        d, h = KERNELS[n](a, OPT) if n in ('k0', 'k1', 'k2', 'k3', 'kf') else KERNELS[n](a)
        descs.append(d); hdr.append(h)
    if SC1['on']:
        a.lines = [l + ' ' + SC1['on'] if ('buffer_store_dwordx4' in l and 'sc1' not in l) else l for l in a.lines]
    txt = build_file(hdr, a.text(), descs)
    errs = hazard.check(a.text())
    for e in errs: print('HAZARD', e, file=sys.stderr)
    return txt

if __name__ == '__main__':
    out = sys.argv[1]
    names = sys.argv[2].split(',')
    if len(sys.argv) > 3 and 'dbg' in sys.argv[3]: DBG['on'] = True
    if len(sys.argv) > 3 and 'sc1' in sys.argv[3]: SC1['on'] = 'sc1'
    if len(sys.argv) > 3 and 'sc01' in sys.argv[3]: SC1['on'] = 'sc0 sc1'
    if len(sys.argv) > 3 and 'nt' in sys.argv[3]: SC1['on'] = 'nt'
    for kv in sys.argv[4:]:
        k, v = kv.split('=')
        OPT[k] = float(v) if '.' in v else int(v)
    open(out, 'w').write(build(names))
```

```python
import sys
from asmlib import *
import hazard

S = 2048; D = 576; FH = 2304
XN_F   = 0x0000000
XSTAT  = 0x0240000
KVB    = 0x0280000
YT     = 0x0500000
PSTAT  = 0x0780000
YFLAG  = 0x07F0000
ZFLAG  = 0x07F1000
WIN_F  = 0x0800000
WOUT_F = 0x0E00000
WSP_F  = 0x1100000
Z2_F   = 0x1900000
Z1_P   = 0x2200000
H_F    = 0x2B00000
WS_END = 0x3500000
import os
WS_BASE = int(os.environ.get('WSB', '0')) << 20
STAMP  = 0x3400000
DBG = {'on': False}
OPT = {}
SC1 = {'on': ''}
def stamp(a, v, i):
    if not DBG['on']: return
    a('s_memrealtime s[98:99]')
    a('s_memtime s[100:101]')
    a('s_waitcnt lgkmcnt(0)')
    a('v_writelane_b32 v%d, s98, %d' % (v, i))
    a('v_writelane_b32 v%d, s100, %d' % (v, 8 + i))
def stamp_flush(a, v, k, vtmp, last):
    if not DBG['on']: return
    a('s_waitcnt vmcnt(0)')
    stamp(a, v, last)
    a('s_lshl_b32 s96, s2, 3')
    a('s_add_u32 s96, s96, s3')
    a('s_lshl_b32 s96, s96, 6')
    a('s_add_u32 s96, s96, 0x%x' % (STAMP + k * 256 * 8 * 64))
    a('v_lshlrev_b32 v%d, 2, v0' % vtmp)
    a('s_mov_b64 exec, 0xffff')
    a('buffer_store_dword v%d, v%d, s[48:51], s96 offen' % (v, vtmp))

def f2u(x):
    import struct
    return struct.unpack('<I', struct.pack('<f', x))[0]

def wave_lane(a, sw, keep_tid=None):
    if keep_tid is not None:
        a('v_mov_b32 v%d, v0' % keep_tid)
    a('v_lshrrev_b32 v1, 6, v0')
    a('v_and_b32 v0, 63, v0')
    a('v_readfirstlane_b32 s%d, v1' % sw)

def wave_reduce(a, regs_, sdst):
    assert len(regs_) >= 1
    pad = max(0, 3 - len(regs_))
    def nop():
        if pad == 2: a('s_nop 1')
        elif pad == 1: a('s_nop 0')
    a('s_nop 1')
    for sh in (8, 4, 2, 1):
        for r in regs_:
            a('v_add_f32 v%d, v%d, v%d row_ror:%d' % (r, r, r, sh))
        nop()
    for r in regs_:
        a('v_add_f32 v%d, v%d, v%d row_bcast:15 row_mask:0xa' % (r, r, r))
    nop()
    for r in regs_:
        a('v_add_f32 v%d, v%d, v%d row_bcast:31 row_mask:0xc' % (r, r, r))
    a('s_nop 0')
    for r, s in zip(regs_, sdst):
        a('v_readlane_b32 s%d, v%d, 63' % (s, r))

def round_bf16(a, r):
    a('v_cvt_pk_bf16_f32 v%d, v%d, v%d' % (r, r, r))
    a('v_and_b32 v%d, 0xffff0000, v%d' % (r, r))

def tr_block_dma(a, srdn, s_r0, s_r1, pitch, s_col, s_lds, vtmp):
    for j in range(4):
        a('s_add_u32 s85, s%d, %d' % (s_r0 if j < 2 else s_r1, 8 * j))
        a('s_mul_i32 s85, s85, %d' % pitch)
        a('s_add_u32 m0, s%d, %d' % (s_lds, 1024 * j))
        a('s_add_u32 s85, s85, s%d' % s_col)
        a('buffer_load_dwordx4 v%d, s[%d:%d], s85 offen lds' % (vtmp, srdn, srdn + 3))

def kv_addr(vp, t, schunk, lim=None):
    l = ['s_mul_i32 s68, %s, %d' % (schunk, 8 * 1152), 'v_lshlrev_b32 v%d, 2, v%d' % (t, vp)]
    if lim:
        l += ['v_cmp_gt_u32 vcc, %d, v%d' % (lim, vp), 'v_mov_b32 v%d, 0x7ffffff0' % (t + 1), 'v_lshlrev_b32 v%d, 4, v%d' % (t + 5, vp),
              'v_cndmask_b32 v%d, v%d, v%d, vcc' % (t, t + 1, t)]
    else:
        l += ['v_lshlrev_b32 v%d, 4, v%d' % (t + 5, vp)]
    l += ['v_add_u32 v%d, s68, v%d' % (t, t), 'v_add_u32 v%d, %d, v%d' % (t + 1, 4 * 1152, t)]
    for r in range(3): l.append('v_subrev_u32 v%d, %d, v%d' % (t + 2 + r, (3 - r) * 1152, t))
    return l
def kv_loads(t, d, tag='KV'):
    l = []
    for r in range(3): l.append(('buffer_load_dword v%d, v%d, s[24:27], 0 offen' % (d + r, t + 2 + r), tag))
    for r in range(8): l.append(('buffer_load_dword v%d, v%d, s[24:27], 0 offen offset:%d' % (d + 3 + r, t if r < 4 else t + 1, (r % 4) * 1152), tag))
    for r in range(8): l.append(('buffer_load_dword v%d, v%d, s[28:31], 0 offen offset:%d' % (d + 12 + r, t if r < 4 else t + 1, (r % 4) * 1152), tag))
    l.append(('buffer_load_dwordx4 v[%d:%d], v%d, s[32:35], 0 offen' % (d + 20, d + 23, t + 5), tag))
    return l
def kv_compute(d, w, pk=False):
    l = []
    K = w + 8; O = w + 20
    for c in range(2):
        for t in range(2):
            l.append('v_lshlrev_b32 v%d, 16, v%d' % (w + 4 + 2 * t, d + 20 + 2 * c + t))
            l.append('v_and_b32 v%d, 0xffff0000, v%d' % (w + 5 + 2 * t, d + 20 + 2 * c + t))
        un = (lambda dst, src: 'v_lshlrev_b32 v%d, 16, v%d' % (dst, src)) if c == 0 else (lambda dst, src: 'v_and_b32 v%d, 0xffff0000, v%d' % (dst, src))
        for r in range(11): l.append(un(K + r, d + r))
        for r in range(8): l.append('v_mul_f32 v%d, v%d, v%d' % (O + r, K + r, w + 4 + 3))
        for j in (2, 1, 0):
            for r in range(8): l.append('v_fmac_f32 v%d, v%d, v%d' % (O + r, K + 3 + r - j, w + 4 + j))
        for r in range(8): l.append(un(K + r, d + 12 + r))
        if pk:
            for r in range(4): l.append('v_pk_mul_f32 v[%d:%d], v[%d:%d], v[%d:%d]' % (O + 2 * r, O + 1 + 2 * r, O + 2 * r, O + 1 + 2 * r, K + 2 * r, K + 1 + 2 * r))
        else:
            for r in range(8): l.append('v_mul_f32 v%d, v%d, v%d' % (O + r, O + r, K + r))
        for e in range(4): l.append('v_cvt_pk_bf16_f32 v%d, v%d, v%d' % (w + 28 + 4 * c + e, O + 7 - 2 * e, O + 6 - 2 * e))
    return l
def kv_store(vp, t, w, schunk, lim=None, tag='KS'):
    l = ['v_lshrrev_b32 v%d, 2, v%d' % (t, vp), 'v_lshlrev_b32 v%d, 14, v%d' % (t, t), 'v_and_b32 v%d, 3, v%d' % (t + 1, vp),
         'v_lshl_add_u32 v%d, v%d, 4, v%d' % (t, t + 1, t), 's_lshl_b32 s68, %s, 6' % schunk, 's_add_u32 s68, s68, 0x%x' % KVB,
         's_add_u32 s69, s68, %d' % (72 * 16384)]
    if lim:
        l += ['v_cmp_gt_u32 vcc, %d, v%d' % (lim, vp), 'v_mov_b32 v%d, 0x7ffffff0' % (t + 1), 's_nop 0', 'v_cndmask_b32 v%d, v%d, v%d, vcc' % (t, t + 1, t)]
    l.append(('buffer_store_dwordx4 v[%d:%d], v%d, s[48:51], s68 offen sc1' % (w + 28, w + 31, t), tag))
    l.append(('buffer_store_dwordx4 v[%d:%d], v%d, s[48:51], s69 offen sc1' % (w + 32, w + 35, t), tag))
    return l

def gen_k0(a, opt={}):
    name = 'k0_kernel'
    kernel_begin(a, name)
    a('s_cmp_ge_u32 s2, 256')
    a('s_cbranch_scc1 K0_end')
    a('s_load_dwordx4 s[4:7], s[0:1], 0')
    a('s_load_dwordx8 s[8:15], s[0:1], 16')
    a('s_load_dwordx2 s[16:17], s[0:1], 56')
    a('s_load_dwordx2 s[18:19], s[0:1], 104')
    a('s_load_dwordx4 s[56:59], s[0:1], 64')
    stamp(a, 127, 0)
    wave_lane(a, 3)
    a('v_lshlrev_b32 v3, 4, v0')
    a('s_lshr_b32 s60, s2, 2')
    a('s_lshl_b32 s61, s60, 5')
    a('s_and_b32 s62, s2, 1')
    a('s_lshl_b32 s63, s62, 4')
    a('s_add_u32 s61, s61, s63')
    a('s_lshr_b32 s63, s3, 2')
    a('s_lshl_b32 s63, s63, 3')
    a('s_add_u32 s61, s61, s63')
    a('s_bfe_u32 s64, s2, 0x10001')
    a('s_lshl_b32 s63, s64, 2')
    a('s_add_u32 s61, s61, s63')
    a('s_and_b32 s63, s3, 3')
    a('s_add_u32 s61, s61, s63')
    a('s_mul_i32 s65, s61, 1152')
    a('v_mov_b32 v61, 0x7ffffff0')
    a('v_cmp_gt_u32 vcc, 8, v0')
    a('v_add_u32 v66, 1024, v3')
    a('v_add_u32 v2, 256, v0')
    a('v_cndmask_b32 v66, v61, v66, vcc')
    a('v_lshrrev_b32 v71, 3, v0')
    a('v_mul_u32_u24 v71, 9216, v71')
    a('v_and_b32 v72, 7, v0')
    a('v_lshl_add_u32 v71, v72, 4, v71')
    a('s_mov_b32 s22, %d' % (S * D * 2))
    a('s_mov_b32 s23, 0x00020000')
    a('s_waitcnt lgkmcnt(0)')
    a('s_mov_b32 s20, s4')
    a('s_mov_b32 s21, s5')
    a('buffer_load_dwordx4 v[4:7], v3, s[20:23], s65 offen')
    a('buffer_load_dwordx4 v[8:11], v66, s[20:23], s65 offen')
    srd(a, 48, 18, WS_END, off=WS_BASE)
    a('s_barrier')
    a('s_cmp_ge_u32 s3, 2')
    a('s_cbranch_scc1 K0_blkld')
    a('s_cmp_eq_u32 s3, 1')
    a('s_cbranch_scc1 K0_w1')
    srd(a, 24, 6, S * D * 2)
    srd(a, 28, 8, S * D * 2)
    srd(a, 32, 10, D * 8)
    for x in kv_addr(2, 60, 's2', 288) + kv_loads(60, 12): a(x[0] if isinstance(x, tuple) else x)
    a('s_waitcnt vmcnt(20)')
    a('s_branch K0_ln')
    a.label('K0_w1')
    a('s_waitcnt vmcnt(0)')
    if opt.get('k0t', 0):
        a('s_cmp_lg_u32 s3, 1')
        a('s_cbranch_scc1 K0_ln')
        srd(a, 36, 56, S * S * 2)
        a('v_lshlrev_b32 v73, 7, v0')
        a('s_lshl_b32 s91, s2, 15')
        for i in range(4):
            a('buffer_load_dword v%d, v73, s[36:39], s91 offen' % (40 + i))
            a('s_add_u32 s91, s91, 8192')
    a('s_branch K0_ln')
    a.label('K0_blkld')
    srd(a, 52, 16, D * 4608 * 2)
    a('s_sub_u32 s66, s3, 2')
    a('s_lshl_b32 s84, s66, 12')
    a('s_lshl_b32 s66, s66, 8')
    a('s_add_u32 s66, s66, s2')
    a('s_cmp_ge_u32 s66, 1296')
    a('s_cbranch_scc1 K0_w1')
    a('s_mul_hi_u32 s72, s66, 0x038E38E4')
    a('s_mul_i32 s73, s72, 72')
    a('s_sub_u32 s73, s66, s73')
    a('s_lshl_b32 s76, s72, 5')
    a('s_lshl_b32 s77, s73, 7')
    tr_block_dma(a, 52, 76, 76, 9216, 77, 84, 71)
    a('s_waitcnt vmcnt(4)')
    a.label('K0_ln')
    stamp(a, 127, 1)
    for i in range(8):
        a('v_lshlrev_b32 v%d, 16, v%d' % (84 + 2 * i, 4 + i))
        a('v_and_b32 v%d, 0xffff0000, v%d' % (85 + 2 * i, 4 + i))
    a('v_pk_add_f32 v[100:101], v[84:85], v[86:87]')
    a('v_pk_add_f32 v[102:103], v[88:89], v[90:91]')
    a('v_pk_add_f32 v[104:105], v[92:93], v[94:95]')
    a('v_pk_add_f32 v[106:107], v[96:97], v[98:99]')
    a('v_pk_add_f32 v[100:101], v[100:101], v[102:103]')
    a('v_pk_add_f32 v[104:105], v[104:105], v[106:107]')
    a('v_pk_add_f32 v[100:101], v[100:101], v[104:105]')
    a('v_add_f32 v100, v100, v101')
    wave_reduce(a, [100], [87])
    a('v_mov_b32 v102, 0x%x' % f2u(1.0 / 576))
    a('v_cmp_gt_u32 vcc, 8, v0')
    a('v_mul_f32 v102, s87, v102')
    a('v_mov_b32 v103, v102')
    for i in range(8):
        a('v_pk_add_f32 v[%d:%d], v[%d:%d], v[102:103] neg_lo:[0,1] neg_hi:[0,1]' % (108 + 2 * i, 109 + 2 * i, 84 + 2 * i, 85 + 2 * i))
    a('v_pk_mul_f32 v[100:101], v[108:109], v[108:109]')
    a('v_pk_mul_f32 v[104:105], v[116:117], v[116:117]')
    for i in range(1, 4):
        a('v_pk_fma_f32 v[100:101], v[%d:%d], v[%d:%d], v[100:101]' % (108 + 2 * i, 109 + 2 * i, 108 + 2 * i, 109 + 2 * i))
        a('v_pk_fma_f32 v[104:105], v[%d:%d], v[%d:%d], v[104:105]' % (116 + 2 * i, 117 + 2 * i, 116 + 2 * i, 117 + 2 * i))
    a('v_add_f32 v100, v100, v101')
    a('v_add_f32 v104, v104, v105')
    a('v_cndmask_b32 v104, 0, v104, vcc')
    a('v_add_f32 v100, v100, v104')
    wave_reduce(a, [100], [88])
    a('v_mov_b32 v105, 0x%x' % f2u(1.0 / 576))
    round_bf16(a, 102)
    a('v_mul_f32 v105, s88, v105')
    a('v_mov_b32 v103, v102')
    round_bf16(a, 105)
    a('v_add_f32 v105, 0x%x, v105' % f2u(1e-5))
    round_bf16(a, 105)
    a('v_sqrt_f32 v105, v105')
    for i in range(8):
        a('v_pk_add_f32 v[%d:%d], v[%d:%d], v[102:103] neg_lo:[0,1] neg_hi:[0,1]' % (84 + 2 * i, 85 + 2 * i, 84 + 2 * i, 85 + 2 * i))
    round_bf16(a, 105)
    a('v_rcp_f32 v105, v105')
    for i in range(8):
        a('v_cvt_pk_bf16_f32 v%d, v%d, v%d' % (4 + i, 84 + 2 * i, 85 + 2 * i))
    a('v_mov_b32 v104, v105')
    a('v_mov_b32 v103, v105')
    for i in range(8):
        a('v_lshlrev_b32 v%d, 16, v%d' % (84 + 2 * i, 4 + i))
        a('v_and_b32 v%d, 0xffff0000, v%d' % (85 + 2 * i, 4 + i))
    for i in range(8):
        a('v_pk_mul_f32 v[%d:%d], v[%d:%d], v[104:105]' % (84 + 2 * i, 85 + 2 * i, 84 + 2 * i, 85 + 2 * i))
    for i in range(8):
        a('v_cvt_pk_bf16_f32 v%d, v%d, v%d' % (4 + i, 84 + 2 * i, 85 + 2 * i))
    XL = 24576
    a('s_lshl_b32 s89, s3, 4')
    a('s_add_u32 s89, s89, %d' % XL)
    a('v_lshlrev_b32 v106, 7, v0')
    a('v_add_u32 v106, s89, v106')
    a('ds_write_b128 v106, v[4:7]')
    a('s_mov_b64 exec, 0xff')
    a('ds_write_b128 v106, v[8:11] offset:8192')
    a('s_mov_b64 exec, 1')
    a('s_lshl_b32 s89, s61, 3')
    a('s_add_u32 s89, s89, 0x%x' % XSTAT)
    a('buffer_store_dwordx2 v[102:103], v3, s[48:51], s89 offen sc1')
    a('s_mov_b64 exec, -1')
    a('s_lshl_b32 s89, s3, 10')
    a('s_add_u32 s89, s89, %d' % XL)
    a('v_add_u32 v104, s89, v3')
    a('v_lshrrev_b32 v105, 5, v0')
    a('v_lshlrev_b32 v105, 11, v105')
    a('v_bfe_u32 v106, v0, 3, 2')
    a('v_lshl_add_u32 v105, v106, 8, v105')
    a('v_and_b32 v106, 7, v0')
    a('v_lshl_add_u32 v105, v106, 4, v105')
    a('s_mul_i32 s89, s60, %d' % (18 * 2048))
    a('s_lshl_b32 s90, s64, 10')
    a('s_add_u32 s89, s89, s90')
    a('s_lshl_b32 s90, s62, 7')
    a('s_add_u32 s89, s89, s90')
    a('s_lshl_b32 s90, s3, 12')
    a('s_add_u32 s90, s90, s89')
    a('s_add_u32 s89, s89, %d' % (8 * 4096))
    a('s_waitcnt lgkmcnt(0)')
    stamp(a, 127, 2)
    a('s_barrier')
    a('ds_read_b128 v[4:7], v104')
    a('ds_read_b128 v[8:11], v3 offset:%d' % (XL + 8192))
    a('s_waitcnt lgkmcnt(1)')
    a('buffer_store_dwordx4 v[4:7], v105, s[48:51], s90 offen sc1')
    stamp(a, 127, 3)
    a('s_cmp_ge_u32 s3, 2')
    a('s_cbranch_scc1 K0_blk')
    a('s_cmp_eq_u32 s3, 1')
    a('s_cbranch_scc1 K0_misc')
    a('s_waitcnt vmcnt(2)')
    for x in kv_compute(12, 84, pk=True) + kv_store(2, 60, 84, 's2', 288): a(x[0] if isinstance(x, tuple) else x)
    a('s_branch K0_fin')
    a.label('K0_misc')
    a('s_waitcnt lgkmcnt(0)')
    a('buffer_store_dwordx4 v[8:11], v105, s[48:51], s89 offen sc1')
    for r in range(4):
        a('v_mov_b32 v%d, -1' % (76 + r))
    a('s_lshl_b32 s86, s2, 10')
    a('s_add_u32 s86, s86, 0x%x' % PSTAT)
    a('buffer_store_dwordx4 v[76:79], v3, s[48:51], s86 offen sc1')
    a('s_cmp_ge_u32 s2, 8')
    a('s_cbranch_scc1 K0_fin')
    srd(a, 40, 58, S * 2)
    srd(a, 44, 14, D * 2)
    a('v_lshlrev_b32 v73, 7, v0')
    a('buffer_load_dword v75, v73, s[40:43], 0 offen')
    a('buffer_load_dword v74, v73, s[44:47], 0 offen')
    for r in range(4):
        a('v_mov_b32 v%d, 0' % (80 + r))
    a('s_lshl_b32 s86, s2, 10')
    a('s_add_u32 s86, s86, 0x%x' % YFLAG)
    a('buffer_store_dwordx4 v[80:83], v3, s[48:51], s86 offen sc1')
    a('s_branch K0_fin')
    a.label('K0_blk')
    a('s_cmp_ge_u32 s66, 1296')
    a('s_cbranch_scc1 K0_fin')
    a('v_lshrrev_b32 v68, 4, v0')
    a('v_lshlrev_b32 v71, 10, v68')
    a('v_bfe_u32 v72, v0, 2, 2')
    a('v_lshl_add_u32 v71, v72, 7, v71')
    a('v_and_b32 v72, 3, v0')
    a('v_lshl_add_u32 v71, v72, 3, v71')
    a('v_add_u32 v71, s84, v71')
    a('s_waitcnt vmcnt(2)')
    for nt in range(4):
        b = 12 + 4 * nt
        a('ds_read_b64_tr_b16 v[%d:%d], v71 offset:%d' % (b, b + 1, 32 * nt))
        a('ds_read_b64_tr_b16 v[%d:%d], v71 offset:%d' % (b + 2, b + 3, 512 + 32 * nt))
    a('s_cmp_ge_u32 s73, 36')
    a('s_cselect_b32 s90, 144, 0')
    a('s_cselect_b32 s93, 9, 1')
    a('s_cselect_b32 s94, 1, 18')
    a('s_cselect_b32 s95, 0, 162')
    a('s_mul_i32 s93, s93, s72')
    a('s_add_u32 s95, s95, s93')
    a('s_lshl_b32 s89, s73, 2')
    a('s_sub_u32 s89, s89, s90')
    for nt in range(4):
        a('s_mul_hi_u32 s91, s89, 0x1C71C71D')
        a('s_mul_i32 s92, s91, 9')
        a('s_sub_u32 s92, s89, s92')
        a('s_mul_i32 s91, s91, 324')
        a('s_mul_i32 s92, s92, s94')
        a('s_add_u32 s91, s91, s92')
        a('s_add_u32 s91, s91, s95')
        a('s_lshl_b32 s91, s91, 10')
        a('s_add_u32 s91, s91, 0x%x' % WIN_F)
        b = 12 + 4 * nt
        a('s_waitcnt lgkmcnt(%d)' % (6 - 2 * nt))
        a('buffer_store_dwordx4 v[%d:%d], v3, s[48:51], s91 offen sc1' % (b, b + 3))
        a('s_add_u32 s89, s89, 1')
    a.label('K0_fin')
    stamp(a, 127, 4)
    stamp_flush(a, 127, 0, 126, 5)
    if opt.get('k0e', 0):
        a('s_mov_b64 exec, -1')
        a('s_cmp_ge_u32 s3, 4')
        a('s_cbranch_scc1 K0_end')
        srd(a, 36, 56, S * S * 2)
        a('v_lshlrev_b32 v73, 7, v0')
        a('s_lshl_b32 s91, s2, 2')
        a('s_add_u32 s91, s91, s3')
        a('s_lshl_b32 s91, s91, 13')
        a('buffer_load_dword v40, v73, s[36:39], s91 offen')
    a.label('K0_end')
    a('s_endpgm')
    return kernel_desc(name, 128, 128), '; @launch kernel=k0_kernel grid=(256,1,1) block=(512,1,1) lds=%d' % (24576 + 9216)

class VM:
    def __init__(self): self.q = []
    def issue(self, tag, n=1): self.q += [tag] * n
    def need(self, tag):
        last = max(i for i, t in enumerate(self.q) if t == tag)
        return len(self.q) - 1 - last
    def wait(self, a, tag):
        if tag not in self.q: return
        n = self.need(tag)
        n = min(n, 63)
        a('s_waitcnt vmcnt(%d)' % n)
        self.q = self.q[len(self.q) - n:]

K1C = -2.0 * 0.7978845608028654 * 1.4426950408889634
K2C = K1C * 0.044715

def gelu_ops(xs, tmps, vk2):
    ops = []
    for x, t in zip(xs, tmps): ops.append('v_mul_f32 v%d, v%d, v%d' % (t, x, x))
    for x, t in zip(xs, tmps): ops.append('v_fmaak_f32 v%d, v%d, v%d, 0x%x' % (t, vk2, t, f2u(K1C)))
    for x, t in zip(xs, tmps): ops.append('v_mul_f32 v%d, v%d, v%d' % (t, x, t))
    for x, t in zip(xs, tmps): ops.append('v_exp_f32 v%d, v%d' % (t, t))
    for x, t in zip(xs, tmps): ops.append('v_add_f32 v%d, 1.0, v%d' % (t, t))
    for x, t in zip(xs, tmps): ops.append('v_rcp_f32 v%d, v%d' % (t, t))
    for x, t in zip(xs, tmps): ops.append('v_mul_f32 v%d, v%d, v%d' % (x, x, t))
    return ops

K1_LDS = 163840
def cost(x):
    t = x[0] if isinstance(x, tuple) else x
    if t.startswith(('v_exp', 'v_rcp', 'v_sqrt', 'v_rsq')): return 2
    if t.startswith('s_'): return 0 if not t.startswith('s_nop') else 1
    return 1

def wg_map_16x16(a):
    a('s_and_b32 s20, s2, 7')
    a('s_lshr_b32 s21, s2, 3')
    a('s_and_b32 s22, s20, 1')
    a('s_lshl_b32 s22, s22, 3')
    a('s_and_b32 s23, s21, 7')
    a('s_add_u32 s22, s22, s23')
    a('s_lshr_b32 s23, s20, 1')
    a('s_lshl_b32 s23, s23, 2')
    a('s_lshr_b32 s24, s21, 3')
    a('s_add_u32 s23, s23, s24')

class Cap:
    def __init__(self): self.l = []
    def __call__(self, x): self.l.append(x)

def gen_k1(a, opt={}):
    name = 'k1_kernel'
    kernel_begin(a, name)
    a('s_cmp_ge_u32 s2, 256')
    a('s_cbranch_scc1 K1_end')
    a('s_load_dwordx2 s[48:49], s[0:1], 104')
    a('s_load_dwordx8 s[4:11], s[0:1], 8')
    a('s_load_dwordx2 s[12:13], s[0:1], 64')
    a('s_load_dwordx2 s[14:15], s[0:1], 80')
    stamp(a, 15, 0)
    wave_lane(a, 3)
    a('v_lshlrev_b32 v1, 4, v0')
    wg_map_16x16(a)
    a('s_lshl_b32 s22, s22, 2')
    a('s_add_u32 s22, s22, s3')
    a('s_mul_i32 s60, s22, %d' % (36 * 1024))
    a('s_mul_i32 s61, s23, %d' % (324 * 1024))
    a('s_mul_i32 s62, s3, 3072')
    a('s_add_u32 s61, s61, s62')
    a('s_add_u32 s61, s61, 0x%x' % WIN_F)
    a('s_mov_b32 s50, 0x%x' % WS_END)
    a('s_mov_b32 s51, 0x00020000')
    a('v_mov_b32 v2, v1')
    a('s_waitcnt lgkmcnt(0)')
    vm = VM()
    C2 = 184; T = 112; C1 = 96; BR = 64; NB = 8
    def A(ks, j): return ar((ks * 2 + j) * 4, 4)
    def emit(x):
        if isinstance(x, tuple):
            a(x[0]); vm.issue(x[1])
        else: a(x)
    def dmaB(u):
        out = []
        for i in range(3):
            pre = ['s_add_u32 m0, s62, %d' % ((12 * u % 144) * 1024), 's_add_u32 s63, s61, %d' % (12 * u * 1024)] if i == 0 else []
            out.append((pre, ('buffer_load_dwordx4 v1, s[48:51], s63 offen offset:%d lds' % (1024 * i), 'B%d' % u)))
        return out
    def ldA(ks):
        out = []
        for j in range(2):
            pre = ['s_add_u32 s64, s60, %d' % (ks * 2048)] if (j == 0 and ks % 2 == 0) else []
            out.append((pre, ('buffer_load_dwordx4 %s, v1, s[48:51], s64 offen offset:%d' % (A(ks, j), (ks % 2) * 2048 + j * 1024), 'A%d' % ks)))
        return out
    LOOK = NB - 1
    P1 = 324
    bars = list(range(14)) + [14, 18, 22, 25]
    def bar_cover(u):
        nxt = [b for b in bars if b > u]
        return list(range(u, nxt[0] if nxt else 27))
    def barpos(u): return max(0, 2 * (12 * u - LOOK + 1))
    def need_unit(u): return barpos(max(b for b in bars if b <= u))
    def war_ok(u):
        if u < 12: return 0
        b = min(b for b in bars if b >= u - 12 + 2)
        return barpos(b) + 1
    LEAD = opt.get('lead1', 64)
    ev = []
    for u in range(14): ev.append((need_unit(u), 0, u))
    for ks in range(18): ev.append((18 * ks, 1, ks))
    ev.sort()
    LQ = []
    for need, kind, n in ev:
        for pre, ld in (dmaB(n) if kind == 0 else ldA(n)):
            LQ.append((max(need - LEAD, war_ok(n) if kind == 0 else 0), pre, ld, 0))
    CB = opt.get('cB', 80); CS = opt.get('cS', 70)
    def addB(us):
        for u in us:
            for pre, ld in dmaB(u): LQ.append((war_ok(u), pre, ld, CB))
    for _ in range(opt.get('pro', 10)):
        e, pre, ld, c_ = LQ.pop(0)
        for x in pre: a(x)
        emit(ld)
    c = Cap()
    c('s_mul_i32 s70, s22, 144')
    c('s_mul_i32 s71, s23, 9')
    c('s_add_u32 s70, s70, s71')
    c('s_lshl_b32 s70, s70, 10')
    c('s_add_u32 s71, s70, 0x%x' % Z2_F)
    c('s_add_u32 s70, s70, 0x%x' % Z1_P)
    c('s_lshl_b32 s72, s22, 12')
    c('s_add_u32 s72, s72, 0x%x' % PSTAT)
    c('s_lshl_b32 s73, s23, 8')
    c('s_add_u32 s73, s73, s72')
    srd(c, 24, 4, S * D * 2)
    srd(c, 28, 6, S * D * 2)
    srd(c, 32, 8, D * 8)
    srd(c, 36, 10, D * S * 2)
    srd(c, 40, 12, S * S * 2)
    srd(c, 44, 14, FH * D * 2)
    c('s_mov_b32 s74, 0x11111111')
    c('s_mov_b32 s75, 0x11111111')
    for r in range(2):
        c('v_mov_b32 v%d, 0x%x' % (4 + r, f2u(K2C)))
        c('v_mov_b32 v%d, 0x%x' % (6 + r, f2u(K1C)))
        c('v_mov_b32 v%d, 1.0' % (12 + r))
    c('v_mov_b32 v11, 0x%x' % f2u(1.0 / FH))
    c('s_lshl_b32 s65, s3, 6')
    c('v_add_u32 v3, s65, v0')
    for x in kv_addr(3, 40, 's2'): c(x)
    c('v_lshrrev_b32 v10, 4, v0')
    c('v_bfe_u32 v54, v0, 2, 2')
    c('v_lshlrev_b32 v54, 8, v54')
    c('v_lshl_add_u32 v54, v10, 6, v54')
    c('v_and_b32 v8, 3, v0')
    c('v_lshl_add_u32 v54, v8, 4, v54')
    c('v_lshrrev_b32 v55, 2, v1')
    c('v_lshlrev_b32 v56, 7, v0')
    c('s_lshl_b32 s93, s3, 8')
    c('s_add_u32 s93, s93, s2')
    c('s_lshl_b32 s76, s93, 13')
    c('v_add_u32 v56, s76, v56')
    c('v_subrev_u32 v53, %d, v56' % (324 * 8192))
    c('s_mov_b32 s94, 200000')
    FQ = [(4, x) for x in c.l]
    side = opt.get('side', 7)
    PL = 48 + 16
    addB(range(14, 24))
    clk = {'t': 0.0, 'free': 0.0}
    pos = [0]
    def pump():
        if LQ and LQ[0][0] <= pos[0] and (LQ[0][3] == 0 or clk['t'] >= clk['free']):
            e, pre, ld, c_ = LQ.pop(0)
            for x in pre: a(x)
            emit(ld)
            clk['free'] = max(clk['free'], clk['t'] - 100) + c_
            return 1
        return 0
    def force(tag):
        while tag in [l[2][1] for l in LQ]:
            e, pre, ld, c_ = LQ.pop(0)
            assert e <= pos[0]
            print('forced', ld[1], 'at', pos[0], file=sys.stderr)
            for x in pre: a(x)
            emit(ld)
    state = {'seg': 0, 'nrd': 0}
    def rdB(n):
        u = n // 12
        if n % 12 == 0 and u in bars:
            for uu in bar_cover(u): force('B%d' % uu)
            vm.wait(a, 'B%d' % bar_cover(u)[-1])
            a('s_barrier')
        off = (n % 144) * 1024
        seg = off // 65536
        if seg != state['seg']:
            a('v_add_u32 v2, %d, v1' % (seg * 65536))
            state['seg'] = seg
        a('ds_read_b128 %s, v2 offset:%d' % (vr(BR + (n % NB) * 4, 4), off % 65536))
        state['nrd'] = n + 1
    def useB(n):
        a('s_waitcnt lgkmcnt(%d)' % (state['nrd'] - 1 - n))
        return vr(BR + (n % NB) * 4, 4)
    for n in range(LOOK): rdB(n)
    def fill(slots):
        clk['t'] += 17 if pos[0] > P1 else 20
        slots -= pump()
        ns = 0
        while FQ and FQ[0][0] <= pos[0] and slots > 0:
            x = FQ[0][1]
            if isinstance(x, tuple) and x[0] == 'WAIT':
                if x[1] in [l[2][1] for l in LQ]: break
                FQ.pop(0); vm.wait(a, x[1]); continue
            if isinstance(x, tuple) and x[0] == 'BLOCK':
                FQ.pop(0)
                for y in x[1]:
                    if callable(y): y()
                    else: emit(y)
                slots -= 2
                continue
            if isinstance(x, tuple):
                if clk['t'] < clk['free'] and pos[0] < 10000: break
                clk['free'] = max(clk['free'], clk['t'] - 100) + CS
            if cost(x) > slots and slots < 2: break
            FQ.pop(0); emit(x); slots -= cost(x)
            if cost(x) == 0:
                ns += 1
                if ns % 2 == 0: slots -= 1
    for ks in range(18):
        if ks == 1: stamp(a, 15, 1)
        force('A%d' % ks)
        vm.wait(a, 'A%d' % ks)
        for jt in range(9):
            n = ks * 9 + jt
            b = useB(n)
            for j in range(2):
                cc = vr(C2 + jt * 8 + j * 4, 4)
                a('v_mfma_f32_16x16x32_bf16 %s, %s, %s, %s' % (cc, A(ks, j), b, cc if ks else '0'))
                pos[0] += 1
                fill(2 if j == 0 else 1)
            if n + LOOK < 168: rdB(n + LOOK)
    assert not FQ
    stamp(a, 15, 2)
    def pr(r): return 'v[%d:%d]' % (r, r + 1)
    pairs = [(C2 + 8 * jt + 2 * i, T + 8 * jt + 2 * i, i, jt) for jt in range(9) for i in range(4)]
    G = []
    for x, t, i, jt in pairs: G.append('v_pk_mul_f32 %s, %s, %s' % (pr(t), pr(x), pr(x)))
    for x, t, i, jt in pairs: G.append('v_pk_fma_f32 %s, %s, v[4:5], v[6:7]' % (pr(t), pr(t)))
    for x, t, i, jt in pairs: G.append('v_pk_mul_f32 %s, %s, %s' % (pr(t), pr(x), pr(t)))
    for r in range(72): G.append('v_exp_f32 v%d, v%d' % (T + r, T + r))
    for x, t, i, jt in pairs: G.append('v_pk_add_f32 %s, %s, v[12:13]' % (pr(t), pr(t)))
    for r in range(72): G.append('v_rcp_f32 v%d, v%d' % (T + r, T + r))
    for x, t, i, jt in pairs: G.append('v_pk_mul_f32 %s, %s, %s' % (pr(x), pr(x), pr(t)))
    SU = T; SQ = T + 8
    for x, t, i, jt in pairs:
        if jt == 0:
            G.append('v_pk_mul_f32 %s, %s, %s' % (pr(SQ + 2 * i), pr(x), pr(x)))
        else:
            G.append('v_pk_add_f32 %s, %s, %s' % (pr(SU + 2 * i), pr(SU + 2 * i) if jt > 1 else pr(x - 8), pr(x)))
            G.append('v_pk_fma_f32 %s, %s, %s, %s' % (pr(SQ + 2 * i), pr(x), pr(x), pr(SQ + 2 * i)))
    kvpos = opt.get('kvpos', -1)
    if side & 1 and kvpos < 0:
        k0 = [n for n, l in enumerate(LQ) if l[2][1] == 'B%d' % (-kvpos + 17)]
        k0 = k0[0] if k0 else 0
        LQ[k0:k0] = [(0, [], x, opt.get('cK', 40)) for x in kv_loads(40, 16)]
    for x in G:
        a(x)
        clk['t'] += 4.4 * cost(x)
        pump()
    TT = T + 16; U = T + 24
    a('s_nop 0')
    for e in range(8): a('v_add_f32 v%d, v%d, v%d row_ror:8 bank_mask:0x3' % (TT + e, SU + e, SU + e))
    for e in range(8): a('v_add_f32 v%d, v%d, v%d row_ror:8 bank_mask:0xc' % (TT + e, SQ + e, SQ + e))
    for i in range(4): a('v_add_f32 v%d, v%d, v%d row_half_mirror bank_mask:0x5' % (U + i, TT + 2 * i, TT + 2 * i))
    for i in range(4): a('v_add_f32 v%d, v%d, v%d row_half_mirror bank_mask:0xa' % (U + i, TT + 2 * i + 1, TT + 2 * i + 1))
    for i in range(4): a('v_add_f32 v%d, v%d, v%d quad_perm:[1,0,3,2]' % (U + i, U + i, U + i))
    for i in range(4): a('v_add_f32 v%d, v%d, v%d quad_perm:[2,3,0,1]' % (U + i, U + i, U + i))
    a('s_mov_b64 exec, s[74:75]')
    emit(('buffer_store_dwordx4 %s, v55, s[48:51], s73 offen sc1' % vr(U, 4), 'ST'))
    a('s_mov_b64 exec, -1')
    stamp(a, 15, 3)
    rdB(168)
    addB(range(24, 27))
    W = T + 32; PL = T; SC = T + 16; BI = 48
    polls = [('buffer_load_dwordx4 %s, v54, s[48:51], s72 offen offset:%d sc1' % (vr(PL + 4 * i, 4), i * 1024), 'PL') for i in range(4)]
    pp = P1 + opt.get('pollpos', 70)
    for x in polls: LQ.append((pp, [], x, 20))
    tp = P1 + opt.get('tchpos', 80)
    if side & 1 and kvpos >= 0:
        for x in kv_loads(40, 16): LQ.append((P1 + kvpos, [], x, opt.get('cK', 40)))
    if side & 2: LQ.append((tp, [], ('buffer_load_dword v57, v56, s[40:43], 0 offen', 'TCH'), 300))
    if side & 4:
        LQ.append((tp, [], ('buffer_load_dword v58, v56, s[44:47], 0 offen', 'TCH'), 300))
        LQ.append((tp, [], ('buffer_load_dword v59, v53, s[36:39], 0 offen', 'TCH'), 300))
    kvf = [(0, ('WAIT', 'KV'))] + [(0, x) for x in kv_compute(16, W) + kv_store(3, 40, W, 's2')]
    if side & 1 and kvpos < 0: FQ += [(P1 + opt.get('kvc', 10), x[1]) for x in kvf]
    def check():
        vm.wait(a, 'PL')
        a('s_branch K1_chk')
        a.label('K1_poll')
        for x in polls: a(x[0])
        a('s_waitcnt vmcnt(0)')
        a.label('K1_chk')
        a('v_max3_u32 v8, v%d, v%d, v%d' % (PL, PL + 1, PL + 2))
        a('v_max3_u32 v9, v%d, v%d, v%d' % (PL + 3, PL + 4, PL + 5))
        for i in range(6, 14, 4):
            a('v_max3_u32 v8, v8, v%d, v%d' % (PL + i, PL + i + 1))
            a('v_max3_u32 v9, v9, v%d, v%d' % (PL + i + 2, PL + i + 3))
        a('v_max3_u32 v8, v8, v%d, v%d' % (PL + 14, PL + 15))
        a('v_max_u32 v8, v8, v9')
        a('v_cmp_eq_u32 vcc, -1, v8')
        a('s_sub_u32 s94, s94, 1')
        a('s_cmp_eq_u32 s94, 0')
        a('s_cbranch_scc1 K1_polldone')
        a('s_cbranch_vccnz K1_poll')
        a.label('K1_polldone')
        stamp(a, 15, 4)
    cp = P1 + opt.get('chkpos', 125)
    FQ.append((cp, ('WAIT', 'PL')))
    FQ.append((cp, ('BLOCK', [check])))
    c = Cap()
    for r in range(4): c('v_add_f32 v%d, v%d, v%d' % (PL + r, PL + r, PL + 4 + r))
    for r in range(4): c('v_add_f32 v%d, v%d, v%d' % (PL + 8 + r, PL + 8 + r, PL + 12 + r))
    for r in range(4): c('v_add_f32 v%d, v%d, v%d' % (PL + r, PL + r, PL + 8 + r))
    for sh in (4, 8):
        for r in range(4): c('v_add_f32 v%d, v%d, v%d row_ror:%d' % (PL + r, PL + r, PL + r, sh))
    M = PL + 4; Vv = PL + 8
    for r in range(4): c('v_mul_f32 v%d, v%d, v11 quad_perm:[0,1,0,1]' % (M + r, PL + r))
    for r in range(4): c('v_mul_f32 v%d, v%d, v11 quad_perm:[2,3,2,3]' % (Vv + r, PL + r))
    for r in range(4): c('v_fma_f32 v%d, -v%d, v%d, v%d' % (Vv + r, M + r, M + r, Vv + r))
    for r in range(4): c('v_max_f32 v%d, 0, v%d' % (Vv + r, Vv + r))
    def round2(r):
        c('v_cvt_pk_bf16_f32 v%d, v%d, v%d' % (r + 1, r, r + 1))
        c('v_lshlrev_b32 v%d, 16, v%d' % (r, r + 1))
        c('v_and_b32 v%d, 0xffff0000, v%d' % (r + 1, r + 1))
    round2(Vv); round2(Vv + 2)
    for r in range(4): c('v_add_f32 v%d, 0x%x, v%d' % (Vv + r, f2u(1e-5), Vv + r))
    round2(Vv); round2(Vv + 2)
    for r in range(4): c('v_sqrt_f32 v%d, v%d' % (Vv + r, Vv + r))
    round2(M); round2(M + 2)
    round2(Vv); round2(Vv + 2)
    for r in range(4): c('v_rcp_f32 v%d, v%d' % (Vv + r, Vv + r))
    c('s_nop 0')
    for r in range(4): c('v_mul_f32 v%d, -v%d, v%d' % (M + r, M + r, Vv + r))
    BI = T + 68 if False else 60
    SC = T + 12; BI = T + 20
    for e in range(8):
        p = e & 1
        c('v_mov_b32 v%d, v%d quad_perm:[%d,%d,%d,%d]' % (SC + e, Vv + (e >> 1), p, p, p, p))
    for e in range(8):
        p = e & 1
        c('v_mov_b32 v%d, v%d quad_perm:[%d,%d,%d,%d]' % (BI + e, M + (e >> 1), p, p, p, p))
    for jt in range(9):
        b = C2 + jt * 8
        for e in range(8): c('v_fma_f32 v%d, v%d, v%d, v%d' % (b + e, b + e, SC + e, BI + e))
        for i in range(4): c('v_cvt_pk_bf16_f32 v%d, v%d, v%d' % (b + i, b + 2 * i, b + 2 * i + 1))
        if jt in (4, 8): c('s_add_u32 s71, s71, 4096')
        c(('buffer_store_dwordx4 %s, v1, s[48:51], s71 offen offset:%d sc1' % (vr(b, 4), (jt % 4) * 1024), 'Z2'))
    FQ += [(0, x) for x in c.l]
    if side & 1 and kvpos >= 0: FQ += kvf
    pend = []
    for jt in range(9):
        cb_ = C1 + (jt & 1) * 8
        for ks in range(18):
            n = 162 + jt * 18 + ks
            b = useB(n)
            for j in range(2):
                cc = vr(cb_ + j * 4, 4)
                a('v_mfma_f32_16x16x32_bf16 %s, %s, %s, %s' % (cc, b, A(ks, j), cc if ks else '0'))
                pos[0] += 1
                if ks >= 4 and pend:
                    clk['t'] += 17
                    emit(pend.pop(0))
                    if pend and j == 0: emit(pend.pop(0))
                    if not pend: clk['free'] = max(clk['free'], clk['t'] - 100) + CS
                else:
                    fill(2 if j == 0 else opt.get('s2', 1))
            if n + LOOK < 324: rdB(n + LOOK)
        pend = ['v_cvt_pk_bf16_f32 v%d, v%d, v%d' % (cb_ + i, cb_ + 2 * i, cb_ + 2 * i + 1) for i in range(4)]
        if jt in (4, 8): pend.append('s_add_u32 s70, s70, 4096')
        pend.append(('buffer_store_dwordx4 %s, v1, s[48:51], s70 offen offset:%d sc1' % (vr(cb_, 4), (jt % 4) * 1024), 'Z1'))
    print('K1 leftover loads', len(LQ), 'fillers', len(FQ), file=sys.stderr)
    stamp(a, 15, 5)
    pos[0] = 10000
    a('s_nop 7')
    for x in pend: emit(x)
    while FQ or LQ: fill(2)
    stamp(a, 15, 6)
    stamp_flush(a, 15, 1, 4, 7)
    a.label('K1_end')
    a('s_endpgm')
    return kernel_desc(name, 512, 256), '; @launch kernel=k1_kernel grid=(256,1,1) block=(256,1,1) lds=%d' % 147456

def wout_store_addr2(c):
    c('s_lshr_b32 s71, s63, 1')
    c('s_mul_i32 s72, s71, 18')
    c('s_sub_u32 s72, s61, s72')
    c('s_lshr_b32 s73, s72, 1')
    c('s_mul_i32 s73, s73, 9')
    c('s_mul_i32 s71, s71, 81')
    c('s_add_u32 s71, s71, s73')
    c('s_lshl_b32 s71, s71, 10')
    c('s_add_u32 s71, s71, 0x%x' % WOUT_F)
    c('s_and_b32 s72, s72, 1')
    c('s_lshl_b32 s73, s72, 12')
    c('s_lshl_b32 s74, s72, 7')
    c('s_add_u32 s74, s74, 8192')
    c('s_lshl_b32 s72, s62, 4')
    c('v_bfe_u32 v38, v0, 2, 2')
    c('v_lshlrev_b32 v37, 9, v10')
    c('v_lshl_add_u32 v37, v38, 7, v37')
    c('v_add_u32 v38, s72, v38')
    c('v_and_b32 v39, 3, v0')
    c('v_lshl_add_u32 v37, v39, 3, v37')
    c('v_add_u32 v37, s68, v37')
    c('v_lshlrev_b32 v39, 4, v39')
    c('v_lshl_add_u32 v39, v10, 8, v39')
    c('v_add_u32 v39, s69, v39')
    c('s_mov_b32 s75, %d' % (4 * 81 * 1024))
    for nt in range(4):
        c('v_add_u32 v8, %d, v38' % (4 * nt))
        c('v_mul_u32_u24 v9, 57, v8')
        c('v_lshrrev_b32 v9, 10, v9')
        c('v_mul_u32_u24 v11, 18, v9')
        c('v_sub_u32 v11, v8, v11')
        c('v_mul_lo_u32 v9, v9, s75')
        c('v_lshrrev_b32 v8, 3, v11')
        c('v_lshlrev_b32 v8, 11, v8')
        c('v_and_b32 v14, 1, v11')
        c('v_lshl_add_u32 v8, v14, 10, v8')
        c('v_lshl_add_u32 v14, v14, 6, s74')
        c('v_cmp_le_u32 vcc, 16, v11')
        c('v_bfe_u32 v11, v11, 1, 2')
        c('v_lshl_add_u32 v8, v11, 6, v8')
        c('v_add_u32 v8, s73, v8')
        c('v_cndmask_b32 v8, v8, v14, vcc')
        c('v_add3_u32 v%d, v8, v9, v39' % (32 + nt))
    c('v_lshrrev_b32 v36, 3, v0')
    c('v_mul_u32_u24 v36, 1152, v36')
    c('v_and_b32 v8, 7, v0')
    c('v_lshl_add_u32 v36, v8, 4, v36')
    c('s_sub_u32 s72, s60, 700')
    c('s_lshl_b32 s72, s72, 13')
    c('v_lshlrev_b32 v38, 7, v0')
    c('v_add_u32 v38, s72, v38')

def wout_store_addr(a, vd, vt, vq):
    a('s_lshr_b32 s92, s86, 1')
    a('s_mul_i32 s95, s92, 18')
    a('s_sub_u32 s95, s82, s95')
    a('s_lshr_b32 s96, s95, 1')
    a('s_mul_i32 s96, s96, 9')
    a('s_mul_i32 s92, s92, 81')
    a('s_add_u32 s92, s92, s96')
    a('s_lshl_b32 s92, s92, 10')
    a('s_add_u32 s92, s92, 0x%x' % WOUT_F)
    a('s_cmp_ge_u32 s81, 648')
    a('s_cselect_b32 s92, 0x%x, s92' % WS_END)
    a('s_and_b32 s95, s95, 1')
    a('s_lshl_b32 s96, s95, 12')
    a('s_lshl_b32 s97, s95, 7')
    a('s_add_u32 s97, s97, 8192')
    a('s_lshl_b32 s95, s83, 4')
    a('v_bfe_u32 v%d, v0, 2, 2' % vt)
    a('v_add_u32 v%d, s95, v%d' % (vt, vt))
    a('v_and_b32 v%d, 3, v0' % (vt + 1))
    a('v_lshlrev_b32 v%d, 4, v%d' % (vt + 1, vt + 1))
    a('v_lshl_add_u32 v%d, v%d, 8, v%d' % (vt + 1, vq, vt + 1))
    a('s_mov_b32 s95, %d' % (4 * 81 * 1024))
    for nt in range(4):
        a('v_add_u32 v11, %d, v%d' % (4 * nt, vt))
        a('v_mul_u32_u24 v12, 57, v11')
        a('v_lshrrev_b32 v12, 10, v12')
        a('v_mul_u32_u24 v13, 18, v12')
        a('v_sub_u32 v13, v11, v13')
        a('v_mul_lo_u32 v12, v12, s95')
        a('v_lshrrev_b32 v11, 3, v13')
        a('v_lshlrev_b32 v11, 11, v11')
        a('v_and_b32 v14, 1, v13')
        a('v_lshl_add_u32 v11, v14, 10, v11')
        a('v_lshl_add_u32 v14, v14, 6, s97')
        a('v_cmp_le_u32 vcc, 16, v13')
        a('v_bfe_u32 v13, v13, 1, 2')
        a('v_lshl_add_u32 v11, v13, 6, v11')
        a('v_add_u32 v11, s96, v11')
        a('v_cndmask_b32 v11, v11, v14, vcc')
        a('v_add3_u32 v%d, v11, v12, v%d' % (vd + nt, vt + 1))

K2_LDS = 4 * 27 * 1024
def gen_k2(a, opt={}):
    name = 'k2_kernel'
    kernel_begin(a, name)
    a('s_cmp_ge_u32 s2, 256')
    a('s_cbranch_scc1 K2_end')
    a('s_load_dwordx2 s[18:19], s[0:1], 104')
    a('s_load_dwordx2 s[4:5], s[0:1], 72')
    stamp(a, 15, 0)
    wave_lane(a, 3)
    a('v_lshlrev_b32 v1, 4, v0')
    a('s_and_b32 s20, s2, 7')
    a('s_lshr_b32 s21, s2, 3')
    a('s_and_b32 s22, s20, 1')
    a('s_lshl_b32 s22, s22, 3')
    a('s_and_b32 s23, s21, 7')
    a('s_add_u32 s22, s22, s23')
    a('s_lshr_b32 s23, s20, 1')
    a('s_lshl_b32 s23, s23, 2')
    a('s_lshr_b32 s24, s21, 3')
    a('s_add_u32 s23, s23, s24')
    a('s_lshl_b32 s25, s22, 19')
    a('s_lshl_b32 s26, s3, 17')
    a('s_add_u32 s25, s25, s26')
    a('s_add_u32 s25, s25, 0x%x' % WSP_F)
    a('s_mul_i32 s26, s3, %d' % (16 * 144 * 1024))
    a('s_mul_i32 s27, s23, 9216')
    a('s_add_u32 s26, s26, s27')
    a('s_add_u32 s26, s26, 0x%x' % Z2_F)
    for p in range(4):
        a('s_add_u32 s28, s3, %d' % p)
        a('s_and_b32 s28, s28, 3')
        a('s_lshl_b32 s28, s28, 11')
        a('v_add_u32 v%d, s28, v1' % (4 + p))
    a('v_add_u32 v2, 4096, v1')
    a('v_add_u32 v3, 8192, v1')
    a('s_lshl_b32 s29, s22, 2')
    a('s_add_u32 s29, s29, s3')
    rot = opt.get('rot', 0)
    a('s_and_b32 s40, s21, 7')
    a('s_lshr_b32 s41, s21, 3')
    a('s_add_u32 s40, s40, s41')
    a('s_and_b32 s40, s40, %d' % rot)
    a('s_mul_i32 s41, s3, %d' % opt.get('wph', 0))
    a('v_bfe_u32 v10, v0, 2, 2')
    a('v_lshlrev_b32 v10, 3, v10')
    a('v_and_b32 v11, 3, v0')
    a('v_add_u32 v10, v10, v11')
    a('v_lshlrev_b32 v10, 1, v10')
    a('s_lshl_b32 s33, s29, 6')
    a('s_waitcnt lgkmcnt(0)')
    srd(a, 48, 18, WS_END, off=WS_BASE)
    srd(a, 52, 4, S * 2)
    vm = VM()
    def emit(x):
        if isinstance(x, tuple):
            a(x[0]); vm.issue(x[1])
        else: a(x)
    NO = 40
    GEL = 72; WB = 108; ZB = 140; XB = 248
    ownV = {}
    def acc(tt, ft, late=False):
        if tt < 2:
            return vr(ownV[(tt, ft)], 4) if late else ar((tt * 9 + ft) * 4, 4)
        return vr(NO + ((tt - 2) * 9 + ft) * 4, 4)
    def Wbuf(k, tt):
        if k < 15: return WB + 4 * tt
        if tt in (2, 3): return XB + 4 * (tt - 2)
        return ZB + 36 * (13 % 3) + 4 * {4: 0, 5: 1, 6: 2, 7: 3, 0: 4, 1: 5}[tt]
    def Zbuf(k, ft): return ZB + 36 * (k % 3) + 4 * ft
    def setoff(kind, k):
        l = ['s_add_u32 s42, s41, %d' % k, 's_and_b32 s42, s42, 15', 's_xor_b32 s42, s42, s40']
        if kind == 'W':
            l += ['s_lshl_b32 s42, s42, 13', 's_add_u32 s%d, s42, s25' % (44 + (k & 1))]
        else:
            l += ['s_mul_i32 s42, s42, %d' % (144 * 1024), 's_add_u32 s46, s42, s26']
        return l
    def ldW(k, tt): return ('buffer_load_dwordx4 %s, v%d, s[48:51], s%d offen offset:%d' % (ar(Wbuf(k, tt), 4), 4 + tt // 2, 44 + (k & 1), (tt & 1) * 1024), 'W%d_%d' % (k, tt))
    def ldZ(k, ft): return ('buffer_load_dwordx4 %s, v%d, s[48:51], s46 offen offset:%d' % (ar(Zbuf(k, ft), 4), 1 + ft // 4, (ft % 4) * 1024), 'Z%d' % k)
    groups = []
    for k in range(14):
        order = [2, 3, 4, 5, 6, 7]
        ins_ = max(0, 6 - k)
        order[ins_:ins_] = [0, 1]
        groups += [(k, tt) for tt in order]
    groups += [(14, 0), (14, 1)]
    for tt in range(2, 8): groups += [(14, tt), (15, tt)]
    groups += [(15, 0), (15, 1)]
    gend = {g: 9 * (i + 1) for i, g in enumerate(groups)}
    stepend = {k: max(gend[(k, tt)] for tt in range(8)) for k in range(16)}
    emit(('buffer_load_ushort v8, v10, s[52:55], s33 offen', 'b'))
    emit(('buffer_load_ushort v9, v10, s[52:55], s33 offen offset:8', 'b'))
    for x in setoff('Z', 0) + setoff('W', 0): a(x)
    emit(ldW(0, 2))
    for ft in range(9): emit(ldZ(0, ft))
    for tt in [3, 4, 5, 6, 7, 0, 1]: emit(ldW(0, tt))
    LQ = []
    def addZ(k, early):
        for ft in range(9): LQ.append((early, setoff('Z', k) if ft == 0 else [], ldZ(k, ft)))
    addZ(1, 0)
    z1pos = {}
    for k in range(14):
        zs = [(stepend[k - 1] if k else 0, setoff('Z', k + 2) if ft == 0 else [], ldZ(k + 2, ft)) for ft in range(9)]
        tts = [g[1] for g in groups if g[0] == k]
        ws_ = [(gend[(k, tt)], setoff('W', k + 1) if n == 0 else [], ldW(k + 1, tt)) for n, tt in enumerate(tts)]
        LQ.append(zs.pop(0))
        if 1 <= k <= 9:
            u = k - 1
            LQ.append((stepend[k - 1], [], ('buffer_load_dwordx4 %s, v%d, s[48:51], s32 offen offset:%d' % (vr(16 + 4 * (u & 1), 4), 1 + u // 4, (u % 4) * 1024), 'U%d' % u)))
        for n in range(8):
            LQ.append(zs.pop(0)); LQ.append(ws_.pop(0))
            if k == 13 and n == 3:
                LQ.append((0, setoff('W', 15), ldW(15, 2))); LQ.append((0, [], ldW(15, 3)))
    for tt in [4, 5, 6, 7, 0, 1]: LQ.append((stepend[13], [], ldW(15, tt)))
    a('s_mul_i32 s32, s29, %d' % (144 * 1024))
    a('s_add_u32 s32, s32, s27')
    a('s_add_u32 s32, s32, 0x%x' % Z1_P)
    a('v_mov_b32 v14, 0x%x' % f2u(K2C))
    a('s_lshr_b32 s36, s29, 1')
    a('s_mul_i32 s36, s36, 72')
    a('s_lshr_b32 s37, s23, 1')
    a('s_mul_i32 s37, s37, 9')
    a('s_add_u32 s36, s36, s37')
    a('s_lshl_b32 s36, s36, 12')
    a('s_and_b32 s37, s29, 1')
    a('s_lshl_b32 s37, s37, 11')
    a('s_add_u32 s36, s36, s37')
    a('s_add_u32 s36, s36, 0x%x' % H_F)
    a('s_and_b32 s37, s23, 1')
    a('s_lshl_b32 s38, s37, 10')
    a('s_add_u32 s38, s38, s36')
    a('s_add_u32 s38, s38, %d' % (8 * 4096))
    a('s_lshl_b32 s37, s37, 14')
    a('s_add_u32 s36, s36, s37')
    for p in range(1, 4):
        a('s_add_u32 s34, s3, %d' % p)
        a('s_and_b32 s34, s34, 3')
        a('s_mul_i32 s34, s34, %d' % (27 * 1024))
        a('s_add_u32 s34, s34, %d' % ((p - 1) * 9 * 1024))
        a('v_add_u32 v%d, s34, v1' % (10 + p))
    a('s_mul_i32 s35, s3, %d' % (27 * 1024))
    vm.wait(a, 'b')
    a('v_lshlrev_b32 v8, 16, v8')
    a('v_lshlrev_b32 v9, 16, v9')
    for j in range(2):
        for r in range(4): a('v_accvgpr_write_b32 a%d, v%d' % (GEL + 4 * j + r, 8 + j))
    a('v_add_u32 v10, s35, v1')
    FQ = []
    for u in range(9 if not opt.get('nogelu') else 0):
        e0 = stepend[u + 1]
        FQ.append((e0, ('WAIT', 'U%d' % u)))
        z = [24 + i for i in range(8)]
        src = 16 + 4 * (u & 1)
        for i in range(4):
            FQ.append((e0, 'v_lshlrev_b32 v%d, 16, v%d' % (z[2 * i], src + i)))
            FQ.append((e0, 'v_and_b32 v%d, 0xffff0000, v%d' % (z[2 * i + 1], src + i)))
        for x in gelu_ops(z, [32 + i for i in range(8)], 14): FQ.append((e0, x))
        for i in range(4): FQ.append((e0, 'v_cvt_pk_bf16_f32 v%d, v%d, v%d' % (32 + i, z[2 * i], z[2 * i + 1])))
        for i in range(4): FQ.append((e0, 'v_accvgpr_write_b32 a%d, v%d' % (GEL + 4 * u + i, 32 + i)))
    e0 = stepend[12]
    FQ += [(e0, x) for x in [
        'v_bfe_u32 v24, v0, 2, 2', 'v_lshrrev_b32 v25, 4, v0', 'v_cmp_eq_u32 vcc, v24, v25', 'v_and_b32 v24, 1, v0',
        'v_lshlrev_b32 v24, 4, v24', 'v_mov_b32 v25, 0x3f80', 'v_lshlrev_b32 v24, v24, v25', 'v_cndmask_b32 v24, 0, v24, vcc',
        'v_and_b32 v25, 2, v0', 'v_cmp_eq_u32 vcc, 0, v25', 'v_mov_b32 v16, 0', 'v_mov_b32 v17, 0', 'v_mov_b32 v20, 0', 'v_mov_b32 v21, 0',
        'v_cndmask_b32 v18, 0, v24, vcc', 'v_cndmask_b32 v19, v24, v21, vcc']]
    freeY = []; Xregs = []
    own_list = [(j, ft) for j in range(2) for ft in range(9)]
    def base(tt, ft): return NO + ((tt - 2) * 9 + ft) * 4
    def packwr(X, Y, p, slot, e):
        for r in range(2): FQ.append((e, 'v_cvt_pk_bf16_f32 v%d, v%d, v%d' % (X + r, X + 2 * r, X + 2 * r + 1)))
        for r in range(2): FQ.append((e, 'v_cvt_pk_bf16_f32 v%d, v%d, v%d' % (X + 2 + r, Y + 2 * r, Y + 2 * r + 1)))
        FQ.append((e, 'ds_write_b128 v%d, %s offset:%d' % (10 + p, vr(X, 4), slot * 1024)))
        Xregs.append(X)
        if own_list:
            o = own_list.pop(0); ownV[o] = Y
            for r in range(4): FQ.append((e, 'v_accvgpr_read_b32 v%d, a%d' % (Y + r, (o[0] * 9 + o[1]) * 4 + r)))
        else:
            freeY.append(Y)
    for tt in range(2, 8):
        p = tt // 2; j = tt & 1
        g0 = gend[(15, tt)] - 9
        for i in range(4):
            packwr(base(tt, 2 * i), base(tt, 2 * i + 1), p, 2 * i + j, g0 + 2 * i + 2 + 7)
        if j == 1:
            packwr(base(tt - 1, 8), base(tt, 8), p, 8, g0 + 9 + 7)
    pos = 0; credit = 0.0
    lrate = opt.get('lrate', 0.27)
    for (k, tt) in groups:
        if pos == 72: stamp(a, 15, 1)
        if pos == 72 * 14: stamp(a, 15, 2)
        late = (k == 15 and tt < 2)
        if late:
            while any('accvgpr_read' in (x[1] if isinstance(x[1], str) else '') for x in FQ):
                emit(FQ.pop(0)[1])
        vm.wait(a, 'Z%d' % k)
        assert ('W%d_%d' % (k, tt)) not in [l[2][1] for l in LQ], (k, tt)
        assert ('Z%d' % k) not in [l[2][1] for l in LQ], (k, tt)
        vm.wait(a, 'W%d_%d' % (k, tt))
        for ft in range(9):
            c = acc(tt, ft, late)
            cin = c if k else ('0' if tt >= 2 else ar(GEL + 4 * tt, 4))
            a('v_mfma_f32_16x16x32_bf16 %s, %s, %s, %s' % (c, ar(Zbuf(k, ft), 4), ar(Wbuf(k, tt), 4), cin))
            pos += 1
            slots = 2 if k >= 13 else opt.get('slots', 2)
            credit = min(credit + lrate * (2.0 if pos < 40 else 1.0), 2.0)
            if LQ and credit >= 1.0 and LQ[0][0] <= pos:
                e, pre, ld = LQ.pop(0)
                for x in pre: a(x)
                emit(ld); credit -= 1.0; slots -= 1
            while FQ and FQ[0][0] <= pos and slots > 0:
                x = FQ[0][1]
                if isinstance(x, tuple) and x[0] == 'WAIT':
                    FQ.pop(0); vm.wait(a, x[1]); continue
                if cost(x) > slots and slots < (2 if k >= 13 else opt.get('slots', 2)): break
                FQ.pop(0); emit(x); slots -= cost(x)
    assert not LQ
    if FQ: a('s_nop 3')
    for x in FQ: emit(x[1])
    stamp(a, 15, 3)
    a('s_waitcnt lgkmcnt(0)')
    a('s_barrier')
    stamp(a, 15, 4)
    rd = []
    slots_ = [0, 1, 2, 3, 4, 5, 6, 7, 8]
    n = 0
    R = {}
    for sl in slots_:
        for p in range(3):
            R[(sl, p)] = Xregs[n]
            rd.append('ds_read_b128 %s, v10 offset:%d' % (vr(Xregs[n], 4), (p * 9 + sl) * 1024)); n += 1
    def tiles(sl):
        if sl < 8: return (sl & 1, 2 * (sl >> 1)), (sl & 1, 2 * (sl >> 1) + 1)
        return (0, 8), (1, 8)
    for x in rd[:12]: a(x)
    nissued = 12
    G = [freeY[0], freeY[1], freeY[2], freeY[3], freeY[4], freeY[5]]
    def unpack(sl):
        l = []
        tX, tY = tiles(sl)
        for n_, (j, ft) in enumerate((tX, tY)):
            g = G[(2 * sl + n_) % 6]
            for r in range(2): l.append('v_accvgpr_read_b32 v%d, a%d' % (g + 2 * r + 1, GEL + 4 * ft + 2 * j + r))
            for r in range(2):
                l.append('v_lshlrev_b32 v%d, 16, v%d' % (g + 2 * r, g + 2 * r + 1))
                l.append('v_and_b32 v%d, 0xffff0000, v%d' % (g + 2 * r + 1, g + 2 * r + 1))
        return l
    def finish(sl):
        l = []
        tX, tY = tiles(sl)
        o = 24 + 4 * (sl % 4)
        for n_, t in enumerate((tX, tY)):
            g = G[(2 * sl + n_) % 6]; c = ownV[t]
            for r in range(4): l.append('v_mul_f32 v%d, v%d, v%d' % (c + r, c + r, g + r))
        for n_, t in enumerate((tX, tY)):
            c = ownV[t]
            for r in range(2): l.append('v_cvt_pk_bf16_f32 v%d, v%d, v%d' % (o + 2 * n_ + r, c + 2 * r, c + 2 * r + 1))
        if sl < 8:
            l.append('buffer_store_dwordx4 %s, v1, s[48:51], s36 offen offset:%d sc1' % (vr(o, 4), (sl & 1) * 1024))
            if sl & 1: l.append('s_add_u32 s36, s36, 4096')
        else:
            l.append('buffer_store_dwordx4 %s, v1, s[48:51], s38 offen sc1' % vr(o, 4))
        return l
    for x in unpack(0) + unpack(1): a(x)
    for sl in slots_:
        fill = []
        if sl >= 1: fill += ['s_nop 0'] * 0
        fl = (unpack(sl + 1) if 1 <= sl < 8 else [])
        fin = finish(sl - 1) if sl >= 1 else []
        tX, tY = tiles(sl)
        cnt = 0
        for p in range(3):
            a('s_waitcnt lgkmcnt(%d)' % (nissued - (3 * sl + p) - 1))
            for (t, Sreg) in ((tX, 18), (tY, 16)):
                c = vr(ownV[t], 4)
                a('v_mfma_f32_16x16x32_bf16 %s, %s, %s, %s' % (c, vr(Sreg, 4), vr(R[(sl, p)], 4), c))
                cnt += 1
                for _ in range(4):
                    if fl: a(fl.pop(0))
                    elif cnt >= 3 and fin: a(fin.pop(0))
            if nissued < 27:
                a(rd[nissued]); nissued += 1
        for x in fl + fin: a(x)
    a('s_nop 7')
    for x in finish(8): a(x)
    stamp(a, 15, 5)
    stamp_flush(a, 15, 2, 14, 6)
    a.label('K2_end')
    a('s_endpgm')
    return kernel_desc(name, 512, 256), '; @launch kernel=k2_kernel grid=(256,1,1) block=(256,1,1) lds=%d' % K2_LDS

def pr(r): return 'v[%d:%d]' % (r, r + 1)
def gelu_pure(X, T, n):
    P = [(X + 2 * i, T + 2 * i) for i in range(n // 2)]
    G = []
    for x, t in P: G.append('v_pk_mul_f32 %s, %s, %s' % (pr(t), pr(x), pr(x)))
    for x, t in P: G.append('v_pk_fma_f32 %s, %s, v[4:5], v[6:7]' % (pr(t), pr(t)))
    for x, t in P: G.append('v_pk_mul_f32 %s, %s, %s' % (pr(t), pr(x), pr(t)))
    for r in range(n): G.append('v_exp_f32 v%d, v%d' % (T + r, T + r))
    for x, t in P: G.append('v_pk_add_f32 %s, %s, v[12:13]' % (pr(t), pr(t)))
    for r in range(n): G.append('v_rcp_f32 v%d, v%d' % (T + r, T + r))
    for x, t in P: G.append('v_pk_mul_f32 %s, %s, %s' % (pr(x), pr(x), pr(t)))
    return G

class Sched:
    def __init__(self, a):
        self.a = a; self.vm = VM(); self.LQ = []; self.FQ = []; self.t = 0.0; self.free = 0.0; self.pos = 0; self.CS = 70; self.BQ = []
    def emit(self, x):
        if callable(x): x()
        elif isinstance(x, tuple):
            self.a(x[0]); self.vm.issue(x[1])
        else: self.a(x)
    def pending(self, tag): return tag in [l[2][1] for l in self.LQ]
    def pump(self):
        LQ = self.LQ
        if LQ and LQ[0][0] <= self.pos and (LQ[0][3] == 0 or self.t >= self.free):
            e, pre, ld, c_ = LQ.pop(0)
            for x in pre: self.a(x)
            self.emit(ld)
            self.free = max(self.free, self.t - 100) + c_
            return 1
        return 0
    def force(self, tag):
        while self.pending(tag):
            e, pre, ld, c_ = self.LQ.pop(0)
            assert e <= self.pos, (tag, e, self.pos, ld)
            print('forced', ld[1], 'at', self.pos, file=sys.stderr)
            for x in pre: self.a(x)
            self.emit(ld)
    def wait(self, tag):
        self.force(tag); self.vm.wait(self.a, tag)
    def fill(self, slots, dt=17, flush=False):
        self.t += dt
        slots -= self.pump()
        FQ = self.FQ; ns = 0
        while FQ and (FQ[0][0] <= self.pos or flush) and slots > 0:
            x = FQ[0][1]
            if isinstance(x, tuple) and x[0] == 'WAIT':
                if self.pending(x[1]): break
                FQ.pop(0); self.vm.wait(self.a, x[1]); continue
            if isinstance(x, tuple) and x[0] == 'BLOCK':
                FQ.pop(0)
                for y in x[1]: self.emit(y)
                slots -= 2
                continue
            if isinstance(x, tuple):
                if self.t < self.free and not flush: break
                self.free = max(self.free, self.t - 100) + self.CS
            if cost(x) > slots and slots < 2: break
            FQ.pop(0); self.emit(x); slots -= cost(x)
            if cost(x) == 0:
                ns += 1
                if ns % 2 == 0: slots -= 1
        self.back(slots)
    def back(self, slots):
        BQ = self.BQ
        while BQ and BQ[0][0] <= self.pos and slots > 0:
            x = BQ.pop(0)[1]
            if isinstance(x, tuple) and x[0] == 'WAIT': self.vm.wait(self.a, x[1])
            else:
                self.emit(x); slots -= 1
            if not BQ: self.bqend = self.pos
    def pure(self, l):
        for x in l:
            self.emit(x)
            if isinstance(x, str):
                self.t += 4.4 * max(cost(x), 0.5)
                if x.startswith('v_') and 'vcc' not in x: self.pump()

def gen_kf(a, opt={}):
    name = 'k1_kernel'
    kernel_begin(a, name)
    a('s_cmp_ge_u32 s2, 256')
    a('s_cbranch_scc1 KF_end')
    a('s_load_dwordx2 s[48:49], s[0:1], 104')
    a('s_load_dwordx8 s[4:11], s[0:1], 8')
    a('s_load_dwordx4 s[12:15], s[0:1], 64')
    a('s_load_dwordx2 s[16:17], s[0:1], 80')
    stamp(a, 15, 0)
    wave_lane(a, 3)
    a('v_lshlrev_b32 v1, 4, v0')
    wg_map_16x16(a)
    a('s_mov_b32 s19, s22')
    a('s_lshl_b32 s22, s22, 2')
    a('s_add_u32 s22, s22, s3')
    a('s_mul_i32 s60, s22, %d' % (36 * 1024))
    a('s_mul_i32 s61, s23, %d' % (324 * 1024))
    a('s_mul_i32 s62, s3, 3072')
    a('s_add_u32 s61, s61, s62')
    a('s_add_u32 s61, s61, 0x%x' % WIN_F)
    a('s_mov_b32 s50, 0x%x' % WS_END)
    a('s_mov_b32 s51, 0x00020000')
    a('v_add_u32 v2, %d, v1' % 131072)
    a('s_waitcnt lgkmcnt(0)')
    if WS_BASE:
        a('s_add_u32 s48, s48, 0x%x' % WS_BASE)
        a('s_addc_u32 s49, s49, 0')
    sc = Sched(a); vm = sc.vm; LQ = sc.LQ; FQ = sc.FQ
    C2 = 184; T = 112; BR = 64; NB = 8
    def A(ks, j): return ar((ks * 2 + j) * 4, 4)
    def slotB(u): return ((u - 1) % 13) * 12288
    def dmaB(u):
        out = []
        for i in range(3):
            pre = ['s_add_u32 m0, s62, %d' % slotB(u), 's_add_u32 s63, s61, %d' % (12 * u * 1024)] if i == 0 else []
            out.append((pre, ('buffer_load_dwordx4 v1, s[48:51], s63 offen offset:%d lds' % (1024 * i), 'B%d' % u)))
        return out
    def ldA(ks):
        out = []
        for j in range(2):
            pre = ['s_add_u32 s64, s60, %d' % (ks * 2048)] if (j == 0 and ks % 2 == 0) else []
            out.append((pre, ('buffer_load_dwordx4 %s, v1, s[48:51], s64 offen offset:%d' % (A(ks, j), (ks % 2) * 2048 + j * 1024), 'A%d' % ks)))
        return out
    LOOK = NB - 1
    P1 = 324
    bars = list(range(14)) + [14, 17, 19, 21, 23, 25]
    def bar_cover(u):
        if u == 25: return [25, 26]
        nxt = [b for b in bars if b > u]
        return list(range(u, nxt[0]))
    def barpos(u): return max(0, 2 * (12 * u - LOOK + 1))
    def war_ok(u):
        if u < 13: return 0
        if u >= 25: return P1 + 1
        return barpos(u - 13 + 2) + 1
    LEAD = opt.get('lead1', 64)
    ev = [(barpos(u), 0, u) for u in range(14)] + [(18 * ks, 1, ks) for ks in range(18)]
    ev.sort()
    for need, kind, n in ev:
        for pre, ld in (dmaB(n) if kind == 0 else ldA(n)):
            LQ.append((max(need - LEAD, war_ok(n) if kind == 0 else 0), pre, ld, 0))
    CB = opt.get('cB', 80)
    for _ in range(opt.get('pro', 10)):
        e, pre, ld, c_ = LQ.pop(0)
        for x in pre: a(x)
        sc.emit(ld)
    c = Cap()
    c('s_mul_i32 s71, s22, 144')
    c('s_mul_i32 s70, s23, 9')
    c('s_add_u32 s71, s71, s70')
    c('s_lshl_b32 s71, s71, 10')
    c('s_add_u32 s71, s71, 0x%x' % Z2_F)
    c('s_lshl_b32 s72, s22, 12')
    c('s_add_u32 s72, s72, 0x%x' % PSTAT)
    c('s_lshl_b32 s73, s23, 8')
    c('s_add_u32 s76, s73, 0x%x' % ZFLAG)
    c('s_add_u32 s73, s73, s72')
    c('s_lshl_b32 s77, s22, 2')
    c('s_add_u32 s77, s77, s76')
    c('s_lshl_b32 s78, s3, 6')
    c('s_add_u32 s76, s76, s78')
    srd(c, 24, 4, S * D * 2)
    srd(c, 28, 6, S * D * 2)
    srd(c, 32, 8, D * 8)
    srd(c, 36, 10, D * S * 2)
    srd(c, 40, 12, S * S * 2)
    srd(c, 44, 16, FH * D * 2)
    srd(c, 52, 14, S * 2)
    c('s_mov_b32 s74, 0x11111111')
    c('s_mov_b32 s75, 0x11111111')
    for r in range(2):
        c('v_mov_b32 v%d, 0x%x' % (4 + r, f2u(K2C)))
        c('v_mov_b32 v%d, 0x%x' % (6 + r, f2u(K1C)))
        c('v_mov_b32 v%d, 1.0' % (12 + r))
    c('v_mov_b32 v11, 0x%x' % f2u(1.0 / FH))
    c('v_add_u32 v3, s78, v0')
    for x in kv_addr(3, 40, 's2'): c(x)
    c('v_lshrrev_b32 v10, 4, v0')
    c('v_bfe_u32 v9, v0, 2, 2')
    c('v_lshlrev_b32 v54, 8, v9')
    c('v_lshl_add_u32 v54, v10, 6, v54')
    c('v_and_b32 v8, 3, v0')
    c('v_lshl_add_u32 v54, v8, 4, v54')
    c('v_lshrrev_b32 v55, 2, v1')
    c('v_lshl_add_u32 v52, v9, 3, v8')
    c('v_lshlrev_b32 v52, 1, v52')
    c('s_lshl_b32 s79, s22, 6')
    c('s_mov_b32 s94, 200000')
    c('v_lshrrev_b32 v8, 3, v0')
    c('v_lshrrev_b32 v9, 2, v8')
    c('v_lshlrev_b32 v9, 3, v9')
    c('v_and_b32 v8, 3, v8')
    c('v_add_u32 v8, v8, v9')
    c('v_lshlrev_b32 v8, 12, v8')
    c('v_and_b32 v9, 7, v0')
    c('v_xor_b32 v9, v9, v10')
    c('v_lshl_add_u32 v46, v9, 4, v8')
    c('v_xor_b32 v47, 64, v46')
    c('v_add_u32 v47, %d, v47' % (16 * 4096 - 1024))
    c('v_add_u32 v48, %d, v46' % (4 * 4096 - 2048))
    c('v_add_u32 v49, %d, v47' % (4 * 4096 - 2048))
    c('s_lshl_b32 s80, s19, 19')
    c('s_lshl_b32 s81, s3, 10')
    c('s_add_u32 s80, s80, s81')
    for p in range(4):
        c('s_add_u32 s81, s3, %d' % p)
        c('s_and_b32 s81, s81, 3')
        c('s_lshl_b32 s81, s81, 17')
        c('s_add_u32 s%d, s81, s80' % (84 + p))
    c('s_lshl_b32 s82, s3, 12')
    c('s_mul_i32 s83, s3, %d' % (16 * 144 * 1024))
    c('s_mul_i32 s81, s23, 9216')
    c('s_add_u32 s83, s83, s81')
    c('s_add_u32 s83, s83, 0x%x' % Z2_F)
    c('s_lshr_b32 s90, s23, 2')
    c('s_lshl_b32 s90, s90, %d' % (8 if opt.get('krot', 1) else 20))
    FQ += [(4, x) for x in c.l]
    tmode = opt.get('tmode', 2)
    nb1 = opt.get('nb1', 19) if tmode else 27
    for u in range(14, nb1):
        for pre, ld in dmaB(u): LQ.append((war_ok(u), pre, ld, CB))
    LQ.append((P1 - 40, [], ('buffer_load_ushort v50, v52, s[52:55], s79 offen', 'b'), 20))
    LQ.append((P1 - 40, [], ('buffer_load_ushort v51, v52, s[52:55], s79 offen offset:8', 'b'), 20))
    if tmode:
        kl = kv_loads(40, 16)
        for n_, x in enumerate(kl): LQ.append((0, [], x, opt.get('cK', 30) if n_ < 19 else opt.get('cT', 1500)))
        for u in range(nb1, 27):
            for pre, ld in dmaB(u): LQ.append((war_ok(u), pre, ld, CB))
    state = {'seg': 2, 'nrd': 0}
    def rdB(n):
        u = n // 12
        if n % 12 == 0 and u in bars:
            if bar_cover(u): sc.wait('B%d' % bar_cover(u)[-1])
            a('s_barrier')
        off = slotB(u) + (n % 12) * 1024
        seg = off // 65536
        if seg != state['seg']:
            a('v_add_u32 v2, %d, v1' % (seg * 65536))
            state['seg'] = seg
        a('ds_read_b128 %s, v2 offset:%d' % (vr(BR + (n % NB) * 4, 4), off % 65536))
        state['nrd'] = n + 1
    def useB(n):
        a('s_waitcnt lgkmcnt(%d)' % (state['nrd'] - 1 - n))
        return vr(BR + (n % NB) * 4, 4)
    for n in range(LOOK): rdB(n)
    for ks in range(18):
        if ks == 1: stamp(a, 15, 1)
        sc.wait('A%d' % ks)
        for jt in range(9):
            n = ks * 9 + jt
            b = useB(n)
            for j in range(2):
                cc = vr(C2 + jt * 8 + j * 4, 4)
                a('v_mfma_f32_16x16x32_bf16 %s, %s, %s, %s' % (cc, A(ks, j), b, cc if ks else '0'))
                sc.pos += 1
                sc.fill(2 if j == 0 else 1, 20)
            if n + LOOK < 168: rdB(n + LOOK)
    assert not FQ
    a('s_waitcnt lgkmcnt(0)')
    a('s_barrier')
    sc.pos += 1
    stamp(a, 15, 2)
    G = gelu_pure(C2, T, 72)
    SU = 96; SQ = 104
    for jt in range(9):
        for i in range(4):
            x = C2 + 8 * jt + 2 * i
            if jt == 0:
                G.append('v_pk_mul_f32 %s, %s, %s' % (pr(SQ + 2 * i), pr(x), pr(x)))
            else:
                G.append('v_pk_add_f32 %s, %s, %s' % (pr(SU + 2 * i), pr(SU + 2 * i) if jt > 1 else pr(x - 8), pr(x)))
                G.append('v_pk_fma_f32 %s, %s, %s, %s' % (pr(SQ + 2 * i), pr(x), pr(x), pr(SQ + 2 * i)))
    sc.pure(G)
    TT = T; U = 60
    assert not sc.pending('KV')
    a('s_nop 0')
    for e in range(8): a('v_add_f32 v%d, v%d, v%d row_ror:8 bank_mask:0x3' % (TT + e, SU + e, SU + e))
    for e in range(8): a('v_add_f32 v%d, v%d, v%d row_ror:8 bank_mask:0xc' % (TT + e, SQ + e, SQ + e))
    for i in range(4): a('v_add_f32 v%d, v%d, v%d row_half_mirror bank_mask:0x5' % (U + i, TT + 2 * i, TT + 2 * i))
    for i in range(4): a('v_add_f32 v%d, v%d, v%d row_half_mirror bank_mask:0xa' % (U + i, TT + 2 * i + 1, TT + 2 * i + 1))
    for i in range(4): a('v_add_f32 v%d, v%d, v%d quad_perm:[1,0,3,2]' % (U + i, U + i, U + i))
    for i in range(4): a('v_add_f32 v%d, v%d, v%d quad_perm:[2,3,0,1]' % (U + i, U + i, U + i))
    sc.force('b')
    a('s_mov_b64 exec, s[74:75]')
    sc.emit(('buffer_store_dwordx4 %s, v55, s[48:51], s73 offen sc1' % vr(U, 4), 'ST'))
    a('s_mov_b64 exec, -1')
    stamp(a, 15, 3)
    rdB(168)
    P1 = sc.pos
    PL = 96
    polls = [('buffer_load_dwordx4 %s, v54, s[48:51], s72 offen offset:%d sc1' % (vr(PL + 4 * i, 4), i * 1024), 'PL') for i in range(4)]
    if tmode:
        sc.BQ += [(P1 + opt.get('kvc', 4), x) for x in [('WAIT', 'KV')] + kv_compute(16, T + 36) + kv_store(3, 40, T + 36, 's2')]
    FQ.append((P1 + opt.get('pollpos', 40), ('BLOCK', polls)))
    side = opt.get('side', 0)
    tp = P1 + opt.get('tchpos', 75)
    if side & 2: LQ.append((tp, [], ('buffer_load_dword v57, v56, s[40:43], 0 offen', 'TCH'), opt.get('cT', 300)))
    def check():
        a('s_branch KF_chk')
        a.label('KF_poll')
        for x in polls: a(x[0])
        a('s_waitcnt vmcnt(0)')
        a.label('KF_chk')
        a('v_max3_u32 v8, v%d, v%d, v%d' % (PL, PL + 1, PL + 2))
        a('v_max3_u32 v9, v%d, v%d, v%d' % (PL + 3, PL + 4, PL + 5))
        for i in range(6, 14, 4):
            a('v_max3_u32 v8, v8, v%d, v%d' % (PL + i, PL + i + 1))
            a('v_max3_u32 v9, v9, v%d, v%d' % (PL + i + 2, PL + i + 3))
        a('v_max3_u32 v8, v8, v%d, v%d' % (PL + 14, PL + 15))
        a('v_max_u32 v8, v8, v9')
        a('v_cmp_eq_u32 vcc, -1, v8')
        a('s_sub_u32 s94, s94, 1')
        a('s_cmp_eq_u32 s94, 0')
        a('s_cbranch_scc1 KF_polldone')
        a('s_cbranch_vccnz KF_poll')
        a.label('KF_polldone')
        stamp(a, 15, 4)
    cp = P1 + opt.get('chkpos', 85)
    FQ.append((cp, ('WAIT', 'PL')))
    FQ.append((cp, ('BLOCK', [check])))
    c = Cap()
    for r in range(4): c('v_add_f32 v%d, v%d, v%d' % (PL + r, PL + r, PL + 4 + r))
    for r in range(4): c('v_add_f32 v%d, v%d, v%d' % (PL + 8 + r, PL + 8 + r, PL + 12 + r))
    for r in range(4): c('v_add_f32 v%d, v%d, v%d' % (PL + r, PL + r, PL + 8 + r))
    for sh in (4, 8):
        for r in range(4): c('v_add_f32 v%d, v%d, v%d row_ror:%d' % (PL + r, PL + r, PL + r, sh))
    M = 56; Vv = 60
    for r in range(4): c('v_mul_f32 v%d, v%d, v11 quad_perm:[0,1,0,1]' % (M + r, PL + r))
    for r in range(4): c('v_mul_f32 v%d, v%d, v11 quad_perm:[2,3,2,3]' % (Vv + r, PL + r))
    for r in range(4): c('v_fma_f32 v%d, -v%d, v%d, v%d' % (Vv + r, M + r, M + r, Vv + r))
    for r in range(4): c('v_max_f32 v%d, 0, v%d' % (Vv + r, Vv + r))
    def round2(r):
        c('v_cvt_pk_bf16_f32 v%d, v%d, v%d' % (r + 1, r, r + 1))
        c('v_lshlrev_b32 v%d, 16, v%d' % (r, r + 1))
        c('v_and_b32 v%d, 0xffff0000, v%d' % (r + 1, r + 1))
    round2(Vv); round2(Vv + 2)
    for r in range(4): c('v_add_f32 v%d, 0x%x, v%d' % (Vv + r, f2u(1e-5), Vv + r))
    round2(Vv); round2(Vv + 2)
    for r in range(4): c('v_sqrt_f32 v%d, v%d' % (Vv + r, Vv + r))
    round2(M); round2(M + 2)
    round2(Vv); round2(Vv + 2)
    for r in range(4): c('v_rcp_f32 v%d, v%d' % (Vv + r, Vv + r))
    c('s_nop 0')
    for r in range(4): c('v_mul_f32 v%d, -v%d, v%d' % (M + r, M + r, Vv + r))
    SC = PL; BI = PL + 8
    for e in range(8):
        p = e & 1
        c('v_mov_b32 v%d, v%d quad_perm:[%d,%d,%d,%d]' % (SC + e, Vv + (e >> 1), p, p, p, p))
    for e in range(8):
        p = e & 1
        c('v_mov_b32 v%d, v%d quad_perm:[%d,%d,%d,%d]' % (BI + e, M + (e >> 1), p, p, p, p))
    for jt in range(9):
        b = C2 + jt * 8
        for i in range(4): c('v_pk_fma_f32 %s, %s, %s, %s' % (pr(b + 2 * i), pr(b + 2 * i), pr(SC + 2 * i), pr(BI + 2 * i)))
        for i in range(4): c('v_cvt_pk_bf16_f32 v%d, v%d, v%d' % (b + i, b + 2 * i, b + 2 * i + 1))
        if jt in (4, 8): c('s_add_u32 s71, s71, 4096')
        c(('buffer_store_dwordx4 %s, v1, s[48:51], s71 offen offset:%d sc1' % (vr(b, 4), (jt % 4) * 1024), 'S2'))
    npure = opt.get('npure', 1)
    GEL = 72; ZB = 144
    BQ = 252 - 4
    CW = opt.get('cW', 85)
    def dmaW(n, early, cst):
        kp, p = divmod(n, 4)
        for i in range(4):
            pre = ['s_add_u32 s88, s90, %d' % (kp * 128), 's_and_b32 s88, s88, 1023', 's_add_u32 m0, s82, %d' % ((n % 10) * 16384), 's_add_u32 s88, s88, s%d' % (84 + p)] if i == 0 else []
            LQ.append((early, pre, ('buffer_load_dwordx4 v%d, s[40:43], s88 offen offset:%d lds' % (WV + i, 1024 * i), 'W%d' % n), cst))
    WV = 46; ZV = [1, 58, 59]
    def Zbuf(k, ft): return ZB + 36 * (k % 3) + 4 * ft
    def ldZ(k, ft, early, cst):
        pre = ['s_add_u32 s89, s90, %d' % (k * 64), 's_and_b32 s89, s89, 1023', 's_mul_i32 s89, s89, 2304', 's_add_u32 s89, s89, s83'] if ft == 0 else []
        return (early, pre, ('buffer_load_dwordx4 %s, v%d, s[48:51], s89 offen offset:%d sc1' % (ar(Zbuf(k, ft), 4), ZV[ft // 4], (ft % 4) * 1024), 'Z%d' % k), cst)
    def wfree(n):
        u = 14 + (16 * (n + 1) + 11) // 12 - 1
        ok = [b for b in bars if b >= u + 2]
        return barpos(ok[0]) + 3 if ok else 100000
    CW0 = opt.get('cW0', 150)
    def after_z2():
        for n in range(10):
            if wfree(n) < 100000: dmaW(n, wfree(n), CW0); wdone.append(n)
    wdone = []; marks0 = {}
    blocks = [[]]
    for x in c.l:
        blocks[-1].append(x)
        if isinstance(x, tuple): blocks.append([])
    blocks[opt.get('wstart', 0)].append(after_z2)
    for n_, bl in enumerate(blocks):
        FQ.append((cp + opt.get('stsp', 14) * min(n_, 8), ('BLOCK', bl)))
    marks = {}
    def publish():
        vm.wait(a, 'S2')
        a('v_mov_b32 v8, 1')
        a('s_mov_b64 exec, 1')
        sc.emit(('buffer_store_dword v8, v1, s[48:51], s77 offen sc1', 'FL'))
        a('s_mov_b64 exec, -1')
        stamp(a, 15, 5)
    fpoll = ('buffer_load_dword v14, v9, s[48:51], s76 offen sc1', 'FP')
    def fcheck():
        vm.wait(a, 'FP')
        a('s_branch KF_fchk')
        a.label('KF_fpoll')
        a(fpoll[0])
        a('s_waitcnt vmcnt(0)')
        a.label('KF_fchk')
        a('v_cmp_ne_u32 vcc, 1, v14')
        a('s_sub_u32 s94, s94, 1')
        a('s_cmp_eq_u32 s94, 0')
        a('s_cbranch_scc1 KF_fdone')
        a('s_cbranch_vccnz KF_fpoll')
        a.label('KF_fdone')
        LQ[0:0] = [ldZ(k, ft, 0, CW) for k in range(2) for ft in range(9)]
        LQ.extend([ldZ(2, ft, 0, CW) for ft in range(9)])
        stamp(a, 15, 6)
    FQ.append((cp + opt.get('pubd', 400), ('BLOCK', [publish])))
    FQ.append((0, ('BLOCK', ['v_and_b32 v9, 60, v55', 'v_add_u32 v58, 4096, v1', 'v_add_u32 v59, 8192, v1'])))
    for jt in range(9):
        cb_ = T + jt * 8
        for ks in range(18):
            n = 162 + jt * 18 + ks
            b = useB(n)
            for j in range(2):
                cc = vr(cb_ + j * 4, 4)
                a('v_mfma_f32_16x16x32_bf16 %s, %s, %s, %s' % (cc, b, A(ks, j), cc if ks else '0'))
                sc.pos += 1
                if j == 0: sc.fill(2, 34)
                elif ks % opt.get('kvj1', 2) == 0: sc.back(1)
            if n + LOOK < 324: rdB(n + LOOK)
    print('KF phase2 leftover fillers', len(FQ), 'loads', len(LQ), 'kv done at', sc.bqend - P1, file=sys.stderr)
    assert not sc.BQ and sc.bqend - P1 < 176
    while FQ: sc.fill(2, 8, flush=True)
    a('s_barrier')
    for n in range(10):
        if n not in wdone: dmaW(n, 0, CW0 if n < 8 else CW)
    if side & 1:
        kp_ = opt.get('kvq', 0)
        LQ[kp_:kp_] = [(0, [], x, opt.get('cK', 40)) for x in kv_loads(40, 16)]
    G = gelu_pure(T, C2, 72)
    G[opt.get('fcp', 230):opt.get('fcp', 230)] = [fcheck]
    G[opt.get('fpp', 140):opt.get('fpp', 140)] = [fpoll]
    for ft in range(9):
        for r in range(8): G.append('v_accvgpr_write_b32 a%d, v%d' % (GEL + 8 * ft + r, T + 8 * ft + r))
    G += ['v_lshlrev_b32 v50, 16, v50', 'v_lshlrev_b32 v51, 16, v51']
    for r in range(4): G.append('v_accvgpr_write_b32 a%d, v50' % (252 + r))
    for r in range(4): G.append('v_accvgpr_write_b32 a%d, v51' % (68 + r))
    sc.pure(G)
    if side & 1:
        sc.wait('KV')
        kst = kv_store(3, 40, 64, 's2')
        sc.pure(kv_compute(16, 64, pk=True) + kst)
    for i in range(4): a('v_mov_b32 v%d, v%d' % (4 + i, 46 + i))
    a('v_add_u32 v2, 4096, v1')
    a('v_add_u32 v3, 8192, v1')
    rest = list(LQ); del LQ[:]
    def retarget(x):
        t = x[2][0]
        for i in range(4): t = t.replace('dwordx4 v%d, s[40:43]' % (46 + i), 'dwordx4 v%d, s[40:43]' % (4 + i))
        t = t.replace(', v58, s[48', ', v2, s[48').replace(', v59, s[48', ', v3, s[48')
        return (0, x[1], (t, x[2][1]), x[3])
    rest = [retarget(x) for x in rest]
    print('KF loads left at stage 2 start', len(rest), file=sys.stderr)
    WV = 4; ZV = [1, 2, 3]
    a('v_and_b32 v8, 15, v0')
    a('v_lshrrev_b32 v11, 1, v8')
    a('v_xor_b32 v11, v11, v10')
    a('v_lshlrev_b32 v8, 7, v8')
    a('v_lshl_add_u32 v8, v11, 4, v8')
    a('v_add_u32 v12, s82, v8')
    if DBG['on']:
        stamp(a, 15, 7)
        a('s_lshl_b32 s96, s2, 3')
        a('s_add_u32 s96, s96, s3')
        a('s_lshl_b32 s96, s96, 6')
        a('s_add_u32 s96, s96, 0x%x' % (STAMP + 1 * 256 * 8 * 64))
        a('v_lshlrev_b32 v8, 2, v0')
        a('s_mov_b64 exec, 0xffff')
        sc.emit(('buffer_store_dword v15, v8, s[48:51], s96 offen', 'DB'))
        a('s_mov_b64 exec, -1')
        stamp(a, 15, 0)
    NO = 40; WR = 16; NW = 4
    ownV = {}
    def acc(tt, ft, late=False):
        if tt < 2:
            return vr(ownV[(tt, ft)], 4) if late else ar((tt * 9 + ft) * 4, 4)
        return vr(NO + ((tt - 2) * 9 + ft) * 4, 4)
    groups = []
    for k in range(14): groups += [(k, tt) for tt in range(8)]
    groups += [(14, 0), (14, 1)]
    for tt in range(2, 8): groups += [(14, tt), (15, tt)]
    groups += [(15, 0), (15, 1)]
    sc.pos = 0
    gend = {g: 9 * (i + 1) for i, g in enumerate(groups)}
    stepend = {k: max(gend[(k, tt)] for tt in range(8)) for k in range(16)}
    CZ = opt.get('cZ', 60)
    ev = []
    for k in range(3, 16):
        e0 = stepend[k - 3]
        for ft in range(9): ev.append((72 * (k - 2) + 8 * ft, ldZ(k, ft, e0, CZ)))
    wsp_ = opt.get('wsp', 42)
    for n in range(10, 32):
        kp, p = divmod(n - 10, 4)
        e0 = gend[(2 * kp + 1, 2 * p + 1)] - 9 + 1
        m = len(LQ); dmaW(n, e0, CZ); l = LQ[m:]; del LQ[m:]
        for i, x in enumerate(l): ev.append((wsp_ * (n - 10) + 82 + (wsp_ // 4) * i, x))
    ev.sort(key=lambda x: x[0])
    LQ += rest + [(max(x[1][0], x[0] - opt.get('wslack', 1000)),) + x[1][1:] for x in ev]
    sc.free = sc.t
    wst = {'n': 0, 'key': None}
    def rdW():
        n = wst['n']
        if n >= len(groups): return
        k, tt = groups[n]
        sn = 4 * (k >> 1) + (tt >> 1)
        sc.wait('W%d' % sn)
        off = (sn % 10) * 16384 + (tt & 1) * 2048
        key = (off // 65536, k & 1)
        if key != wst['key']:
            if k & 1:
                a('v_xor_b32 v13, 64, v12')
                if key[0]: a('v_add_u32 v13, %d, v13' % (65536 * key[0]))
            else:
                a('v_add_u32 v13, %d, v12' % (65536 * key[0]))
            wst['key'] = key
        a('ds_read_b128 %s, v13 offset:%d' % (vr(WR + 4 * (n % NW), 4), off % 65536))
        lg.append('R%d' % n)
        wst['n'] = n + 1
    lg = []
    WL = 3
    for _ in range(WL): rdW()
    c = Cap()
    c('s_lshr_b32 s56, s22, 1')
    c('s_mul_i32 s56, s56, 72')
    c('s_lshr_b32 s57, s23, 1')
    c('s_mul_i32 s57, s57, 9')
    c('s_add_u32 s56, s56, s57')
    c('s_lshl_b32 s56, s56, 12')
    c('s_and_b32 s57, s22, 1')
    c('s_lshl_b32 s57, s57, 11')
    c('s_add_u32 s56, s56, s57')
    c('s_add_u32 s56, s56, 0x%x' % H_F)
    c('s_and_b32 s57, s23, 1')
    c('s_lshl_b32 s58, s57, 10')
    c('s_add_u32 s58, s58, s56')
    c('s_add_u32 s58, s58, %d' % (8 * 4096))
    c('s_lshl_b32 s57, s57, 14')
    c('s_add_u32 s56, s56, s57')
    FQ += [(20, x) for x in c.l]
    last = [(28 + p) % 10 for p in range(4)]
    freeS = [s_ for s_ in range(10) if s_ not in last]
    c = Cap()
    c('s_lshl_b32 s60, s3, 8')
    c('s_add_u32 s60, s60, s2')
    c('s_mul_hi_u32 s61, s60, 0x1C71C71D')
    c('s_mul_i32 s62, s61, 9')
    c('s_sub_u32 s62, s60, s62')
    c('s_mul_hi_u32 s63, s61, 0x1C71C71D')
    c('s_mul_i32 s64, s63, 9')
    c('s_sub_u32 s64, s61, s64')
    c('s_mul_i32 s65, s63, 288')
    c('s_lshr_b32 s66, s64, 2')
    c('s_mul_i32 s66, s66, 144')
    c('s_and_b32 s67, s64, 3')
    c('s_lshl_b32 s67, s67, 5')
    c('s_add_u32 s66, s66, s67')
    c('s_cmp_eq_u32 s64, 8')
    c('s_cselect_b32 s66, 128, s66')
    c('s_cselect_b32 s67, 128, 0')
    c('s_add_u32 s65, s65, s66')
    c('s_add_u32 s66, s65, s67')
    c('s_lshl_b32 s67, s62, 7')
    c('s_add_u32 s68, s82, %d' % (freeS[0] * 16384))
    c('s_cmp_ge_u32 s60, 648')
    c('s_cselect_b32 s46, 0, s46')
    c('s_cselect_b32 s69, 0x40000000, 0')
    FQ.append((100, ('BLOCK', c.l)))
    c = Cap()
    wout_store_addr2(c)
    FQ += [(110, x) for x in c.l]
    for j in range(4):
        LQ.append((stepend[13], ['s_add_u32 s70, s%d, %d' % (65 if j < 2 else 66, 8 * j), 's_mul_i32 s70, s70, 1152', 's_add_u32 m0, s68, %d' % (1024 * j), 's_add_u32 s70, s70, s67'],
                   ('buffer_load_dwordx4 v36, s[44:47], s70 offen lds', 'WO'), 60))
    LQ.append((stepend[13], [], ('buffer_load_dword v39, v38, s[36:39], 0 offen', 'TCH'), 60))
    outS = freeS[1:] + [last[1], last[2]]
    def outoff(x): return outS[x // 4] * 16384 + (x % 4) * 1024
    e13 = stepend[13]
    FQ.append((e13, 'v_add_u32 v8, s82, v1'))
    FQ.append((e13, 'v_add_u32 v9, 65536, v8'))
    FQ.append((e13, 'v_add_u32 v11, 131072, v8'))
    segreg = [8, 9, 11]
    freeY = []; Xregs = []
    own_list = [(j, ft) for j in range(2) for ft in range(9)]
    def base(tt, ft): return NO + ((tt - 2) * 9 + ft) * 4
    def dsw(X, off):
        def f():
            a('ds_write_b128 v%d, %s offset:%d' % (segreg[off // 65536], vr(X, 4), off % 65536)); lg.append('w')
        return f
    wr_order = {}
    def packwr(X, Y, p, slot, e):
        for r in range(2): FQ.append((e, 'v_cvt_pk_bf16_f32 v%d, v%d, v%d' % (X + r, X + 2 * r, X + 2 * r + 1)))
        for r in range(2): FQ.append((e, 'v_cvt_pk_bf16_f32 v%d, v%d, v%d' % (X + 2 + r, Y + 2 * r, Y + 2 * r + 1)))
        x = len(Xregs); wr_order[(p, slot)] = x
        FQ.append((e, ('BLOCK', [dsw(X, outoff(x))])))
        Xregs.append(X)
        if own_list:
            o = own_list.pop(0); ownV[o] = Y
            for r in range(4): FQ.append((e, 'v_accvgpr_read_b32 v%d, a%d' % (Y + r, (o[0] * 9 + o[1]) * 4 + r)))
        else:
            freeY.append(Y)
    for tt in range(2, 8):
        p = tt // 2; j = tt & 1
        g0 = gend[(15, tt)] - 9
        for i in range(4): packwr(base(tt, 2 * i), base(tt, 2 * i + 1), p, 2 * i + j, g0 + 2 * i + 2 + 7)
        if j == 1: packwr(base(tt - 1, 8), base(tt, 8), p, 8, g0 + 9 + 7)
    for n, (k, tt) in enumerate(groups):
        if sc.pos == 72: stamp(a, 15, 1)
        if sc.pos == 72 * 14: stamp(a, 15, 2)
        late = (k == 15 and tt < 2)
        if late:
            while any(isinstance(x[1], str) and 'accvgpr_read' in x[1] for x in FQ): sc.fill(2, 8, flush=True)
        sc.wait('Z%d' % k)
        idx_ = lg.index('R%d' % n)
        a('s_waitcnt lgkmcnt(%d)' % min(15, len(lg) - 1 - idx_))
        del lg[:idx_ + 1]
        for ft in range(9):
            cc = acc(tt, ft, late)
            cin = cc if k else ('0' if tt >= 2 else ar(252 if tt == 0 else 68, 4))
            a('v_mfma_f32_16x16x32_bf16 %s, %s, %s, %s' % (cc, ar(Zbuf(k, ft), 4), vr(WR + 4 * (n % NW), 4), cin))
            sc.pos += 1
            if ft == 1: rdW()
            else: sc.fill(2, 16)
    assert not LQ
    if FQ: a('s_nop 3')
    while FQ: sc.fill(2, 8, flush=True)
    stamp(a, 15, 3)
    for x in ['v_bfe_u32 v24, v0, 2, 2', 'v_cmp_eq_u32 vcc, v24, v10', 'v_and_b32 v24, 1, v0',
        'v_lshlrev_b32 v24, 4, v24', 'v_mov_b32 v25, 0x3f80', 'v_lshlrev_b32 v24, v24, v25', 'v_cndmask_b32 v24, 0, v24, vcc',
        'v_and_b32 v25, 2, v0', 'v_cmp_eq_u32 vcc, 0, v25', 'v_mov_b32 v16, 0', 'v_mov_b32 v17, 0', 'v_mov_b32 v20, 0', 'v_mov_b32 v21, 0',
        'v_cndmask_b32 v18, 0, v24, vcc', 'v_cndmask_b32 v19, v24, v21, vcc']: a(x)
    RB = {}
    pool = [2, 3, 4, 5, 6, 7, 12, 13, 14]
    for p in range(1, 4):
        a('s_sub_u32 s59, s3, %d' % p)
        a('s_and_b32 s59, s59, 3')
        a('s_lshl_b32 s59, s59, 12')
        segs = sorted({outoff(wr_order[(p, sl)]) // 65536 for sl in range(9)})
        for sg in segs:
            r = pool.pop(0); RB[(p, sg)] = r
            if sg: a('s_add_u32 s57, s59, %d' % (sg * 65536))
            a('v_add_u32 v%d, s%d, v1' % (r, 57 if sg else 59))
    a('s_waitcnt lgkmcnt(0)')
    a('s_barrier')
    stamp(a, 15, 4)
    rd = []; R = {}; n = 0
    for sl in range(9):
        for p in range(3):
            R[(sl, p)] = Xregs[n]
            off = outoff(wr_order[(p + 1, sl)])
            rd.append('ds_read_b128 %s, v%d offset:%d' % (vr(Xregs[n], 4), RB[(p + 1, off // 65536)], off % 65536)); n += 1
    def tiles(sl):
        if sl < 8: return (sl & 1, 2 * (sl >> 1)), (sl & 1, 2 * (sl >> 1) + 1)
        return (0, 8), (1, 8)
    for x in rd[:12]: a(x)
    nissued = 12
    Gq = freeY[:6]
    def unpack(sl):
        l = []
        for n_, (j, ft) in enumerate(tiles(sl)):
            g = Gq[(2 * sl + n_) % 6]
            for r in range(4): l.append('v_accvgpr_read_b32 v%d, a%d' % (g + r, GEL + 8 * ft + 4 * j + r))
        return l
    def finish(sl):
        l = []
        o = [24, 28, freeY[6], freeY[7]][sl % 4]
        for n_, t in enumerate(tiles(sl)):
            g = Gq[(2 * sl + n_) % 6]; cc = ownV[t]
            for r in range(4): l.append('v_mul_f32 v%d, v%d, v%d' % (cc + r, cc + r, g + r))
        for n_, t in enumerate(tiles(sl)):
            cc = ownV[t]
            for r in range(2): l.append('v_cvt_pk_bf16_f32 v%d, v%d, v%d' % (o + 2 * n_ + r, cc + 2 * r, cc + 2 * r + 1))
        if sl < 8:
            l.append('buffer_store_dwordx4 %s, v1, s[48:51], s56 offen offset:%d sc1' % (vr(o, 4), (sl & 1) * 1024))
            if sl & 1: l.append('s_add_u32 s56, s56, 4096')
        else:
            l.append('buffer_store_dwordx4 %s, v1, s[48:51], s58 offen sc1' % vr(o, 4))
        return l
    for x in unpack(0) + unpack(1): a(x)
    for sl in range(9):
        fl = (unpack(sl + 1) if 1 <= sl < 8 else [])
        fin = finish(sl - 1) if sl >= 1 else []
        if sl == 8: fin = ['s_nop 3'] + fin
        tX, tY = tiles(sl)
        cnt = 0
        for p in range(3):
            a('s_waitcnt lgkmcnt(%d)' % (nissued - (3 * sl + p) - 1))
            for (t, Sreg) in ((tX, 18), (tY, 16)):
                cc = vr(ownV[t], 4)
                a('v_mfma_f32_16x16x32_bf16 %s, %s, %s, %s' % (cc, vr(Sreg, 4), vr(R[(sl, p)], 4), cc))
                cnt += 1
                for _ in range(4):
                    if fl: a(fl.pop(0))
                    elif cnt >= 3 and fin: a(fin.pop(0))
            if nissued < 27:
                a(rd[nissued]); nissued += 1
        for x in fl + fin: a(x)
    a('s_waitcnt vmcnt(9)')
    for nt in range(4):
        a('ds_read_b64_tr_b16 v[%d:%d], v37 offset:%d' % (Xregs[nt], Xregs[nt] + 1, 32 * nt))
        a('ds_read_b64_tr_b16 v[%d:%d], v37 offset:%d' % (Xregs[nt] + 2, Xregs[nt] + 3, 2048 + 32 * nt))
    for x in finish(8): a(x)
    for nt in range(4):
        a('s_waitcnt lgkmcnt(%d)' % (6 - 2 * nt))
        a('buffer_store_dwordx4 %s, v%d, s[48:51], s71 offen sc1' % (vr(Xregs[nt], 4), 32 + nt))
    stamp(a, 15, 5)
    stamp_flush(a, 15, 2, 14, 6)
    a.label('KF_end')
    a('s_endpgm')
    return kernel_desc(name, 512, 256), '; @launch kernel=k1_kernel grid=(256,1,1) block=(256,1,1) lds=163840'

HSLOT = 16640
UB = 4 * HSLOT
XP = 83968
YP = XP + 4 * 3072
K3_LDS = YP + 80 * 128
def gen_k3(a, opt={}):
    name = 'k3_kernel'
    kernel_begin(a, name)
    a('s_cmp_ge_u32 s2, 256')
    a('s_cbranch_scc1 K3_end')
    a('s_load_dwordx2 s[48:49], s[0:1], 104')
    a('s_load_dwordx2 s[52:53], s[0:1], 0')
    a('s_load_dwordx2 s[56:57], s[0:1], 88')
    a('s_load_dwordx4 s[4:7], s[0:1], 32')
    stamp(a, 15, 0)
    wave_lane(a, 3)
    a('v_lshlrev_b32 v1, 4, v0')
    a('s_and_b32 s20, s2, 7')
    a('s_lshr_b32 s21, s2, 3')
    a('s_lshr_b32 s22, s20, 1')
    a('s_lshl_b32 s22, s22, 3')
    a('s_and_b32 s23, s21, 7')
    a('s_add_u32 s22, s22, s23')
    a('s_and_b32 s23, s20, 1')
    a('s_lshl_b32 s23, s23, 2')
    a('s_lshr_b32 s24, s21, 3')
    a('s_add_u32 s23, s23, s24')
    a('s_mul_i32 s25, s22, 72')
    a('s_mul_i32 s26, s3, 18')
    a('s_add_u32 s25, s25, s26')
    a('s_lshl_b32 s25, s25, 12')
    a('s_add_u32 s25, s25, 0x%x' % H_F)
    a('s_lshl_b32 s26, s23, 2')
    a('s_add_u32 s26, s26, s3')
    a('s_mul_i32 s26, s26, %d' % (81 * 1024))
    a('s_add_u32 s26, s26, 0x%x' % WOUT_F)
    a('v_add_u32 v2, 4096, v1')
    a('v_add_u32 v3, 8192, v1')
    for p in range(4):
        a('s_xor_b32 s27, s3, %d' % p)
        a('s_lshl_b32 s27, s27, 10')
        a('v_add_u32 v%d, s27, v1' % (4 + p))
    for r, v in ((50, WS_END), (51, 0x20000), (54, S * D * 2), (55, 0x20000), (58, S * D * 2), (59, 0x20000)):
        a('s_mov_b32 s%d, 0x%x' % (r, v))
    a('s_mul_i32 s40, s3, %d' % HSLOT)
    a('v_and_b32 v8, 15, v0')
    a('v_lshrrev_b32 v9, 4, v0')
    a('s_cmp_ge_u32 s2, 144')
    a('s_waitcnt lgkmcnt(0)')
    if WS_BASE:
        a('s_add_u32 s48, s48, 0x%x' % WS_BASE)
        a('s_addc_u32 s49, s49, 0')
        a('s_cmp_ge_u32 s2, 144')
    a('s_cbranch_scc1 K3_noconv')
    SETS = [('a', 96), ('a', 164), ('v', 52), ('v', 120), ('v', 188)]
    def reg(pr_, i):
        t, b = SETS[pr_ % 5]
        return (ar if t == 'a' else vr)(b + 4 * i, 4)
    def loads(pr_):
        l = []
        order = [('w', 0), ('w', 1), ('w', 2), ('w', 3), ('w', 8), ('h', 0), ('h', 1), ('h', 2), ('h', 3),
                 ('w', 4), ('w', 5), ('w', 6), ('w', 7), ('h', 4), ('h', 5), ('h', 6), ('h', 7)]
        for n, (k, i) in enumerate(order):
            tag = 'P%d_%d' % (pr_, 0 if n < 9 else 1)
            pre = []
            if n == 0: pre = ['s_add_u32 s28, s26, %d' % (pr_ * 9216)]
            if k == 'h' and i % 4 == 0: pre = ['s_add_u32 s29, s25, %d' % (pr_ * 8192 + (i // 4) * 4096)]
            if k == 'w': l.append((pre, ('buffer_load_dwordx4 %s, v%d, s[48:51], s28 offen offset:%d' % (reg(pr_, i), 1 + i // 4, (i % 4) * 1024), tag)))
            else:        l.append((pre, ('buffer_load_dwordx4 %s, v%d, s[48:51], s29 offen' % (reg(pr_, 9 + i), 4 + i % 4), tag)))
        return l
    def acc(dt, tt): return ar((dt * 4 + tt) * 4, 4)
    def setup_epi(c):
        c('s_lshl_b32 s30, s22, 6')
        c('s_lshr_b32 s31, s3, 1')
        c('s_lshl_b32 s32, s31, 5')
        c('s_add_u32 s30, s30, s32')
        c('s_and_b32 s33, s3, 1')
        c('s_lshl_b32 s32, s33, 2')
        c('s_add_u32 s30, s30, s32')
        c('s_mul_i32 s34, s30, 1152')
        c('s_mul_i32 s32, s23, 144')
        c('s_add_u32 s34, s34, s32')
        c('s_lshl_b32 s35, s30, 3')
        c('s_add_u32 s35, s35, 0x%x' % XSTAT)
        c('s_mul_i32 s36, s3, 3072')
        c('s_add_u32 s36, s36, %d' % XP)
        for i in range(3):
            c('v_add_u32 v10, %d, v0' % (64 * i))
            c('v_mul_u32_u24 v11, 7282, v10')
            c('v_lshrrev_b32 v11, 16, v11')
            c('v_mul_u32_u24 v12, 9, v11')
            c('v_sub_u32 v10, v10, v12')
            c('v_lshrrev_b32 v12, 2, v11')
            c('v_lshlrev_b32 v12, 2, v12')
            c('v_add_u32 v11, v11, v12')
            c('v_mul_u32_u24 v11, 1152, v11')
            c('v_lshl_add_u32 v%d, v10, 4, v11' % (16 + i))
        c('v_lshrrev_b32 v10, 4, v0')
        c('v_lshlrev_b32 v10, 28, v10')
        c('v_or_b32 v18, v18, v10')
        c('v_lshrrev_b32 v10, 2, v8')
        c('v_lshlrev_b32 v10, 2, v10')
        c('v_add_lshl_u32 v19, v10, v8, 3')
        c('v_mul_u32_u24 v20, 144, v8')
        c('v_add_u32 v20, s36, v20')
        c('v_lshl_add_u32 v21, v9, 3, v20')
        c('v_lshl_add_u32 v20, v9, 4, v20')
        c('v_min_u32 v22, 35, v0')
        c('v_lshlrev_b32 v22, 3, v22')
        c('s_mul_i32 s37, s23, 288')
        c('s_add_u32 s37, s37, 0x%x' % YFLAG)
        c('v_lshrrev_b32 v23, 3, v0')
        c('v_lshlrev_b32 v23, 12, v23')
        c('v_and_b32 v10, 7, v0')
        c('v_lshl_add_u32 v23, v10, 4, v23')
        c('s_mul_i32 s38, s23, %d' % (72 * 4096))
        c('s_lshl_b32 s32, s22, 7')
        c('s_add_u32 s38, s38, s32')
        c('s_add_u32 s38, s38, 0x%x' % YT)
        c('s_add_u32 s41, s38, %d' % (8 * 32768))
        c('s_lshl_b32 s32, s3, 15')
        c('s_add_u32 s38, s38, s32')
        c('s_add_u32 s39, s38, %d' % (4 * 32768))
        c('s_lshl_b32 s32, s3, 10')
        c('s_add_u32 s32, s32, %d' % YP)
        c('v_add_u32 v24, s32, v1')
        c('v_bfe_u32 v10, v0, 2, 2')
        c('v_lshl_add_u32 v11, v9, 3, v10')
        c('v_lshl_add_u32 v12, v9, 2, v10')
        c('v_and_b32 v10, 1, v0')
        c('v_lshlrev_b32 v10, 6, v10')
        c('v_bfe_u32 v13, v0, 1, 1')
        c('v_lshl_add_u32 v10, v13, 3, v10')
        c('s_lshl_b32 s32, s33, 5')
        c('s_lshl_b32 s31, s31, 4')
        c('s_add_u32 s32, s32, s31')
        c('s_add_u32 s32, s32, %d' % YP)
        c('v_add_u32 v10, s32, v10')
        c('v_lshl_add_u32 v25, v11, 7, v10')
        c('v_lshl_add_u32 v26, v12, 7, v10')
        c('s_mov_b32 s94, 200000')
    def gemm(sc, lab, extra):
        LQ = sc.LQ; FQ = sc.FQ
        p0 = sc.pos
        for pr_ in range(5, 9):
            for n, (pre, ld) in enumerate(loads(pr_)):
                LQ.append((p0 + 40 * (pr_ - 5) + (20 if (n < 9 and n != 4) else 40), pre, ld, 0))
        FQ += extra
        xl = []
        for i in range(3):
            xl += ['s_add_u32 m0, s36, %d' % (1024 * i), 's_nop 0', ('buffer_load_dwordx4 v%d, s[52:55], s34 offen lds' % (16 + i), 'X')]
        xl.append(('buffer_load_dwordx2 v[28:29], v19, s[48:51], s35 offen', 'X'))
        fpoll = ('buffer_load_dwordx2 v[30:31], v22, s[48:51], s37 offen sc1', 'FP')
        def fcheck():
            sc.vm.wait(a, 'FP')
            a('s_branch K3_fchk%s' % lab)
            a.label('K3_fpoll%s' % lab)
            a(fpoll[0])
            a('s_waitcnt vmcnt(0)')
            a.label('K3_fchk%s' % lab)
            a('v_and_b32 v30, v30, v31')
            a('v_cmp_ne_u32 vcc, 1, v30')
            a('s_sub_u32 s94, s94, 1')
            a('s_cmp_eq_u32 s94, 0')
            a('s_cbranch_scc1 K3_fdone%s' % lab)
            a('s_cbranch_vccnz K3_fpoll%s' % lab)
            a.label('K3_fdone%s' % lab)
            for i, so in enumerate((38, 39, 41)):
                sc.emit(('buffer_load_dwordx4 %s, v23, s[48:51], s%d offen sc1' % (vr(32 + 4 * i, 4), so), 'Y'))
        for pr_ in range(9):
            if pr_ == 1: stamp(a, 15, 3)
            if pr_ == 6:
                assert not LQ and not FQ
                for x in xl: sc.emit(x)
            if pr_ == 7: sc.emit(fpoll)
            if pr_ == 8: fcheck()
            for par in range(2):
                sc.wait('P%d_%d' % (pr_, par))
                if 2 * pr_ + par in (8, 17):
                    hb = SETS[pr_ % 5][1] + 36 + 16 * par
                    assert SETS[pr_ % 5][0] == 'v'
                    l1 = 'K3_sw%s%d' % (lab, pr_)
                    a('s_bitcmp1_b32 s3, 0')
                    a('s_cbranch_scc1 %sa' % l1)
                    for gg in range(2):
                        a('v_swap_b32 v%d, v%d' % (hb + 8 * gg + 2, hb + 8 * gg + 4))
                        a('v_swap_b32 v%d, v%d' % (hb + 8 * gg + 3, hb + 8 * gg + 5))
                    a('s_branch %sb' % l1)
                    a.label(l1 + 'a')
                    for gg in range(2):
                        a('v_swap_b32 v%d, v%d' % (hb + 8 * gg + 0, hb + 8 * gg + 6))
                        a('v_swap_b32 v%d, v%d' % (hb + 8 * gg + 1, hb + 8 * gg + 7))
                    a.label(l1 + 'b')
                    a('s_nop 1')
                for tt in (1, 2, 3, 0):
                    for dt in range(5):
                        wf = reg(pr_, 4 * par + dt) if dt < 4 else reg(pr_, 8)
                        cc = acc(dt if dt < 4 else 4 + par, tt)
                        init = (pr_ == 0 and (par == 0 or dt == 4))
                        a('v_mfma_f32_16x16x32_bf16 %s, %s, %s, %s' % (cc, wf, reg(pr_, 9 + 4 * par + tt), '0' if init else cc))
                        sc.pos += 1
                        sc.fill(2, 16)
    sc = Sched(a); LQ = sc.LQ; FQ = sc.FQ
    srd(a, 60, 4, D * S * 2)
    a('s_cmp_ge_u32 s2, 72')
    a('s_cselect_b32 s42, 1, 0')
    a('s_cselect_b32 s43, 72, 0')
    a('s_sub_u32 s43, s2, s43')
    a('s_lshl_b32 s43, s43, 3')
    a('s_add_u32 s42, s42, s43')
    a('s_lshl_b32 s43, s3, 1')
    a('s_add_u32 s42, s42, s43')
    a('s_lshl_b32 s43, s42, 12')
    HT = 188
    for j in range(4):
        sc.emit(('buffer_load_dwordx4 %s, v1, s[60:63], s43 offen offset:%d' % (vr(HT + 8 * j, 4), 1024 * j), 'H%d' % j))
        sc.emit(('buffer_load_dwordx4 %s, v1, s[60:63], s43 offen offset:%d' % (vr(HT + 8 * j + 4, 4), 1024 * j + 8), 'H%d' % j))
    a('v_and_b32 v10, 3, v0')
    a('v_xor_b32 v10, v10, v9')
    a('v_lshrrev_b32 v11, 2, v0')
    a('v_lshlrev_b32 v11, 6, v11')
    a('v_lshl_add_u32 v10, v10, 4, v11')
    a('s_lshl_b32 s44, s3, 12')
    a('s_add_u32 m0, s44, %d' % (UB + 64))
    a('s_lshl_b32 s45, s2, 14')
    a('s_add_u32 s45, s45, s44')
    a('s_add_u32 s45, s45, 0x%x' % KVB)
    for j in range(4): sc.emit(('buffer_load_dwordx4 v10, s[48:51], s45 offen offset:%d lds' % (1024 * j), 'U'))
    srd(a, 64, 6, D * 2)
    a('s_lshl_b32 s46, s42, 1')
    a('v_mov_b32 v10, 0')
    sc.emit(('buffer_load_ushort v27, v10, s[64:67], s46 offen', 'U'))
    CL = opt.get('c3', 80)
    for pr_ in range(5):
        for pre, ld in loads(pr_): LQ.append((0 if pr_ < 4 else 20, pre, ld, CL))
    for _ in range(4): sc.pump(); sc.t += CL
    for r in range(4): a('v_mov_b32 v%d, 0' % (32 + r))
    a('v_bfe_u32 v10, v0, 1, 2')
    a('v_mul_u32_u24 v10, 4160, v10')
    a('v_and_b32 v11, 1, v0')
    a('v_lshl_add_u32 v10, v11, 4, v10')
    a('v_add_u32 v10, s40, v10')
    a('v_add_u32 v11, %d, v1' % UB)
    a('s_mov_b64 exec, 0xff')
    a('ds_write_b128 v10, v[32:35]')
    a('s_mov_b64 exec, 0xf')
    a('ds_write_b128 v11, v[32:35]')
    a('s_mov_b64 exec, -1')
    a('v_add_u32 v36, s40, v1')
    a('v_add_u32 v10, 1, v8')
    a('v_and_b32 v11, 3, v10')
    a('v_mul_u32_u24 v11, 4158, v11')
    a('v_lshl_add_u32 v11, v10, 1, v11')
    a('v_lshl_add_u32 v11, v9, 4, v11')
    a('v_add_u32 v37, s40, v11')
    a('v_lshlrev_b32 v38, 1, v8')
    a('v_sub_u32 v38, v38, v9')
    a('v_add_u32 v38, 1, v38')
    a('s_mov_b32 s47, %d' % (UB + 64))
    BT = 220
    for j in range(4):
        sc.vm.wait(a, 'H%d' % j)
        d = [HT + 8 * j + i for i in (0, 1, 2, 3, 6, 7)]
        o = BT + 12 * (j & 1)
        a('ds_write_b128 v36, %s offset:%d' % (vr(d[0], 4), 32 + 1024 * j))
        for i in range(4): a('v_alignbit_b32 v%d, v%d, v%d, 16' % (o + i, d[i + 1], d[i]))
        a('ds_write_b128 v36, %s offset:%d' % (vr(o, 4), 4160 + 32 + 1024 * j))
        for i in range(4): a('v_mov_b32 v%d, v%d' % (o + 4 + i, d[i + 1]))
        a('ds_write_b128 v36, %s offset:%d' % (vr(o + 4, 4), 2 * 4160 + 32 + 1024 * j))
        for i in range(4): a('v_alignbit_b32 v%d, v%d, v%d, 16' % (o + 8 + i, d[i + 2], d[i + 1]))
        a('ds_write_b128 v36, %s offset:%d' % (vr(o + 8, 4), 3 * 4160 + 32 + 1024 * j))
        if j == 0:
            a('v_lshlrev_b32 v32, 16, v%d' % d[0])
            a('v_mov_b32 v33, v%d' % o)
            a('s_mov_b64 exec, 1')
            a('ds_write_b32 v36, v32 offset:%d' % (4160 + 28))
            a('ds_write_b32 v36, v%d offset:%d' % (d[0], 2 * 4160 + 28))
            a('ds_write_b64 v36, v[32:33] offset:%d' % (3 * 4160 + 24))
            a('s_mov_b64 exec, -1')
        if j & 1: a('s_waitcnt lgkmcnt(0)')
        sc.t += 200; sc.pump()
    sc.vm.wait(a, 'U')
    a('s_barrier')
    stamp(a, 15, 1)
    FA = 32; FB = 64; SP = 232
    def Areg(x): return FA + 4 * x
    def Breg(b, i): return (SP + 4 * b) if (b < 3 and i & 1) else FB + 4 * b
    lg = []
    def addr(i):
        k = 40 + 2 * (i & 1)
        return ['v_add_u32 v10, %d, v38' % ((-4 * i) & 0xffffffff), 'v_bfe_u32 v11, v10, 2, 2', 'v_xor_b32 v11, s3, v11', 'v_lshlrev_b32 v11, 4, v11',
                'v_add_u32 v11, s47, v11', 'v_max_i32 v12, -1, v10', 'v_lshl_add_u32 v%d, v10, 6, v11' % k, 'v_lshl_add_u32 v%d, v12, 6, v11' % (k + 1)]
    def rdA(x, i):
        def f():
            a('ds_read_b64 %s, v37 offset:%d' % (ar(Areg(x), 2), 512 * x + 64 * i))
            a('ds_read_b64 %s, v37 offset:%d' % (ar(Areg(x) + 2, 2), 512 * x + 64 * i + 8))
            lg.extend(['x', 'A%d_%d' % (x, i)])
        return f
    def rdBc(b, i):
        def f():
            k = 40 + 2 * (i & 1)
            if b == 0: a('ds_read_b128 %s, v%d' % (ar(Breg(b, i), 4), k + 1))
            else:      a('ds_read_b128 %s, v%d offset:%d' % (ar(Breg(b, i), 4), k, 2048 * b))
            lg.append('B%d_%d' % (b, i))
        return f
    def need(tag):
        if tag in lg:
            n = lg.index(tag)
            a('s_waitcnt lgkmcnt(%d)' % min(15, len(lg) - 1 - n))
            del lg[:n + 1]
    for x in addr(0): a(x)
    rdA(0, 0)()
    for b in range(7, -1, -1): rdBc(b, 0)()
    for x in range(1, 8): rdA(x, 0)()
    c = Cap(); setup_epi(c)
    epi = list(c.l)
    for i in range(8):
        q_ = []
        if i < 7: q_ = [x for x in addr(i + 1)] + [rdBc(2, i + 1), rdBc(1, i + 1), rdBc(0, i + 1)]
        for aa in range(8):
            for bb in range(7 - aa, -1, -1):
                need('A%d_%d' % (aa, i)); need('B%d_%d' % (bb, i))
                cr = ar(4 * (aa + bb), 4)
                a('v_mfma_f32_16x16x32_bf16 %s, %s, %s, %s' % (cr, ar(Areg(aa), 4), ar(Breg(bb, i), 4), '0' if (i == 0 and aa == 0) else cr))
                sc.pos += 1; sc.t += 17
                n = 2 - sc.pump()
                while q_ and n > 0:
                    x = q_.pop(0); sc.emit(x); n -= (2 if callable(x) else 1)
                if n == 2 and i == 7:
                    for _ in range(3):
                        if epi: a(epi.pop(0))
            if i < 7:
                q_.append(rdA(aa, i + 1))
                if 7 - aa >= 3: q_.append(rdBc(7 - aa, i + 1))
        for x in q_: sc.emit(x)
    stamp(a, 15, 2)
    a('v_lshrrev_b32 v44, 1, v9')
    a('v_lshl_add_u32 v44, v8, 1, v44')
    a('v_bfe_u32 v45, v44, 2, 2')
    a('v_xor_b32 v45, s3, v45')
    a('v_lshlrev_b32 v45, 4, v45')
    a('v_lshl_add_u32 v44, v44, 6, v45')
    a('v_and_b32 v45, 1, v9')
    a('v_lshlrev_b32 v45, 3, v45')
    a('v_sub_u32 v44, v44, v45')
    a('v_add_u32 v44, %d, v44' % (UB + 64 + 8))
    for t in range(8): a('ds_read_b64 %s, v44 offset:%d' % (ar(32 + 2 * t, 2), 2048 * t))
    a('v_lshrrev_b32 v45, 2, v8')
    a('v_lshlrev_b32 v45, 7, v45')
    a('v_lshl_add_u32 v45, v9, 5, v45')
    a('v_and_b32 v46, 3, v8')
    a('v_lshl_add_u32 v45, v46, 3, v45')
    a('s_add_u32 s43, s43, 0x%x' % YT)
    a('v_lshlrev_b32 v27, 16, v27')
    for x in epi: a(x)
    a('s_waitcnt lgkmcnt(0)')
    while LQ: sc.t += 100; sc.pump()
    for t in range(8):
        o = 32 + 10 * 0
        for r in range(4): a('v_accvgpr_read_b32 v%d, a%d' % (32 + r, 4 * t + r))
        a('v_accvgpr_read_b32 v37, a%d' % (33 + 2 * t))
        a('v_accvgpr_read_b32 v39, a%d' % (32 + 2 * t))
        a('v_and_b32 v36, 0xffff0000, v37')
        a('v_lshlrev_b32 v37, 16, v37')
        a('v_and_b32 v38, 0xffff0000, v39')
        a('v_lshlrev_b32 v39, 16, v39')
        for r in range(4): a('v_fmac_f32 v%d, v%d, v27' % (32 + r, 36 + r))
        k = 40 + 2 * (t & 1)
        a('v_cvt_pk_bf16_f32 v%d, v32, v33' % k)
        a('v_cvt_pk_bf16_f32 v%d, v34, v35' % (k + 1))
        sc.emit(('buffer_store_dwordx2 %s, v45, s[48:51], s43 offen offset:%d sc1' % (vr(k, 2), 512 * t), 'YS'))
    def publish():
        sc.vm.wait(a, 'YS')
        a('s_lshl_b32 s46, s42, 2')
        a('s_add_u32 s46, s46, 0x%x' % YFLAG)
        a('v_mov_b32 v10, 1')
        a('s_mov_b64 exec, 1')
        sc.emit(('buffer_store_dword v10, v1, s[48:51], s46 offen sc1', 'FL'))
        a('s_mov_b64 exec, -1')
    gemm(sc, 'c', [(sc.pos + opt.get('ypub', 70), ('BLOCK', [publish]))])
    a('s_branch K3_epi')
    a.label('K3_noconv')
    sc = Sched(a)
    n = 0
    for pr_ in range(5):
        for pre, ld in loads(pr_):
            if n < 12:
                for x in pre: a(x)
                sc.emit(ld)
            else: sc.LQ.append((0, pre, ld, 0))
            n += 1
    setup_epi(a)
    while len(sc.LQ) > 51: sc.pump()
    stamp(a, 15, 1); stamp(a, 15, 2)
    gemm(sc, 'n', [])
    a.label('K3_epi')
    stamp(a, 15, 4)
    a('v_add_u32 v10, s40, v1')
    a('s_mov_b32 s8, -1')
    a('s_mov_b32 s9, 0')
    a('s_mov_b32 s10, 0')
    a('s_mov_b32 s11, -1')
    for tt in (1, 2, 3):
        for dt in range(4): a('ds_write_b128 v10, %s offset:%d' % (acc(dt, tt), ((tt - 1) * 4 + dt) * 1024))
    a('s_mov_b64 exec, s[8:9]')
    for tt in (1, 2, 3, 0): a('ds_write_b128 v10, %s offset:%d' % (acc(4, tt), (12 + tt) * 1024))
    a('s_mov_b64 exec, s[10:11]')
    for tt in (1, 2, 3, 0): a('ds_write_b128 v10, %s offset:%d' % (acc(5, tt), (12 + tt) * 1024))
    a('s_mov_b64 exec, -1')
    O = 52
    for dt in range(4):
        for r in range(4): a('v_accvgpr_read_b32 v%d, a%d' % (O + 4 * dt + r, dt * 16 + r))
    for p in range(4):
        a('s_xor_b32 s12, s3, %d' % p)
        a('s_mul_i32 s12, s12, %d' % HSLOT)
        a('v_add_u32 v%d, s12, v1' % (4 + p))
        a('v_xor_b32 v11, 512, v1')
        a('v_add_u32 v%d, s12, v11' % (44 + p))
    a('s_waitcnt vmcnt(0)')
    a('ds_write_b128 v24, v[32:35]')
    a('ds_write_b128 v24, v[36:39] offset:4096')
    a('v_add_u32 v11, %d, v1' % (YP + 8192))
    a('ds_write_b128 v11, v[40:43]')
    X = 72
    a('ds_read_b128 %s, v20' % vr(X, 4))
    a('ds_read_b128 %s, v20 offset:64' % vr(X + 4, 4))
    a('ds_read_b64 %s, v21 offset:128' % vr(X + 8, 2))
    a('s_waitcnt lgkmcnt(0)')
    a('s_barrier')
    R = 84
    for p in range(1, 4):
        for dt in range(4): a('ds_read_b128 %s, v%d offset:%d' % (vr(R + 16 * (p - 1) + 4 * dt, 4), 4 + p, ((p - 1) * 4 + dt) * 1024))
    XF = 180; XN = 200; Yr = 164
    a('v_mov_b32 v30, v28')
    a('v_mov_b32 v31, v28')
    a('v_mov_b32 v28, v29')
    for i in range(10):
        a('v_lshlrev_b32 v%d, 16, v%d' % (XF + 2 * i, X + i))
        a('v_and_b32 v%d, 0xffff0000, v%d' % (XF + 2 * i + 1, X + i))
    a('s_waitcnt lgkmcnt(4)')
    for p in range(4):
        a('ds_read_b128 %s, v%d offset:%d' % (vr(132 + 8 * p, 4), 4 + p, (12 + p) * 1024))
        a('ds_read_b128 %s, v%d offset:%d' % (vr(136 + 8 * p, 4), 44 + p, (12 + p) * 1024))
    for i in range(10): a('v_pk_add_f32 %s, %s, v[30:31] neg_lo:[0,1] neg_hi:[0,1]' % (pr(XN + 2 * i), pr(XF + 2 * i)))
    a('s_waitcnt lgkmcnt(8)')
    for dt in range(4): a('ds_read_b64_tr_b16 %s, v25 offset:%d' % (vr(Yr + 2 * dt, 2), (32 * (dt >> 1) + 4 * (dt & 1)) * 128))
    a('ds_read_b64_tr_b16 %s, v26 offset:%d' % (vr(Yr + 8, 2), 64 * 128))
    for i in range(10): a('v_pk_mul_f32 %s, %s, v[28:29]' % (pr(XN + 2 * i), pr(XN + 2 * i)))
    for i in range(8): a('v_pk_add_f32 %s, %s, %s' % (pr(O + 2 * i), pr(O + 2 * i), pr(XF + 2 * i)))
    for i in range(8): a('v_pk_add_f32 %s, %s, %s' % (pr(R + 2 * i), pr(R + 2 * i), pr(R + 16 + 2 * i)))
    for i in range(8): a('v_pk_add_f32 %s, %s, %s' % (pr(O + 2 * i), pr(O + 2 * i), pr(R + 32 + 2 * i)))
    for i in range(8): a('v_pk_add_f32 %s, %s, %s' % (pr(O + 2 * i), pr(O + 2 * i), pr(R + 2 * i)))
    a('s_waitcnt lgkmcnt(5)')
    for i in range(8): a('v_pk_add_f32 %s, %s, %s' % (pr(132 + 2 * i), pr(132 + 2 * i), pr(148 + 2 * i)))
    for i in range(4): a('v_pk_add_f32 %s, %s, %s' % (pr(132 + 2 * i), pr(132 + 2 * i), pr(140 + 2 * i)))
    for i in range(2): a('v_pk_add_f32 %s, %s, %s' % (pr(132 + 2 * i), pr(132 + 2 * i), pr(136 + 2 * i)))
    for i in range(2): a('v_pk_add_f32 %s, %s, %s' % (pr(O + 16 + 2 * i), pr(132 + 2 * i), pr(XF + 16 + 2 * i)))
    a('s_waitcnt lgkmcnt(0)')
    for i in range(10):
        a('v_lshlrev_b32 v%d, 16, v%d' % (XF + 2 * i, Yr + i))
        a('v_and_b32 v%d, 0xffff0000, v%d' % (XF + 2 * i + 1, Yr + i))
    for i in range(10): a('v_pk_fma_f32 %s, %s, %s, %s' % (pr(O + 2 * i), pr(XN + 2 * i), pr(XF + 2 * i), pr(O + 2 * i)))
    for i in range(10): a('v_cvt_pk_bf16_f32 v%d, v%d, v%d' % (X + i, O + 2 * i, O + 2 * i + 1))
    a('ds_write_b128 v20, %s' % vr(X, 4))
    a('ds_write_b128 v20, %s offset:64' % vr(X + 4, 4))
    a('s_mov_b64 exec, s[8:9]')
    a('ds_write_b64 v21, %s offset:128' % vr(X + 8, 2))
    a('s_mov_b64 exec, -1')
    a('v_add_u32 v10, s36, v1')
    for i in range(3): a('ds_read_b128 %s, v10 offset:%d' % (vr(R + 4 * i, 4), 1024 * i))
    for i in range(3):
        a('s_waitcnt lgkmcnt(%d)' % (2 - i))
        a('buffer_store_dwordx4 %s, v%d, s[56:59], s34 offen%s' % (vr(R + 4 * i, 4), 16 + i, ' sc1' if opt.get('osc', 0) else ''))
    stamp(a, 15, 5)
    stamp_flush(a, 15, 3, 14, 6)
    if DBG['on'] and opt.get('hdbg'):
        wg = opt.get('hdbg') - 1
        a('s_cmp_lg_u32 s2, %d' % wg)
        a('s_cbranch_scc1 K3_end')
        a('s_cmp_lg_u32 s3, 0')
        a('s_cbranch_scc1 K3_end')
        a('s_load_dwordx2 s[8:9], s[0:1], 96')
        a('s_waitcnt vmcnt(0) lgkmcnt(0)')
        a('s_sub_u32 s8, s8, 0')
        a('s_subb_u32 s9, s9, 0')
        a('s_mov_b32 s10, 256')
        a('s_mov_b32 s11, 0x00020000')
        sel = [(0, 0), (0, 5), (1, 0), (1, 1), (1, 2), (1, 3), (1, 5), (1, 7), (2, 2), (2, 3), (2, 6), (3, 0), (3, 1), (3, 2), (3, 4), (3, 6)]
        for i, (k, j) in enumerate(sel):
            a('s_mov_b32 s12, 0x%x' % (STAMP + k * 256 * 8 * 64 + wg * 512 + j * 4))
            a('v_writelane_b32 v20, s12, %d' % i)
        a('buffer_load_dword v21, v20, s[48:51], 0 offen sc1')
        a('s_waitcnt vmcnt(0)')
        a('v_readlane_b32 s12, v21, 0')
        a('s_nop 1')
        a('v_subrev_u32 v21, s12, v21')
        a('buffer_store_dword v21, v14, s[8:11], 0 offen')
        if 'pin' in opt:
            a('v_readlane_b32 s13, v21, %d' % opt['pin'])
            a('s_nop 3')
            a('s_add_u32 s12, s12, s13')
            a.label('K3_spin')
            a('s_memrealtime s[98:99]')
            a('s_waitcnt lgkmcnt(0)')
            a('s_sub_u32 s13, s98, s12')
            a('s_cmp_lt_u32 s13, 8000')
            a('s_cbranch_scc1 K3_spin')
    a.label('K3_end')
    a('s_endpgm')
    return kernel_desc(name, 512, 256), '; @launch kernel=k3_kernel grid=(256,1,1) block=(256,1,1) lds=%d' % K3_LDS

def gen_empty(n):
    def f(a):
        name = 'k%d_kernel' % n
        kernel_begin(a, name)
        a('s_endpgm')
        return kernel_desc(name, 64, 64), '; @launch kernel=%s grid=(256,1,1) block=(256,1,1) lds=0' % name
    return f
KERNELS = {'k0': gen_k0, 'k1': gen_k1, 'k2': gen_k2, 'k3': gen_k3, 'kf': gen_kf, 'e1': gen_empty(7), 'e2': gen_empty(8), 'e3': gen_empty(9)}

def build(names):
    a = Asm()
    descs = []; hdr = []
    for n in names:
        d, h = KERNELS[n](a, OPT) if n in ('k0', 'k1', 'k2', 'k3', 'kf') else KERNELS[n](a)
        descs.append(d); hdr.append(h)
    if SC1['on']:
        a.lines = [l + ' ' + SC1['on'] if ('buffer_store_dwordx4' in l and 'sc1' not in l) else l for l in a.lines]
    txt = build_file(hdr, a.text(), descs)
    errs = hazard.check(a.text())
    for e in errs: print('HAZARD', e, file=sys.stderr)
    return txt

if __name__ == '__main__':
    out = sys.argv[1]
    names = sys.argv[2].split(',')
    if len(sys.argv) > 3 and 'dbg' in sys.argv[3]: DBG['on'] = True
    if len(sys.argv) > 3 and 'sc1' in sys.argv[3]: SC1['on'] = 'sc1'
    if len(sys.argv) > 3 and 'sc01' in sys.argv[3]: SC1['on'] = 'sc0 sc1'
    if len(sys.argv) > 3 and 'nt' in sys.argv[3]: SC1['on'] = 'nt'
    for kv in sys.argv[4:]:
        k, v = kv.split('=')
        OPT[k] = float(v) if '.' in v else int(v)
    open(out, 'w').write(build(names))
```
